```python
import torch

def _softmax(x, axis=-1):
    return torch.softmax(x, dim=axis)

def _gelu(x):
    return torch.nn.functional.gelu(x, approximate='tanh')

def _silu(x):
    return torch.nn.functional.silu(x)

def _sigmoid(x):
    return torch.sigmoid(x)

def _layernorm(x, axis=-1, eps=1e-05):
    m = x.mean(dim=axis, keepdim=True)
    v = x.var(dim=axis, keepdim=True, unbiased=False)
    return (x - m) / torch.sqrt(v + eps)

def _scatter_add(tgt, idx, src, axis=0):
    return tgt.clone().index_add_(axis, idx, src)

def _segment_sum(src, seg, n):
    out = torch.zeros((n,) + src.shape[1:], dtype=src.dtype)
    return out.index_add_(0, seg, src)

def _pad(x, pw):
    flat = tuple((v for pair in reversed(pw) for v in pair))
    return torch.nn.functional.pad(x, flat)
kernel_name = 'adaLN_cond__memory_aug_recurrent_mem_tr__moe_arch_mod__prompt'

def setup_inputs():

    _w = lambda a: (lambda t: t.to(torch.bfloat16) if t.is_floating_point() else t)(torch.as_tensor(a))

    def _A_setup():
        B, S, Dm = (1, 2048, 640)
        H, Dh = (32, 192)
        M, seg = (8, 32)
        seg = min(seg, S)
        S = S // seg * seg
        return {'x': _w((lambda *s: torch.randn(*s, dtype=torch.bfloat16) * 0.05)(B, S, Dm)), 'mem0': _w((lambda *s: torch.randn(*s, dtype=torch.bfloat16) * 0.4)(B, M, Dm)), 'Wq': _w((lambda *s: torch.randn(*s, dtype=torch.bfloat16) * 3.2)(Dm, H, Dh) * Dm ** (-0.5)), 'Wk': _w((lambda *s: torch.randn(*s, dtype=torch.bfloat16) * 3.2)(Dm, H, Dh) * Dm ** (-0.5)), 'Wv': _w((lambda *s: torch.randn(*s, dtype=torch.bfloat16) * 0.4)(Dm, H, Dh) * Dm ** (-0.5)), 'Wo': _w((lambda *s: torch.randn(*s, dtype=torch.bfloat16) * 0.4)(H, Dh, Dm) * (H * Dh) ** (-0.5)), 'seg_len': seg}
    _A_in = _A_setup()

    def _B_setup():
        B, S, D, F, C = (1, 2048, 640, 1536, 8)
        return {'x': _w((lambda *s: torch.randn(*s, dtype=torch.bfloat16) * 0.05)(B, S, D)), 'w_r': _w((lambda *s: torch.randn(*s, dtype=torch.bfloat16) * 0.05)(D)), 'w_gate': _w((lambda *s: torch.randn(*s, dtype=torch.bfloat16) * 0.05)(D, F)), 'w_up': _w((lambda *s: torch.randn(*s, dtype=torch.bfloat16) * 0.05)(D, F)), 'w_down': _w((lambda *s: torch.randn(*s, dtype=torch.bfloat16) * 0.05)(F, D))}
    _B_in = _B_setup()
    return {'A_x': _A_in['x'], 'A_mem0': _A_in['mem0'], 'A_Wq': _A_in['Wq'], 'A_Wk': _A_in['Wk'], 'A_Wv': _A_in['Wv'], 'A_Wo': _A_in['Wo'], 'A_seg_len': _A_in['seg_len'], 'B_x': _B_in['x'], 'B_w_r': _B_in['w_r'], 'B_w_gate': _B_in['w_gate'], 'B_w_up': _B_in['w_up'], 'B_w_down': _B_in['w_down'], 'c': _w((lambda *s: torch.randn(*s, dtype=torch.bfloat16) * 0.05)(1, 640) * 8.0), 'w_mod': _w((lambda *s: torch.randn(*s, dtype=torch.bfloat16) * 0.05)(640, 6 * 640) * 640 ** (-0.5) * 8.0)}

def reference(A_x, A_mem0, A_Wq, A_Wk, A_Wv, A_Wo, A_seg_len, B_x, B_w_r, B_w_gate, B_w_up, B_w_down, c, w_mod):

    def _A_ref(x, mem0, Wq, Wk, Wv, Wo, seg_len):
        B, S, Dm = x.shape
        H, Dh = (Wq.shape[1], Wq.shape[2])
        M = mem0.shape[1]
        scale = Dh ** (-0.5)
        n_seg = S // seg_len
        L = M + seg_len
        idx = torch.arange(L)
        mask = (idx[:, None] < M) | (idx[:, None] >= idx[None, :])
        mem = mem0
        outs = []
        for s in range(n_seg):
            xs = x[:, s * seg_len:(s + 1) * seg_len, :].clone()
            h = torch.concatenate([mem, xs], axis=1)
            q = torch.einsum('btd,dhe->bhte', h, Wq)
            k = torch.einsum('btd,dhe->bhte', h, Wk)
            v = torch.einsum('btd,dhe->bhte', h, Wv)
            scores = torch.einsum('bhqe,bhke->bhqk', q, k) * scale
            scores = torch.where(mask[None, None], scores, -1000000000.0)
            p = _softmax(scores, axis=-1)
            o = torch.einsum('bhqk,bhke->bhqe', p, v)
            o = torch.einsum('bhte,hed->btd', o, Wo)
            mem = o[:, :M, :].clone()
            outs.append(o[:, M:, :])
        return torch.concatenate(outs, axis=1)

    def _B_ref(x, w_r, w_gate, w_up, w_down):
        B, S, D = x.shape
        C = 8
        r = x @ w_r
        idx = torch.argsort(-r, axis=-1)[:, :C]
        idx_e = (lambda x, n, axis: torch.repeat_interleave(x, n, dim=axis))(idx.reshape(B, C, 1), D, axis=2)
        x_sel = (lambda x, i, axis: torch.take_along_dim(x, i, dim=axis))(x, idx_e, axis=1)
        g = _silu(x_sel @ w_gate)
        u = x_sel @ w_up
        y = g * u @ w_down
        r_sel = _sigmoid((lambda x, i, axis: torch.take_along_dim(x, i, dim=axis))(r, idx, axis=1))
        y = y * r_sel.reshape(B, C, 1)
        b_off = (torch.arange(B) * S).reshape(B, 1)
        flat_idx = (idx + b_off).reshape(B * C)
        zero = (x * 0.0).reshape(B * S, D)
        upd = _scatter_add(zero, flat_idx, y.reshape(B * C, D), axis=0)
        return x + upd.reshape(B, S, D)
    x = A_x
    mod = (_silu(c) @ w_mod).reshape(c.shape[0], 6, 1, -1)
    sa, ca, ga, sb, cb, gb = (mod[:, 0].clone(), mod[:, 1].clone(), mod[:, 2].clone(), mod[:, 3].clone(), mod[:, 4].clone(), mod[:, 5].clone())
    h = _layernorm(x, axis=-1) * (1 + ca) + sa
    x = x + ga * _A_ref(h, A_mem0, A_Wq, A_Wk, A_Wv, A_Wo, A_seg_len)
    h = _layernorm(x, axis=-1) * (1 + cb) + sb
    x = x + gb * _B_ref(h, B_w_r, B_w_gate, B_w_up, B_w_down)
    return x
```

```python
import re

def v(i, n=1): return f"v{i}" if n == 1 else f"v[{i}:{i+n-1}]"
def a(i, n=1): return f"a{i}" if n == 1 else f"a[{i}:{i+n-1}]"
def s(i, n=1): return f"s{i}" if n == 1 else f"s[{i}:{i+n-1}]"
def r(i, n=1):
    if i >= 256:
        return a(i - 256, n)
    assert i + n <= 256
    return v(i, n)

_reg = re.compile(r"^(-?\|?)([vas])(\d+)\|?$")
_rng = re.compile(r"^(-?\|?)([vas])\[(\d+):(\d+)\]\|?$")
SPECIAL = {"vcc": [("s", 106), ("s", 107)], "vcc_lo": [("s", 106)], "vcc_hi": [("s", 107)],
           "exec": [("s", 126), ("s", 127)], "exec_lo": [("s", 126)], "exec_hi": [("s", 127)],
           "m0": [("s", 124)]}

def regs_of(tok):
    tok = tok.strip()
    if tok in SPECIAL: return list(SPECIAL[tok])
    m = _reg.match(tok)
    if m: return [(m.group(2), int(m.group(3)))]
    m = _rng.match(tok)
    if m: return [(m.group(2), i) for i in range(int(m.group(3)), int(m.group(4)) + 1)]
    return []

TRANS = ("v_exp_f32", "v_log_f32", "v_rcp_f32", "v_rsq_f32", "v_sqrt_f32", "v_sin_f32", "v_cos_f32", "v_rcp_iflag_f32")

class Ins:
    __slots__ = ("text", "op", "kind", "dst", "src", "extra", "nops", "label", "target")
    def __init__(self, text):
        self.text = text; self.nops = 0; self.label = None; self.target = None
        self.dst = []; self.src = []; self.extra = {}
        t = text.split(";")[0].strip()
        if t.endswith(":"):
            self.kind = "label"; self.label = t[:-1]; self.op = ""; return
        if not t or t.startswith("."):
            self.kind = "dir"; self.op = ""; return
        parts = t.split(None, 1)
        op = parts[0]; self.op = op
        rest = parts[1] if len(parts) > 1 else ""
        rest = re.sub(r"(quad_perm|op_sel|op_sel_hi|neg_lo|neg_hi):\[[^\]]*\]", lambda m: m.group(1) + ":x", rest)
        ops = [x.strip() for x in rest.split(",")] if rest else []
        mods = ""
        if ops:
            lastp = ops[-1].split(None, 1)
            ops[-1] = lastp[0]
            mods = lastp[1] if len(lastp) > 1 else ""
        R = [regs_of(o) for o in ops]
        flat = lambda L: [x for l in L for x in l]
        base = re.sub(r"_(e32|e64|dpp|sdwa)$", "", op)
        if op.startswith("v_mfma") or op.startswith("v_smfmac"):
            self.kind = "mfma"
            self.dst = R[0]
            passes = 8 if "32x32" in op else 4
            if op.startswith("v_smfmac"):
                self.extra = dict(ab=R[1] + R[2] + R[3], c=R[0], passes=passes)
            else:
                self.extra = dict(ab=R[1] + R[2], c=R[3], passes=passes)
            self.src = self.extra["ab"] + self.extra["c"]
        elif op.startswith("v_"):
            self.kind = "valu"
            dpp = op.endswith("_dpp") or any(k in mods for k in ("row_", "quad_perm", "wave_"))
            self.extra["dpp"] = dpp
            self.extra["trans"] = base in TRANS
            self.extra["opsel"] = ("op_sel" in mods and not base.startswith("v_pk_")) or op.endswith("_sdwa")
            if base.startswith("v_permlane") and "swap" in base or base == "v_swap_b32":
                self.dst = R[0] + R[1]; self.src = R[0] + R[1]
                self.extra["perm"] = base.startswith("v_permlane")
            elif base.startswith("v_cmpx"):
                raise ValueError("v_cmpx not supported")
            elif base.startswith("v_cmp"):
                self.dst = R[0]; self.src = flat(R[1:])
            elif base in ("v_add_co_u32", "v_sub_co_u32", "v_subrev_co_u32"):
                self.dst = R[0] + R[1]; self.src = flat(R[2:])
            elif base in ("v_addc_co_u32", "v_subb_co_u32"):
                self.dst = R[0] + R[1]; self.src = flat(R[2:])
            elif base in ("v_readfirstlane_b32", "v_readlane_b32"):
                self.dst = R[0]; self.src = flat(R[1:]); self.extra["rl"] = True
                self.extra["lanesel"] = R[2] if len(R) > 2 else []
            elif base == "v_writelane_b32":
                self.dst = R[0]; self.src = flat(R[1:]) + R[0]; self.extra["lanesel"] = R[2]
            elif base == "v_nop":
                pass
            else:
                self.dst = R[0]; self.src = flat(R[1:])
                if base.startswith("v_fmac") or base.startswith("v_mac") or base.startswith("v_pk_fmac") or base.startswith("v_dot2c") or dpp:
                    self.src = self.src + R[0]
                if base == "v_cndmask_b32" and len(ops) == 3:
                    self.src = self.src + SPECIAL["vcc"]
        elif op.startswith("ds_"):
            self.kind = "ds"
            if op.startswith("ds_read") or op.startswith("ds_bpermute") or op.startswith("ds_permute") or op.startswith("ds_swizzle") or "_rtn" in op:
                self.dst = R[0]; self.src = flat(R[1:])
            else:
                self.src = flat(R)
        elif op.startswith("buffer_") or op.startswith("global_"):
            self.kind = "vmem"
            lds = bool(re.search(r"\blds\b", mods))
            self.extra["lds"] = lds
            if "load" in op and not lds:
                self.dst = R[0]; self.src = flat(R[1:])
            elif "load" in op:
                self.src = flat(R) + SPECIAL["m0"]
            elif "atomic" in op:
                self.src = flat(R)
                if re.search(r"\bsc0\b", mods): self.dst = R[0]
            else:
                self.src = flat(R)
                if op.endswith("x3") or op.endswith("x4"):
                    self.extra["wide"] = R[0] if op.startswith("buffer_") else R[1]
        elif op.startswith("s_"):
            self.kind = "salu"
            if op in ("s_branch",) or op.startswith("s_cbranch"):
                self.kind = "branch"; self.target = ops[0]
            elif op == "s_nop":
                self.kind = "nop"; self.extra["n"] = int(ops[0], 0) + 1
            elif op == "s_endpgm":
                self.kind = "end"
            elif op.startswith("s_cmp") or op.startswith("s_bitcmp") or op in ("s_waitcnt", "s_barrier", "s_sleep", "s_setprio", "s_setreg_b32", "s_sethalt"):
                self.src = flat(R)
            else:
                self.dst = R[0] if R else []; self.src = flat(R[1:])
        else:
            raise ValueError("unknown instruction: " + text)

BIG = 1000
class State:
    def __init__(self): self.ev = {}
    def copy(self):
        n = State(); n.ev = dict(self.ev); return n
    def tick(self, n):
        self.ev = {k: (x[0] + n, x[1]) for k, x in self.ev.items() if x[0] + n < 24}
    def merge(self, o):
        ch = False
        for k, x in o.ev.items():
            if k not in self.ev or self.ev[k][0] > x[0]:
                self.ev[k] = x; ch = True
            elif self.ev[k][0] == x[0] and self.ev[k][1] != x[1] and self.ev[k][1] is not None:
                self.ev[k] = (x[0], None); ch = True
        return ch
    def age(self, e, reg): return self.ev.get((e, reg), (BIG, None))[0]
    def info(self, e, reg): return self.ev.get((e, reg), (BIG, None))[1]

MF_RAW = {4: 8, 8: 12}; MF_COV = {4: 6, 8: 10}; MF_WARC = {4: 3, 8: 7}

def need(ins, st):
    n = 0
    def req(e, reg, d):
        nonlocal n
        ag = st.age(e, reg)
        if ag < d: n = max(n, d - ag)
    k = ins.kind
    vsrc = [x for x in ins.src if x[0] in "va"]; vdst = [x for x in ins.dst if x[0] in "va"]
    ssrc = [x for x in ins.src if x[0] == "s"]
    if k == "mfma":
        for x in vsrc: req("valu", x, 2)
        for p in (4, 8):
            for x in ins.extra["ab"]: req(f"mf{p}", x, MF_RAW[p])
            c = ins.extra["c"]
            for x in c:
                if st.age(f"mf{p}", x) < BIG:
                    same = st.info(f"mf{p}", x) == (ins.op, tuple(c)) and p == ins.extra["passes"]
                    if not same: req(f"mf{p}", x, MF_COV[p])
            if tuple(ins.dst) != tuple(c):
                for x in ins.dst: req(f"mf{p}", x, MF_COV[p])
    elif k == "valu":
        for p in (4, 8):
            for x in vsrc + vdst: req(f"mf{p}", x, MF_RAW[p])
            for x in vdst: req(f"mc{p}", x, MF_WARC[p])
        for x in vdst: req("wide", x, 2)
        if ins.extra.get("dpp") or ins.extra.get("perm"):
            for x in vsrc: req("valu", x, 2)
        if ins.extra.get("rl"):
            for x in vsrc: req("valu", x, 1)
        for x in ins.extra.get("lanesel", []): req("vsg", x, 4)
        for x in ssrc: req("vsg", x, 2)
        if not ins.extra.get("trans"):
            for x in vsrc: req("trans", x, 1)
        for x in vsrc + vdst: req("opsel", x, 1)
    elif k in ("ds", "vmem"):
        for p in (4, 8):
            for x in vsrc + vdst: req(f"mf{p}", x, MF_RAW[p])
            for x in vdst: req(f"mc{p}", x, MF_WARC[p])
        for x in vdst: req("wide", x, 1)
        for x in vsrc: req("trans", x, 1)
        if k == "vmem":
            for x in ssrc: req("vsg", x, 5)
            if ins.extra.get("lds"): req("m0", ("s", 124), 1)
    elif k in ("salu", "branch"):
        for x in ssrc: req("vsg", x, 1)
    return n

def apply(ins, st):
    k = ins.kind
    if k == "nop":
        st.tick(ins.extra["n"]); return
    st.tick(1)
    if k == "mfma":
        p = ins.extra["passes"]
        for x in ins.dst:
            st.ev[(f"mf{p}", x)] = (0, (ins.op, tuple(ins.dst))); st.ev.pop(("valu", x), None)
        for x in ins.extra["c"]: st.ev[(f"mc{p}", x)] = (0, None)
    elif k == "valu":
        for x in ins.dst:
            if x[0] == "s": st.ev[("vsg", x)] = (0, None)
            else:
                st.ev[("valu", x)] = (0, None)
                if ins.extra.get("trans"): st.ev[("trans", x)] = (0, None)
                if ins.extra.get("opsel"): st.ev[("opsel", x)] = (0, None)
    elif k == "vmem":
        for x in ins.extra.get("wide", []): st.ev[("wide", x)] = (0, None)
    elif k == "salu":
        if ("s", 124) in ins.dst: st.ev[("m0", ("s", 124))] = (0, None)

def fix_hazards(lines):
    I = [Ins(t) for t in lines]
    entry = {}
    for it in range(12):
        changed = False
        st = State(); live = True
        for ins in I:
            if ins.kind == "label":
                if not live: st = State()
                if ins.label in entry: st.merge(entry[ins.label])
                live = True
                continue
            if ins.kind == "dir": continue
            if ins.nops: st.tick(ins.nops)
            n = need(ins, st)
            if n > 0:
                ins.nops += n; st.tick(n); changed = True
            apply(ins, st)
            if ins.kind == "branch":
                e = entry.setdefault(ins.target, State())
                if e.merge(st): changed = True
                if ins.op == "s_branch": live = False
            if ins.kind == "end": live = False
        if not changed: break
    out = []
    for ins in I:
        n = ins.nops
        while n > 0:
            k = min(n, 16); out.append(f"  s_nop {k-1}"); n -= k
        out.append(ins.text)
    return out

class Asm:
    def __init__(self):
        self.lines = []; self._n = 0
    def __call__(self, text):
        for t in text.split("\n"):
            t = t.strip()
            if t: self.lines.append(("" if t.endswith(":") or t.startswith(".") else "  ") + t)
    def label(self, p="L"):
        self._n += 1; return f"{p}_{self._n}"
    def text(self): return "\n".join(fix_hazards(self.lines)) + "\n"
```

```python
from asmlib import *

NAME = "adaLN_cond__memory_aug_recurrent_mem_tr__moe_arch_mod__prompt"
OFF_FLAGS = 0x0
PPROG = OFF_FLAGS + 0x0000
CPROG = OFF_FLAGS + 0x1000
APROG = OFF_FLAGS + 0x2000
HPROG = OFF_FLAGS + 0x3000
RPROG = OFF_FLAGS + 0x4000
MPROG = OFF_FLAGS + 0x5000
FLAGS_BYTES = 0x10000
OFF_MOD = 0x10000
OFF_MEM = 0x20000
MEM_SLOT = 8 * 10240
OFF_SV = 0x60000
OFF_XP = 0x160000
XP_SLOT = 10 * 2 * 4 * 8 * 256
SENT_BEG = OFF_MEM + MEM_SLOT
SENT_END = OFF_XP + 4 * XP_SLOT
OFF_H = 0x280000
OFF_X1 = 0x500000
OFF_H2 = 0x800000
OFF_R = 0xB00000
OFF_ACT = 0xB10000
OFF_DBG = 0xC00000
OFF_KM = 0x1000000
OFF_WM = 0x1800000
OFF_PT = 0x2D00000
OFF_QKV = 0x4000000
QKV_MAT = 32 * 64 * 12288
OFF_U = 0x8800000
OFF_AOP = 0xD800000
WS_BYTES = 268435456

KA = dict(x=0, mem0=8, wq=16, wk=24, wv=32, wo=40, wr=64, wg=72, wu=80, wd=88, c=96, wmod=104, out=112, dbg=120, ws=128)
SZ = dict(x=2048*640*2, mem0=8*640*2, wq=640*6144*2, wk=640*6144*2, wv=640*6144*2, wo=6144*640*2, wr=1280,
          wg=640*1536*2, wu=640*1536*2, wd=1536*640*2, c=1280, wmod=640*3840*2, out=2048*640*2, dbg=256, ws=WS_BYTES)

def srd(A, sreg, name):
    A(f"s_load_dwordx2 {s(sreg,2)}, s[0:1], {KA[name]}")
    A(f"s_mov_b32 {s(sreg+2)}, {SZ[name]}")
    A(f"s_mov_b32 {s(sreg+3)}, 0x00020000")

def kernel_head(A, label):
    A(f".globl {label}_kernel\n.p2align 8\n.type {label}_kernel,@function\n{label}_kernel:")

def kernel_desc(label, vgpr=512, accum=256, sgpr=102):
    return f""".p2align 6
.amdhsa_kernel {label}_kernel
  .amdhsa_next_free_vgpr {vgpr}
  .amdhsa_next_free_sgpr {sgpr}
  .amdhsa_accum_offset {accum}
  .amdhsa_group_segment_fixed_size 0
  .amdhsa_kernarg_size 136
  .amdhsa_user_sgpr_count 2
  .amdhsa_user_sgpr_kernarg_segment_ptr 1
  .amdhsa_system_sgpr_workgroup_id_x 1
.end_amdhsa_kernel
"""

class Alloc:
    def __init__(self, lo, hi): self.p = lo; self.hi = hi
    def __call__(self, n=1, al=None):
        al = al or (2 if n >= 2 else 1)
        self.p = (self.p + al - 1) // al * al
        x = self.p; self.p += n
        assert self.p <= self.hi, f"register overflow {self.p} > {self.hi}"
        return x

SPIN_LIMIT = 1 << 16

def panel_src_off(A, vdst, vtmp, vlane, stride):
    A(f"v_lshrrev_b32 {v(vtmp)}, 4, {v(vlane)}")
    A(f"v_and_b32 {v(vtmp)}, 3, {v(vtmp)}")
    A(f"v_lshlrev_b32 {v(vtmp)}, 1, {v(vtmp)}")
    A(f"v_and_b32 {v(vdst)}, 7, {v(vlane)}")
    A(f"v_xor_b32 {v(vdst)}, {v(vdst)}, {v(vtmp)}")
    A(f"v_lshlrev_b32 {v(vdst)}, 4, {v(vdst)}")
    A(f"v_lshrrev_b32 {v(vtmp)}, 3, {v(vlane)}")
    A(f"v_mul_u32_u24 {v(vtmp)}, {stride}, {v(vtmp)}")
    A(f"v_add_u32 {v(vdst)}, {v(vdst)}, {v(vtmp)}")

def panel_dma(A, srdreg, voff, ssoff, sm0, stride, ninstr):
    for i in range(ninstr):
        A(f"s_mov_b32 m0, {s(sm0)}")
        A(f"s_add_u32 {s(sm0)}, {s(sm0)}, 1024")
        A(f"buffer_load_dwordx4 {v(voff)}, {s(srdreg,4)}, {s(ssoff)} offen lds")
        A(f"s_add_u32 {s(ssoff)}, {s(ssoff)}, {8*stride}")

def panel_rd_addr(A, vdst, vt1, vt2, vlane, tile):
    A(f"v_lshrrev_b32 {v(vt1)}, 2, {v(vlane)}")
    A(f"v_lshrrev_b32 {v(vt2)}, 1, {v(vt1)}")
    A(f"v_and_b32 {v(vt2)}, 3, {v(vt2)}")
    A(f"v_lshlrev_b32 {v(vt2)}, 1, {v(vt2)}")
    A(f"v_bfe_u32 {v(vdst)}, {v(vlane)}, 1, 1")
    t2 = 2 * tile if isinstance(tile, int) else tile
    A(f"v_add_u32 {v(vdst)}, {t2}, {v(vdst)}")
    A(f"v_xor_b32 {v(vdst)}, {v(vdst)}, {v(vt2)}")
    A(f"v_lshlrev_b32 {v(vdst)}, 4, {v(vdst)}")
    A(f"v_lshlrev_b32 {v(vt1)}, 7, {v(vt1)}")
    A(f"v_add_u32 {v(vdst)}, {v(vdst)}, {v(vt1)}")
    A(f"v_and_b32 {v(vt1)}, 1, {v(vlane)}")
    A(f"v_lshlrev_b32 {v(vt1)}, 3, {v(vt1)}")
    A(f"v_add_u32 {v(vdst)}, {v(vdst)}, {v(vt1)}")

def panel_read_frag(A, dst, vaddr, off):
    assert off + 2048 < 65536
    A(f"ds_read_b64_tr_b16 {r(dst,2)}, {v(vaddr)} offset:{off}")
    A(f"ds_read_b64_tr_b16 {r(dst+2,2)}, {v(vaddr)} offset:{off+2048}")
```

```python
from common import *

S_WS, S_DBG, S_X, S_W, S_T = 8, 12, 16, 17, 18
V_LANE = 1

LDS_MEM, LDS_T, LDS_T2, LDS_RED = 0, 10240, 12288, 14336
SCALE = 192 ** -0.5
import struct
def f32bits(x): return "0x%08x" % struct.unpack("<I", struct.pack("<f", x))[0]
PMASK_LO, PMASK_HI = 0x00fff000, 0x00fffff0

def gen_chain(A, prof=False, opt=()):
    optv = dict(o.split("=") for o in opt if "=" in o)
    NSEG = int(optv.get("nseg", 64))
    sa = Alloc(20, 100)
    SQ, SK, SV_, SO = sa(4, 4), sa(4, 4), sa(4, 4), sa(4, 4)
    sC, sLH, sP, sHead, sSeg, sCnt = sa(), sa(), sa(), sa(), sa(), sa()
    sT0, sT1, sT2, sM0 = sa(), sa(), sa(), sa()
    sMemCur, sMemNxt = sa(), sa()
    sSVb, sSVgb = sa(), sa()
    sSVs, sSVv, sSVg, sSVgv = sa(), sa(), sa(), sa()
    sSVsz, sSVvz = sa(), sa()
    sSoff = sa()
    sKm, sWm = sa(), sa()
    sKx, sUx = sa(), sa()
    sXPw, sXPr, sXPz, sXPb = sa(), sa(), sa(), sa()
    sMlo, sMhi, sMS = sa(2, 2), sa(2, 2), sa(2, 2)
    sC1, sC2, sC3 = sa(2, 2), sa(2, 2), sa(2, 2)
    sPf, sRoff = sa(), sa()
    NST = 10
    stamps = [sa(2, 2) for _ in range(NST)] if prof else []
    cnts = [SQ, SQ+1, SQ+2] if prof else []

    va = Alloc(2, 176)
    def WOf(ct, kk):
        f = ct * 6 + kk
        return 176 + 4 * f if f < 20 else 256 + 240 + 4 * (f - 20)
    WQ, WK, WV = 256, 256 + 80, 256 + 160
    MF = va(40, 4)
    U = va(16, 4)
    KX = va(8, 4)
    accq, acck, accv, accS = va(4, 4), va(4, 4), va(4, 4), va(4, 4)
    SENT, ONES = va(4, 4), va(4, 4)
    WMD = va(16, 4)
    WMP = va(8, 2)
    PX, PM = va(4, 4), va(2, 2)
    QK = va(2, 2)
    (vL16, vL8, vMemG, vMemG8, vTw, vTw2, vVst, vRedW, vRedR, vMemW, vPf, vCp, vIdx, vSel, vKm,
     vProg, t0, t1, t2, t3) = [va() for _ in range(20)]
    QF = va(8, 4)
    G_SX, G_SM, G_V = MF, MF + 12, MF + 16
    FD = MF + 16
    FD = QF
    FD = va(16, 4)
    ZD = accS
    L = V_LANE
    WSR = s(S_WS, 4)

    def stamp(i):
        if prof: A(f"s_memtime {s(stamps[i],2)}")

    srd(A, SQ, "wq"); srd(A, SK, "wk"); srd(A, SV_, "wv"); srd(A, SO, "wo")
    A(f"""
    s_mov_b32 {s(sC)}, {s(S_T)}
    s_mul_i32 {s(sLH)}, {s(sC)}, 43
    s_lshr_b32 {s(sLH)}, {s(sLH)}, 7
    s_mul_i32 {s(sT0)}, {s(sLH)}, 3
    s_sub_u32 {s(sP)}, {s(sC)}, {s(sT0)}
    s_lshl_b32 {s(sHead)}, {s(S_X)}, 2
    s_add_u32 {s(sHead)}, {s(sHead)}, {s(sLH)}
    """)
    vSrc, vRd0, vRd1, vRd2, vRd3 = MF, MF + 1, MF + 2, MF + 3, MF + 4
    panel_src_off(A, vSrc, t0, L, 12288)
    A(f"s_lshl_b32 {s(sT0)}, {s(S_W)}, 1")
    panel_rd_addr(A, vRd0, t0, t1, L, s(sT0))
    A(f"v_add_u32 {v(vRd1)}, 40960, {v(vRd0)}")
    A(f"v_add_u32 {v(vRd2)}, 81920, {v(vRd0)}")
    A(f"v_add_u32 {v(vRd3)}, {81920+40960}, {v(vRd0)}")
    A(f"""
    s_mul_i32 {s(sT1)}, {s(sHead)}, 384
    s_lshl_b32 {s(sT0)}, {s(sP)}, 7
    s_add_u32 {s(sT1)}, {s(sT1)}, {s(sT0)}
    s_mul_i32 {s(sT0)}, {s(S_W)}, {160*12288}
    s_add_u32 {s(sT1)}, {s(sT1)}, {s(sT0)}
    s_waitcnt lgkmcnt(0)
    """)
    def dma_qkv(srdreg, buf):
        A(f"s_mov_b32 {s(sT2)}, {s(sT1)}")
        A(f"s_mul_i32 {s(sM0)}, {s(S_W)}, 20480")
        A(f"s_add_u32 {s(sM0)}, {s(sM0)}, {buf*81920}")
        panel_dma(A, srdreg, vSrc, sT2, sM0, 12288, 20)
    def rd_qkv(dst, buf):
        for ks in range(20):
            ad = [[vRd0, vRd1], [vRd2, vRd3]][buf][ks // 10]
            panel_read_frag(A, dst + 4 * ks, ad, (ks % 10) * 4096)
    dma_qkv(SQ, 0); dma_qkv(SK, 1)
    A("s_waitcnt vmcnt(20)\ns_barrier")
    rd_qkv(WQ, 0)
    A("s_waitcnt lgkmcnt(0)\ns_barrier")
    dma_qkv(SV_, 0)
    A("s_waitcnt vmcnt(20)\ns_barrier")
    rd_qkv(WK, 1)
    A("s_waitcnt lgkmcnt(0)\ns_barrier")
    vSrcO = MF + 5; vRo = MF + 6
    panel_src_off(A, vSrcO, t0, L, 0)
    A(f"""
    v_bfe_u32 {v(t0)}, {v(L)}, 3, 2
    v_lshlrev_b32 {v(t0)}, 2, {v(t0)}
    v_bfe_u32 {v(t1)}, {v(L)}, 5, 1
    v_lshl_add_u32 {v(t0)}, {v(t1)}, 1, {v(t0)}
    v_mul_u32_u24 {v(t0)}, 1280, {v(t0)}
    v_add_u32 {v(vSrcO)}, {v(vSrcO)}, {v(t0)}
    """)
    def wo_dma(n0, n1):
        for n in range(n0, n1):
            rows = 64 * (n >> 3) + 32 * ((n >> 2) & 1) + 16 * (n & 1) + ((n >> 1) & 1)
            A(f"""
            s_mov_b32 m0, {s(sM0)}
            s_add_u32 {s(sT0)}, {s(sT2)}, {rows*1280}
            s_add_u32 {s(sM0)}, {s(sM0)}, 1024
            buffer_load_dwordx4 {v(vSrcO)}, {s(SO,4)}, {s(sT0)} offen lds
            """)
    for ct in range(4):
        panel_rd_addr(A, vRo + ct, t0, t1, L, ct)
    A(f"""
    s_mul_i32 {s(sM0)}, {s(S_W)}, 20480
    s_add_u32 {s(sM0)}, {s(sM0)}, 81920
    """)
    for ct in range(4):
        A(f"v_add_u32 {v(vRo+ct)}, {s(sM0)}, {v(vRo+ct)}")
    A(f"""
    s_lshl_b32 {s(sT0)}, {s(S_X)}, 2
    s_add_u32 {s(sT0)}, {s(sT0)}, {s(S_W)}
    s_mul_i32 {s(sT2)}, {s(sT0)}, {192*1280}
    s_min_u32 {s(sT0)}, {s(sC)}, 9
    s_lshl_b32 {s(sT0)}, {s(sT0)}, 7
    s_add_u32 {s(sT2)}, {s(sT2)}, {s(sT0)}
    """)
    wo_dma(0, 20)
    A("s_waitcnt vmcnt(20)\ns_barrier")
    rd_qkv(WV, 0)
    A("s_waitcnt vmcnt(0)")
    for kk in range(5):
        for ct in range(4):
            panel_read_frag(A, WOf(ct, kk), vRo + ct, kk * 4096)
    A("s_waitcnt lgkmcnt(0)")
    A(f"s_sub_u32 {s(sM0)}, {s(sM0)}, 20480")
    wo_dma(20, 24)
    A("s_waitcnt vmcnt(0)")
    for ct in range(4):
        panel_read_frag(A, WOf(ct, 5), vRo + ct, 0)
    A("s_waitcnt lgkmcnt(0)\ns_barrier")

    for i in range(4):
        A(f"v_mov_b32 {v(SENT+i)}, -1\nv_mov_b32 {v(ONES+i)}, 0x3f803f80")
    g_, q_, hb_, fl_ = MF, MF + 1, MF + 2, MF + 3
    A(f"""
    v_lshlrev_b32 {v(vL16)}, 4, {v(L)}
    v_lshlrev_b32 {v(vL8)}, 3, {v(L)}
    s_mul_i32 {s(sT0)}, {s(S_W)}, 2560
    v_add_u32 {v(vMemG)}, {s(sT0)}, {v(vL16)}
    s_add_u32 {s(sT0)}, {s(sT0)}, 2048
    v_add_u32 {v(vMemG8)}, {s(sT0)}, {v(vL8)}
    v_lshrrev_b32 {v(g_)}, 4, {v(L)}
    v_and_b32 {v(q_)}, 7, {v(L)}
    v_bfe_u32 {v(hb_)}, {v(L)}, 3, 1
    v_and_b32 {v(fl_)}, 15, {v(L)}
    v_bfe_u32 {v(t0)}, {v(L)}, 1, 1
    v_mul_u32_u24 {v(t0)}, 0xaaaa, {v(t0)}
    v_add_u32 {v(vIdx)}, 0x4444, {v(t0)}
    v_bfe_u32 {v(t0)}, {v(L)}, 2, 1
    v_mov_b32 {v(vSel)}, 0x05040100
    v_mov_b32 {v(t1)}, 0x03020706
    v_cmp_eq_u32 vcc, 1, {v(t0)}
    v_cndmask_b32 {v(vSel)}, {v(vSel)}, {v(t1)}, vcc
    s_lshl_b32 {s(sT0)}, {s(S_W)}, 9
    s_add_u32 {s(sT0)}, {s(sT0)}, {LDS_T}
    v_lshlrev_b32 {v(t0)}, 5, {v(fl_)}
    v_lshl_add_u32 {v(t0)}, {v(g_)}, 2, {v(t0)}
    v_add_u32 {v(vTw)}, {s(sT0)}, {v(t0)}
    v_lshl_add_u32 {v(vTw2)}, {v(g_)}, 2, {v(vTw)}
    v_add_u32 {v(vTw2)}, {LDS_T2-LDS_T}, {v(vTw2)}
    s_lshl_b32 {s(sT0)}, {s(S_W)}, 8
    v_lshl_add_u32 {v(vVst)}, {v(L)}, 2, {s(sT0)}
    s_lshl_b32 {s(sT0)}, {s(sC)}, 10
    v_add_u32 {v(vMemW)}, {s(sT0)}, {v(vVst)}
    s_lshl_b32 {s(sT0)}, {s(sP)}, 10
    s_lshl_b32 {s(sT1)}, {s(sP)}, 2
    s_add_u32 {s(sT1)}, {s(sT1)}, 3072
    s_cmp_lt_u32 {s(S_W)}, 2
    s_cselect_b32 {s(sSoff)}, {s(sT0)}, {s(sT1)}
    s_add_u32 {s(sT1)}, {s(sT0)}, 4096
    s_cmp_eq_u32 {s(S_W)}, 0
    s_cselect_b32 {s(sRoff)}, {s(sT0)}, {s(sT1)}
    s_cmp_eq_u32 {s(S_W)}, 2
    s_cselect_b32 {s(sRoff)}, 3072, {s(sRoff)}
    v_bfe_u32 {v(t0)}, {v(L)}, 2, 2
    v_lshlrev_b32 {v(t0)}, 1, {v(t0)}
    v_and_b32 {v(t1)}, 1, {v(L)}
    v_add_u32 {v(t0)}, {v(t0)}, {v(t1)}
    v_lshl_add_u32 {v(t0)}, {v(g_)}, 3, {v(t0)}
    v_lshlrev_b32 {v(t0)}, 4, {v(t0)}
    v_add_u32 {v(vKm)}, {s(sT0)}, {v(t0)}
    ; (g*8+q)*16
    v_lshl_add_u32 {v(t2)}, {v(g_)}, 3, {v(q_)}
    v_lshlrev_b32 {v(t2)}, 4, {v(t2)}
    s_lshl_b32 {s(sT0)}, {s(S_W)}, 11
    s_add_u32 {s(sT0)}, {s(sT0)}, {LDS_RED}
    v_add_u32 {v(vRedW)}, {s(sT0)}, {v(t2)}
    s_lshr_b32 {s(sT0)}, {s(S_W)}, 1
    s_lshl_b32 {s(sT0)}, {s(sT0)}, 10
    s_and_b32 {s(sT1)}, {s(S_W)}, 1
    s_lshl_b32 {s(sT1)}, {s(sT1)}, 8
    s_add_u32 {s(sT0)}, {s(sT0)}, {s(sT1)}
    s_add_u32 {s(sT0)}, {s(sT0)}, {LDS_RED}
    v_and_b32 {v(t0)}, 3, {v(L)}
    v_lshlrev_b32 {v(t0)}, 5, {v(t0)}
    v_bfe_u32 {v(t1)}, {v(L)}, 4, 1
    v_lshl_add_u32 {v(t0)}, {v(t1)}, 4, {v(t0)}
    v_bfe_u32 {v(t1)}, {v(L)}, 5, 1
    v_lshl_add_u32 {v(t0)}, {v(t1)}, 3, {v(t0)}
    v_bfe_u32 {v(t1)}, {v(L)}, 2, 1
    v_lshl_add_u32 {v(t0)}, {v(t1)}, 9, {v(t0)}
    v_bfe_u32 {v(t1)}, {v(L)}, 3, 1
    v_lshl_add_u32 {v(t0)}, {v(t1)}, 7, {v(t0)}
    v_add_u32 {v(vRedR)}, {s(sT0)}, {v(t0)}
    ; masks
    s_mov_b32 {s(sMlo)}, 0x00ff00ff
    s_mov_b32 {s(sMlo+1)}, 0x00ff00ff
    s_mov_b32 {s(sMhi)}, 0xff00ff00
    s_mov_b32 {s(sMhi+1)}, 0xff00ff00
    s_cmp_eq_u32 {s(S_W)}, 0
    s_cselect_b64 {s(sMS,2)}, {s(sMlo,2)}, {s(sMhi,2)}
    s_mul_i32 {s(sMemCur)}, {s(S_X)}, 10240
    s_add_u32 {s(sMemCur)}, {s(sMemCur)}, {OFF_MEM}
    s_add_u32 {s(sMemNxt)}, {s(sMemCur)}, {MEM_SLOT}
    s_lshl_b32 {s(sT0)}, {s(S_X)}, 17
    s_add_u32 {s(sT0)}, {s(sT0)}, {OFF_SV}
    s_lshl_b32 {s(sT1)}, {s(sLH)}, 13
    s_add_u32 {s(sSVb)}, {s(sT0)}, {s(sT1)}
    s_lshl_b32 {s(sT1)}, {s(S_W)}, 13
    s_add_u32 {s(sSVgb)}, {s(sT0)}, {s(sT1)}
    s_mul_i32 {s(sKm)}, {s(sHead)}, {64*3072}
    s_add_u32 {s(sKm)}, {s(sKm)}, {OFF_KM}
    s_mul_i32 {s(sKx)}, {s(sHead)}, {64*12288}
    s_add_u32 {s(sKx)}, {s(sKx)}, {OFF_QKV + QKV_MAT}
    s_and_b32 {s(sT0)}, {s(S_W)}, 1
    s_mul_i32 {s(sT0)}, {s(sT0)}, 6144
    s_add_u32 {s(sKx)}, {s(sKx)}, {s(sT0)}
    s_lshl_b32 {s(sT0)}, {s(sP)}, 11
    s_add_u32 {s(sKx)}, {s(sKx)}, {s(sT0)}
    s_lshl_b32 {s(sT0)}, {s(S_X)}, 2
    s_add_u32 {s(sT0)}, {s(sT0)}, {s(S_W)}
    s_mul_i32 {s(sUx)}, {s(sT0)}, {64*40960}
    s_add_u32 {s(sUx)}, {s(sUx)}, {OFF_U}
    s_lshl_b32 {s(sT1)}, {s(sC)}, 12
    s_add_u32 {s(sUx)}, {s(sUx)}, {s(sT1)}
    s_mul_i32 {s(sWm)}, {s(sT0)}, {64*10240}
    s_add_u32 {s(sWm)}, {s(sWm)}, {OFF_WM}
    s_lshl_b32 {s(sT1)}, {s(sC)}, 10
    s_add_u32 {s(sWm)}, {s(sWm)}, {s(sT1)}
    s_lshl_b32 {s(sXPb)}, {s(sC)}, 14
    s_lshl_b32 {s(sT0)}, {s(S_W)}, 11
    s_add_u32 {s(sXPb)}, {s(sXPb)}, {s(sT0)}
    s_add_u32 {s(sXPb)}, {s(sXPb)}, {OFF_XP}
    s_lshl_b32 {s(sT0)}, {s(S_X)}, 8
    v_lshlrev_b32 {v(vPf)}, 2, {v(L)}
    v_add_u32 {v(vPf)}, {s(sT0)}, {v(vPf)}
    s_lshl_b32 {s(sT1)}, {s(sC)}, 4
    s_add_u32 {s(sT0)}, {s(sT0)}, {s(sT1)}
    s_lshl_b32 {s(sT1)}, {s(S_W)}, 2
    s_add_u32 {s(sT0)}, {s(sT0)}, {s(sT1)}
    s_add_u32 {s(sT0)}, {s(sT0)}, {CPROG}
    v_mov_b32 {v(vCp)}, {s(sT0)}
    v_mov_b32 {v(vProg)}, 0
    s_mov_b32 {s(sSeg)}, 0
    """)

    def ensure_prog():
        lp, ok = A.label("cpw"), A.label("cpo")
        A(f"""
        s_mov_b32 {s(sCnt)}, 0
        {lp}:
        v_cmp_gt_u32 vcc, {s(sPf)}, {v(vProg)}
        s_and_b32 vcc_lo, vcc_lo, {PMASK_LO:#x}
        s_and_b32 vcc_hi, vcc_hi, {PMASK_HI:#x}
        s_cmp_eq_u64 vcc, 0
        s_cbranch_scc1 {ok}
        s_sleep 1
        buffer_load_dword {v(vProg)}, {v(vPf)}, {WSR}, 0 offen sc1
        s_add_u32 {s(sCnt)}, {s(sCnt)}, 1
        s_cmp_gt_u32 {s(sCnt)}, {SPIN_LIMIT}
        s_cbranch_scc1 chain_abort
        s_waitcnt vmcnt(0)
        s_branch {lp}
        {ok}:
        """)

    st = 0 if "l2hack" in opt else 1
    def prefetch_k(cls):
        if cls == 0:
            for i in range(2):
                A(f"buffer_load_dwordx4 {v(KX+4*i,4)}, {v(vL16)}, {WSR}, {s(sKx)} offen offset:{i*1024} sc1")
            A(f"s_add_u32 {s(sKx)}, {s(sKx)}, {12288*st}")

    def adv_rec(isW):
        A(f"""
        s_cmp_ge_u32 {s(sSeg)}, 2
        s_cselect_b32 {s(sT1)}, 3072, 0
        s_add_u32 {s(sKm)}, {s(sKm)}, {s(sT1)}
        """)
        if isW:
            A(f"""
            s_cmp_ge_u32 {s(sSeg)}, 2
            s_cselect_b32 {s(sT1)}, 10240, 0
            s_add_u32 {s(sWm)}, {s(sWm)}, {s(sT1)}
            """)

    def step_setup(isW):
        adv_rec(isW)
        A(f"""
        s_add_u32 {s(sSVsz)}, {s(sSVvz)}, {s(sRoff)}
        s_and_b32 {s(sT0)}, {s(sSeg)}, 3
        s_lshl_b32 {s(sT1)}, {s(sT0)}, 15
        s_add_u32 {s(sSVg)}, {s(sSVgb)}, {s(sT1)}
        s_add_u32 {s(sSVgv)}, {s(sSVg)}, 4096
        s_add_u32 {s(sSVvz)}, {s(sSVb)}, {s(sT1)}
        s_add_u32 {s(sSVs)}, {s(sSVvz)}, {s(sSoff)}
        s_lshl_b32 {s(sT2)}, {s(sP)}, 10
        s_add_u32 {s(sSVv)}, {s(sSVvz)}, {s(sT2)}
        s_add_u32 {s(sSVv)}, {s(sSVv)}, 4096
        """)
        if isW:
            A(f"""
            s_mul_i32 {s(sXPr)}, {s(sT0)}, {XP_SLOT}
            s_add_u32 {s(sXPr)}, {s(sXPr)}, {s(sXPb)}
            s_lshl_b32 {s(sT1)}, {s(S_X)}, 8
            s_add_u32 {s(sXPw)}, {s(sXPr)}, {s(sT1)}
            s_xor_b32 {s(sXPz)}, {s(sXPw)}, 8192
            """)
            for i in range(16): A(f"v_mov_b32 {v(WMD+i)}, 0")
        for acc in (accq, acck, accv):
            for i in range(4): A(f"v_mov_b32 {v(acc+i)}, 0")

    def km_st(cls):
        if cls != 2: return []
        return [f"buffer_store_dwordx4 {v(KX,4)}, {v(vKm)}, {WSR}, {s(sKm)} offen",
                f"buffer_store_dwordx4 {v(KX+4,4)}, {v(vKm)}, {WSR}, {s(sKm)} offen offset:512"]
    wm_st = f"buffer_store_dwordx4 {v(ZD,4)}, {v(vL16)}, {WSR}, {s(sWm)} offen"
    def house_b(cls, isW):
        H = []
        if isW:
            H += [f"buffer_load_dwordx4 {v(U+4*i,4)}, {v(vL16)}, {WSR}, {s(sUx)} offen offset:{i*1024} sc1" for i in range(4)]
            H[-1] += f"\ns_add_u32 {s(sUx)}, {s(sUx)}, {40960*st}"
            H += [wm_st]
        H += km_st(cls)
        if cls < 2: H += [f"buffer_store_dwordx4 {v(SENT,4)}, {v(vL16)}, {WSR}, {s(sSVsz)} offen"]
        H += [f"buffer_load_dword {v(vProg)}, {v(vPf)}, {WSR}, 0 offen sc1"]
        return H

    def flag(reg):
        A(f"buffer_store_dword {v(reg)}, {v(vCp)}, {WSR}, 0 offen")

    def spin():
        A(f"s_add_u32 {s(sCnt)}, {s(sCnt)}, 1\ns_cmp_gt_u32 {s(sCnt)}, {SPIN_LIMIT}\ns_cbranch_scc1 chain_abort")

    def mem_loads(P, k0=0):
        Ls = [f"buffer_load_dwordx4 {v(P[0],4)}, {v(vMemG)}, {WSR}, {s(sMemCur)} offen sc1",
              f"buffer_load_dwordx4 {v(P[1],4)}, {v(vMemG)}, {WSR}, {s(sMemCur)} offen offset:1024 sc1",
              f"buffer_load_dwordx2 {v(P[2],2)}, {v(vMemG8)}, {WSR}, {s(sMemCur)} offen sc1"]
        for x in Ls[k0:]: A(x)
    def masked_reload(lb, pieces, tmp):
        for i, (R, n, ld) in enumerate(pieces):
            if n >= 3: A(f"v_max3_u32 {v(tmp)}, {v(R)}, {v(R+1)}, {v(R+2)}")
            else: A(f"v_max_u32 {v(tmp)}, {v(R)}, {v(R+1)}")
            if n == 4: A(f"v_max_u32 {v(tmp)}, {v(tmp)}, {v(R+3)}")
            A(f"v_cmp_eq_u32 vcc, -1, {v(tmp)}\ns_cbranch_vccz {lb}_s{i}\ns_mov_b64 exec, vcc\n{ld}\ns_mov_b64 exec, -1\n{lb}_s{i}:")
    def mem_poll(P, slp):
        lb = A.label("mp")
        a_, b_, c_ = P
        PL = [(a_, 4, f"buffer_load_dwordx4 {v(a_,4)}, {v(vMemG)}, {WSR}, {s(sMemCur)} offen sc1"),
              (b_, 4, f"buffer_load_dwordx4 {v(b_,4)}, {v(vMemG)}, {WSR}, {s(sMemCur)} offen offset:1024 sc1"),
              (c_, 2, f"buffer_load_dwordx2 {v(c_,2)}, {v(vMemG8)}, {WSR}, {s(sMemCur)} offen sc1")]
        if "msl" in optv: A(f"s_sleep {optv['msl']}")
        for x in PL: A(x[2])
        A(f"""
        s_mov_b32 {s(sCnt)}, 0
        {lb}:
        s_waitcnt vmcnt(0)
        ds_write_b128 {v(vMemG)}, {v(a_,4)}
        ds_write_b128 {v(vMemG)}, {v(b_,4)} offset:1024
        ds_write_b64 {v(vMemG8)}, {v(c_,2)}
        v_max3_u32 {v(t0)}, {v(a_)}, {v(a_+1)}, {v(a_+2)}
        v_max3_u32 {v(t1)}, {v(a_+3)}, {v(b_)}, {v(b_+1)}
        v_max3_u32 {v(t0)}, {v(t0)}, {v(b_+2)}, {v(b_+3)}
        v_max3_u32 {v(t1)}, {v(t1)}, {v(c_)}, {v(c_+1)}
        v_max_u32 {v(t0)}, {v(t0)}, {v(t1)}
        v_cmp_eq_u32 vcc, -1, {v(t0)}
        s_cbranch_vccnz {lb}_r
        s_waitcnt lgkmcnt(0)
        s_barrier
        """)
        def retry():
            A(f"{lb}_r:")
            if slp: A(f"s_sleep {slp}")
            masked_reload(lb, PL, t0)
            spin()
            A(f"s_branch {lb}")
        return retry

    def emit_loop(cls, isW):
        tag = f"c{cls}{'w' if isW else 'n'}"
        lp = f"chain_loop_{tag}"
        A(f"chain_pro_{tag}:")
        if isW:
            cl = A.label("cal")
            A(f"""
            s_lshl_b32 {s(sT0)}, {s(S_X)}, 8
            s_add_u32 {s(sXPw)}, {s(sXPb)}, {s(sT0)}
            s_add_u32 {s(sXPw)}, {s(sXPw)}, {3*XP_SLOT}
            s_mov_b32 {s(sCnt)}, 0
            s_mov_b32 {s(sXPr)}, -1
            s_mov_b32 {s(sXPz)}, -1
            {cl}:
            s_waitcnt vmcnt(0)
            s_memtime {s(sC1,2)}
            s_waitcnt lgkmcnt(0)
            buffer_store_dword {v(SENT)}, {v(vXw)}, {WSR}, {s(sXPw)} offen sc1
            s_waitcnt vmcnt(0)
            s_memtime {s(sC2,2)}
            s_waitcnt lgkmcnt(0)
            s_sub_u32 {s(sT0)}, {s(sC2)}, {s(sC1)}
            s_min_u32 {s(sT0)}, {s(sT0)}, {s(sXPr)}
            s_mov_b32 {s(sXPr)}, {s(sXPz)}
            s_mov_b32 {s(sXPz)}, {s(sT0)}
            s_xor_b32 {s(sXPw)}, {s(sXPw)}, 8192
            s_add_u32 {s(sCnt)}, {s(sCnt)}, 1
            s_cmp_lt_u32 {s(sCnt)}, {2*int(optv.get("ncal", 4))}
            s_cbranch_scc1 {cl}
            s_cmp_lt_u32 {s(sXPr)}, {s(sXPz)}
            s_cselect_b32 {s(sT0)}, {8192 if "xfar" in opt else 0}, {0 if "xfar" in opt else 8192}
            s_add_u32 {s(sXPb)}, {s(sXPb)}, {s(sT0)}
            """)
        else:
            A(f"""
            s_sub_u32 {s(sT0)}, {s(sC)}, 10
            s_lshl_b32 {s(sT0)}, {s(sT0)}, 2
            s_add_u32 {s(sT0)}, {s(sT0)}, {s(S_W)}
            s_cmp_lt_u32 {s(sT0)}, 4
            s_cselect_b32 {s(sXPz)}, {16*8192}, {8*8192}
            s_lshl_b32 {s(sXPb)}, {s(sT0)}, 13
            s_lshl_b32 {s(sT0)}, {s(S_X)}, 8
            s_add_u32 {s(sXPb)}, {s(sXPb)}, {s(sT0)}
            s_add_u32 {s(sXPb)}, {s(sXPb)}, {OFF_XP}
            v_lshrrev_b32 {v(t0)}, 4, {v(L)}
            v_lshlrev_b32 {v(t0)}, 11, {v(t0)}
            v_and_b32 {v(t1)}, 15, {v(L)}
            v_lshl_add_u32 {v(vRedW)}, {v(t1)}, 4, {v(t0)}
            """)
        A(f"s_mov_b32 {s(sPf)}, 1\nv_mov_b32 {v(t3)}, 0")
        ensure_prog()
        prefetch_k(cls)
        A(f"s_add_u32 {s(sSVvz)}, {s(sSVb)}, {3<<15}"); step_setup(isW)
        A(f"{lp}:")
        stamp(0)
        cold = [mem_poll((FD, FD + 4, FD + 8), 0 if isW else int(optv.get("nrs", 0)))]
        stamp(1)
        if prof: A(f"s_mov_b32 {s(cnts[0])}, {s(sCnt)}")
        for b in range(10):
            A(f"ds_read_b128 {v(MF+4*b,4)}, {v(vL16)} offset:{LDS_MEM+b*1024}")
        HB = house_b(cls, isW)
        for b in range(10):
            A(f"s_waitcnt lgkmcnt({9-b})")
            A(f"v_smfmac_f32_16x16x64_bf16 {v(accq,4)}, {v(MF+4*b,4)}, {r(WQ+8*b,8)}, {v(vIdx)}")
            A(f"v_smfmac_f32_16x16x64_bf16 {v(acck,4)}, {v(MF+4*b,4)}, {r(WK+8*b,8)}, {v(vIdx)}")
            for _ in range(int(optv.get("hb", 1))):
                if HB: A(HB.pop(0))
        while HB: A(HB.pop(0))
        stamp(2)
        vk = [0]
        def vm(n=1):
            for _ in range(n):
                b = vk[0]
                if b >= 10: return
                A(f"v_smfmac_f32_16x16x64_bf16 {v(accv,4)}, {v(MF+4*b,4)}, {r(WV+8*b,8)}, {v(vIdx)}")
                vk[0] += 1
        vm(2)
        A(f"""
        v_add_f32 {v(accq)}, {v(accq)}, {v(accq+2)}
        v_add_f32 {v(accq+1)}, {v(accq+1)}, {v(accq+3)}
        v_add_f32 {v(acck)}, {v(acck)}, {v(acck+2)}
        v_add_f32 {v(acck+1)}, {v(acck+1)}, {v(acck+3)}
        """)
        vm(1)
        A(f"""
        v_cvt_pk_bf16_f32 {v(QK)}, {v(accq)}, {v(accq+1)}
        v_cvt_pk_bf16_f32 {v(QK+1)}, {v(acck)}, {v(acck+1)}
        ds_write2_b32 {v(vTw)}, {v(QK)}, {v(QK)} offset0:0 offset1:4
        ds_write2_b32 {v(vTw2)}, {v(QK+1)}, {v(QK+1)} offset0:0 offset1:1
        """)
        vm(2)
        A("s_waitcnt lgkmcnt(0)\ns_barrier")
        if cls < 2:
            for i in range(4):
                A(f"ds_read_b64_tr_b16 {v(QF+2*i,2)}, {v(vL8)} offset:{LDS_T+512*i}")
                if cls == 1: A(f"ds_read_b64_tr_b16 {v(KX+2*i,2)}, {v(vL8)} offset:{LDS_T2+512*i}")
        else:
            for i in range(4):
                A(f"ds_read_b64_tr_b16 {v(KX+2*i,2)}, {v(vL8)} offset:{LDS_T2+512*i}")
        vm(3)
        if cls < 2:
            A(f"""
            s_waitcnt lgkmcnt({2 if cls == 0 else 4})
            v_mfma_f32_16x16x32_bf16 {v(accS,4)}, {v(KX,4)}, {v(QF,4)}, 0
            s_waitcnt lgkmcnt(0)
            v_mfma_f32_16x16x32_bf16 {v(accS,4)}, {v(KX+4,4)}, {v(QF+4,4)}, {v(accS,4)}
            """)
            vm(2)
            if cls == 0:
                A(f"""
                s_mov_b64 exec, {s(sMS,2)}
                buffer_store_dwordx4 {v(accS,4)}, {v(vL16)}, {WSR}, {s(sSVs)} offen
                s_mov_b64 exec, -1
                """)
            else:
                A(f"""
                v_cndmask_b32 {v(accS)}, {v(accS)}, {v(accS+1)}, {s(sMhi,2)}
                buffer_store_dword {v(accS)}, {v(vL16)}, {WSR}, {s(sSVs)} offen
                """)
        else:
            vm(2)
        A(f"""
        v_add_f32 {v(accv)}, {v(accv)}, {v(accv+2)}
        v_add_f32 {v(accv+1)}, {v(accv+1)}, {v(accv+3)}
        v_cvt_pk_bf16_f32 {v(t0)}, {v(accv)}, {v(accv+1)}
        v_mov_b32_dpp {v(t1)}, {v(t0)} row_ror:4 row_mask:0xf bank_mask:0xa
        v_mov_b32_dpp {v(t1)}, {v(t0)} row_ror:12 row_mask:0xf bank_mask:0x5
        v_perm_b32 {v(t0)}, {v(t1)}, {v(t0)}, {v(vSel)}
        buffer_store_dword {v(t0)}, {v(vVst)}, {WSR}, {s(sSVv)} offen
        """)
        stamp(3)
        swap_mem = f"""
        s_mov_b32 {s(sT0)}, {s(sMemCur)}
        s_mov_b32 {s(sMemCur)}, {s(sMemNxt)}
        s_mov_b32 {s(sMemNxt)}, {s(sT0)}
        """
        if not isW:
            A(f"""
            s_and_b32 {s(sT0)}, {s(sSeg)}, 3
            s_xor_b32 {s(sT0)}, {s(sT0)}, 2
            s_mul_i32 {s(sT0)}, {s(sT0)}, {XP_SLOT}
            s_add_u32 {s(sT0)}, {s(sT0)}, {s(sXPb)}
            s_add_u32 {s(sT1)}, {s(sT0)}, {8*8192}
            s_add_u32 {s(sT2)}, {s(sT0)}, {s(sXPz)}
            buffer_store_dwordx4 {v(SENT,4)}, {v(vRedW)}, {WSR}, {s(sT0)} offen sc1
            buffer_store_dwordx4 {v(SENT,4)}, {v(vRedW)}, {WSR}, {s(sT1)} offen sc1
            buffer_store_dwordx4 {v(SENT,4)}, {v(vRedW)}, {WSR}, {s(sT2)} offen sc1
            v_mov_b32 {v(t3)}, {s(sSeg)}
            s_add_u32 {s(sSeg)}, {s(sSeg)}, 1
            s_cmp_eq_u32 {s(sSeg)}, {NSEG}
            s_cbranch_scc1 chain_last_{tag}
            s_add_u32 {s(sPf)}, {s(sSeg)}, 1
            s_waitcnt vmcnt(0)
            """)
            flag(t3)
            ensure_prog()
            prefetch_k(cls)
            A(swap_mem)
            step_setup(isW)
            A(f"s_sleep {optv.get('nsl', 16)}\ns_branch {lp}")
            for f in cold: f()
            A(f"chain_last_{tag}:")
            adv_rec(isW)
            A("s_waitcnt lgkmcnt(0)")
            for x in km_st(cls): A(x)
            A(f"v_mov_b32 {v(t3)}, {s(sSeg)}\ns_branch chain_fin")
            return
        gs, gv = A.label("gs"), A.label("gv")
        def vloads():
            for b in range(3):
                A(f"buffer_load_dwordx4 {v(G_V+4*b,4)}, {v(vL16)}, {WSR}, {s(sSVgv)} offen offset:{b*1024} sc1")
        if "gsl" in optv: A(f"s_sleep {optv['gsl']}")
        GL = [(G_SX + 4*p, 4, f"buffer_load_dwordx4 {v(G_SX+4*p,4)}, {v(vL16)}, {WSR}, {s(sSVg)} offen offset:{p*1024} sc1") for p in range(3)]
        GL += [(G_SM, 3, f"buffer_load_dwordx3 {v(G_SM,3)}, {v(vL16)}, {WSR}, {s(sSVg)} offen offset:3072 sc1")]
        GL += [(G_V + 4*b, 4, f"buffer_load_dwordx4 {v(G_V+4*b,4)}, {v(vL16)}, {WSR}, {s(sSVgv)} offen offset:{b*1024} sc1") for b in range(3)]
        for g in GL: A(g[2])
        S0 = FD
        def g_retry():
            A(f"{gs}:")
            masked_reload(gs, GL, t2)
            spin()
            A(f"s_waitcnt vmcnt(0)\ns_branch {gs}_in")
        cold.append(g_retry)
        A(f"""
        s_mov_b32 {s(sCnt)}, 0
        s_waitcnt vmcnt(3)
        {gs}_in:
        v_pk_add_f32 {v(S0,2)}, {v(G_SX,2)}, {v(G_SX+4,2)}
        v_pk_add_f32 {v(S0+2,2)}, {v(G_SX+2,2)}, {v(G_SX+6,2)}
        v_add_f32 {v(S0+4)}, {v(G_SM)}, {v(G_SM+1)}
        v_pk_add_f32 {v(S0,2)}, {v(S0,2)}, {v(G_SX+8,2)}
        v_pk_add_f32 {v(S0+2,2)}, {v(S0+2,2)}, {v(G_SX+10,2)}
        v_add_f32 {v(S0+4)}, {v(S0+4)}, {v(G_SM+2)}
        v_cmp_u_f32 {s(sC3,2)}, {v(S0)}, {v(S0+1)}
        v_cmp_u_f32 {s(sC1,2)}, {v(S0+2)}, {v(S0+3)}
        v_cmp_u_f32 {s(sC2,2)}, {v(S0+4)}, {v(S0+4)}
        v_max3_f32 {v(t0)}, {v(S0)}, {v(S0+1)}, {v(S0+2)}
        s_or_b64 {s(sC1,2)}, {s(sC3,2)}, {s(sC1,2)}
        v_max3_f32 {v(t0)}, {v(t0)}, {v(S0+3)}, {v(S0+4)}
        s_or_b64 {s(sC1,2)}, {s(sC1,2)}, {s(sC2,2)}
        """)
        stamp(4)
        cL = f32bits(SCALE * 1.4426950408889634)
        sm = [f"v_max_f32_dpp {v(t0)}, {v(t0)}, {v(t0)} row_ror:8 row_mask:0xf bank_mask:0xf",
              f"v_mov_b32 {v(t1)}, {v(t0)}",
              f"v_mul_f32 {v(S0)}, {cL}, {v(S0)}",
              f"v_mul_f32 {v(S0+1)}, {cL}, {v(S0+1)}",
              f"v_permlane16_swap_b32 {v(t0)}, {v(t1)}",
              f"v_max_f32 {v(t0)}, {v(t0)}, {v(t1)}",
              f"v_mov_b32 {v(t1)}, {v(t0)}",
              f"v_mul_f32 {v(S0+2)}, {cL}, {v(S0+2)}",
              f"v_mul_f32 {v(S0+3)}, {cL}, {v(S0+3)}",
              f"v_permlane32_swap_b32 {v(t0)}, {v(t1)}",
              f"v_max_f32 {v(t0)}, {v(t0)}, {v(t1)}",
              f"v_mul_f32 {v(S0+4)}, {cL}, {v(S0+4)}",
              f"v_mul_f32 {v(t0)}, {cL}, {v(t0)}"]
        sm += [f"v_sub_f32 {v(S0+i)}, {v(S0+i)}, {v(t0)}" for i in (4, 0, 1, 2, 3)]
        sm += [f"v_exp_f32 {v(S0+i)}, {v(S0+i)}" for i in (4, 0, 1, 2, 3)]
        sm += [f"v_mov_b32_dpp {v(S0+5)}, {v(S0+4)} row_ror:8 row_mask:0xf bank_mask:0xf",
               f"v_cvt_pk_bf16_f32 {v(PX)}, {v(S0)}, {v(S0+1)}",
               f"v_cvt_pk_bf16_f32 {v(PX+1)}, {v(S0+2)}, {v(S0+3)}",
               f"v_cvt_pk_bf16_f32 {v(PM)}, {v(S0+4)}, {v(S0+5)}",
               f"v_mov_b32_dpp {v(PX+2)}, {v(PX)} row_ror:8 row_mask:0xf bank_mask:0xf",
               f"v_mov_b32_dpp {v(PX+3)}, {v(PX+1)} row_ror:8 row_mask:0xf bank_mask:0xf",
               f"v_mov_b32 {v(PM+1)}, {v(PM)}"]
        A(f"""
        s_waitcnt vmcnt(0)
        v_max3_u32 {v(t2)}, {v(G_V)}, {v(G_V+1)}, {v(G_V+2)}
        v_max3_u32 {v(t3)}, {v(G_V+3)}, {v(G_V+4)}, {v(G_V+5)}
        v_max3_u32 {v(t2)}, {v(t2)}, {v(G_V+6)}, {v(G_V+7)}
        v_max3_u32 {v(t3)}, {v(t3)}, {v(G_V+8)}, {v(G_V+9)}
        v_max3_u32 {v(t2)}, {v(t2)}, {v(G_V+10)}, {v(G_V+11)}
        v_max_u32 {v(t2)}, {v(t2)}, {v(t3)}
        v_cmp_eq_u32 vcc, -1, {v(t2)}
        s_or_b64 vcc, vcc, {s(sC1,2)}
        s_cbranch_vccnz {gs}
        """)
        stamp(5)
        if prof: A(f"s_mov_b32 {s(cnts[1])}, {s(sCnt)}")
        wm = []
        for b in range(3):
            for ct in range(4):
                wm.append(f"v_smfmac_f32_16x16x64_bf16 {v(WMD+4*ct,4)}, {v(G_V+4*b,4)}, {r(WOf(ct,2*b),8)}, {v(vIdx)}")
        while wm or sm:
            if wm: A(wm.pop(0))
            for _ in range(2):
                if sm: A(sm.pop(0))
        A(f"v_mfma_f32_16x16x32_bf16 {v(ZD,4)}, {v(ONES,4)}, {v(PX,4)}, 0")
        for ct in range(4):
            A(f"v_cvt_pk_bf16_f32 {v(WMP+2*ct)}, {v(WMD+4*ct)}, {v(WMD+4*ct+1)}")
            A(f"v_cvt_pk_bf16_f32 {v(WMP+2*ct+1)}, {v(WMD+4*ct+2)}, {v(WMD+4*ct+3)}")
            A(f"v_mfma_f32_16x16x32_bf16 {v(FD+4*ct,4)}, {v(U+4*ct,4)}, {v(PX,4)}, 0")
            if ct == 1: A(f"v_mfma_f32_16x16x16_bf16 {v(ZD,4)}, {v(HALF,2)}, {v(PM,2)}, {v(ZD,4)}")
        A(f"s_add_u32 {s(sSeg)}, {s(sSeg)}, 1")
        for ct in range(4):
            A(f"v_mfma_f32_16x16x16_bf16 {v(FD+4*ct,4)}, {v(WMP+2*ct,2)}, {v(PM,2)}, {v(FD+4*ct,4)}")
            if ct == 1: A(f"v_rcp_f32 {v(QK)}, {v(ZD)}")
        A(f"""
        v_mov_b32 {v(QK+1)}, {v(QK)}
        s_cmp_eq_u32 {s(sSeg)}, {NSEG}
        s_cbranch_scc1 chain_last_{tag}
        s_mov_b64 exec, {s(sMlo,2)}
        """)
        for ct in range(4):
            A(f"v_pk_mul_f32 {v(FD+4*ct,2)}, {v(QK,2)}, {v(FD+4*ct,2)}")
            A(f"v_pk_mul_f32 {v(FD+4*ct+2,2)}, {v(QK,2)}, {v(FD+4*ct+2,2)}")
            A(f"ds_write_b128 {v(vRedW)}, {v(FD+4*ct,4)} offset:{ct*512}")
        A(f"""
        s_mov_b64 exec, -1
        s_waitcnt lgkmcnt(0)
        s_barrier
        """)
        RR = QF
        for w in range(4):
            A(f"ds_read_b64 {v(RR+2*w,2)}, {v(vRedR)} offset:{w*2048}")
        XD = MF + 32
        def xloads(X):
            for i in range(2):
                A(f"buffer_load_dwordx4 {v(X+4*i,4)}, {v(vL16)}, {WSR}, {s(sM0)} offen offset:{i*1024} sc1")
        def xcheck(X):
            A(f"""
            v_mfma_f32_16x16x32_bf16 {v(XD,4)}, {v(SELA,4)}, {v(X,4)}, 0
            v_mfma_f32_16x16x32_bf16 {v(XD,4)}, {v(SELA,4)}, {v(X+4,4)}, {v(XD,4)}
            """)
            return f"""
            v_cmp_u_f32 vcc, {v(XD)}, {v(XD+1)}
            v_cvt_pk_bf16_f32 {v(t1)}, {v(XD)}, {v(XD+1)}
            """
        A(f"""
        s_mov_b32 {s(sM0)}, {s(sXPr)}
        s_waitcnt lgkmcnt(2)
        v_pk_add_f32 {v(RR,2)}, {v(RR,2)}, {v(RR+2,2)}
        s_waitcnt lgkmcnt(0)
        v_pk_add_f32 {v(RR+4,2)}, {v(RR+4,2)}, {v(RR+6,2)}
        v_pk_add_f32 {v(QK,2)}, {v(RR,2)}, {v(RR+4,2)}
        v_cvt_pk_bf16_f32 {v(QK)}, {v(QK)}, {v(QK+1)}
        buffer_store_dword {v(QK)}, {v(vXw)}, {WSR}, {s(sXPz)} offen sc1
        buffer_store_dword {v(QK)}, {v(vXw)}, {WSR}, {s(sXPw)} offen sc1
        """)
        stamp(6)
        def wm_pack():
            for ct in range(4):
                A(f"v_add_f32 {v(WMD+4*ct)}, {v(WMD+4*ct)}, {v(WMD+4*ct+2)}")
                A(f"v_add_f32 {v(WMD+4*ct+1)}, {v(WMD+4*ct+1)}, {v(WMD+4*ct+3)}")
                A(f"v_cvt_pk_bf16_f32 {v(ZD+ct)}, {v(WMD+4*ct)}, {v(WMD+4*ct+1)}")
        A(f"""
        s_add_u32 {s(sPf)}, {s(sSeg)}, 1
        s_sub_u32 {s(sT0)}, {s(sSeg)}, 1
        v_mov_b32 {v(t3)}, {s(sT0)}
        buffer_store_dword {v(SENT)}, {v(vMemW)}, {WSR}, {s(sMemCur)} offen
        """)
        flag(t3)
        ensure_prog()
        prefetch_k(cls)
        wm_pack()
        A(swap_mem)
        XL = [(MF + 4*i, 4, f"buffer_load_dwordx4 {v(MF+4*i,4)}, {v(vL16)}, {WSR}, {s(sM0)} offen offset:{i*1024} sc1") for i in range(2)]
        late = "xlate" in opt
        if late: step_setup(isW)
        if "xsl" in optv: A(f"s_sleep {optv['xsl']}")
        xloads(MF)
        if not late: step_setup(isW)
        stamp(7)
        xp = A.label("xp")
        def x_retry():
            A(f"{xp}_r:")
            masked_reload(xp, XL, t0)
            spin()
            A(f"s_branch {xp}")
        cold.append(x_retry)
        A(f"s_mov_b32 {s(sCnt)}, 0\n{xp}:\ns_waitcnt vmcnt(0)")
        A(xcheck(MF))
        A(f"s_cbranch_vccnz {xp}_r")
        A(f"buffer_store_dword {v(t1)}, {v(vMemW)}, {WSR}, {s(sMemCur)} offen")
        stamp(8)
        if prof:
            A(f"""
            s_memrealtime {s(stamps[9],2)}
            s_waitcnt lgkmcnt(0)
            s_mul_i32 {s(sT0)}, {s(S_X)}, 12
            s_add_u32 {s(sT0)}, {s(sT0)}, {s(sC)}
            s_lshl_b32 {s(sT0)}, {s(sT0)}, 2
            s_add_u32 {s(sT0)}, {s(sT0)}, {s(S_W)}
            s_lshl_b32 {s(sT0)}, {s(sT0)}, 12
            s_lshl_b32 {s(sT1)}, {s(sSeg)}, 6
            s_add_u32 {s(sT0)}, {s(sT0)}, {s(sT1)}
            s_add_u32 {s(sT0)}, {s(sT0)}, {OFF_DBG}
            """)
            for i in range(NST):
                A(f"v_writelane_b32 {v(t0)}, {s(stamps[i])}, {i}")
            for i, c_ in enumerate(cnts[:2] + [sCnt]):
                A(f"v_writelane_b32 {v(t0)}, {s(c_)}, {10+i}")
            A(f"v_lshlrev_b32 {v(t2)}, 2, {v(L)}\ns_mov_b64 exec, 0x1fff\nbuffer_store_dword {v(t0)}, {v(t2)}, {WSR}, {s(sT0)} offen\ns_mov_b64 exec, -1")
        A(f"s_branch {lp}")
        for f in cold: f()
        A(f"chain_last_{tag}:")
        adv_rec(isW)
        wm_pack()
        for x in km_st(cls) + [wm_st]: A(x)
        A(f"v_mov_b32 {v(t3)}, {s(sSeg)}\ns_branch chain_fin")

    HALF = va(2, 2)
    vXw = va()
    SELA = va(4, 4)
    A(f"""
    v_and_b32 {v(t0)}, 15, {v(L)}
    v_lshlrev_b32 {v(vXw)}, 2, {v(L)}
    v_and_b32 {v(t1)}, 3, {v(L)}
    v_mov_b32 {v(t2)}, 0
    v_mov_b32 {v(t3)}, 0x3f80
    v_cmp_eq_u32 vcc, 0, {v(t1)}
    v_cndmask_b32 {v(t2)}, {v(t2)}, {v(t3)}, vcc
    v_mov_b32 {v(t3)}, 0x3f800000
    v_cmp_eq_u32 vcc, 1, {v(t1)}
    v_cndmask_b32 {v(t2)}, {v(t2)}, {v(t3)}, vcc
    v_lshrrev_b32 {v(t0)}, 2, {v(t0)}
    v_mov_b32 {v(t3)}, 0
    """)
    for d in range(4):
        A(f"v_cmp_eq_u32 vcc, {d}, {v(t0)}\nv_cndmask_b32 {v(SELA+d)}, {v(t3)}, {v(t2)}, vcc")
    A(f"v_mov_b32 {v(HALF)}, 0x3f803f80\nv_mov_b32 {v(HALF+1)}, 0")
    A(f"""
    s_cmp_lt_u32 {s(sC)}, 10
    s_cbranch_scc0 chain_nw
    s_cmp_lt_u32 {s(S_W)}, 2
    s_cbranch_scc1 chain_pro_c0w
    s_cmp_eq_u32 {s(S_W)}, 2
    s_cbranch_scc1 chain_pro_c1w
    s_branch chain_pro_c2w
    chain_nw:
    s_cmp_lt_u32 {s(S_W)}, 2
    s_cbranch_scc1 chain_pro_c0n
    s_cmp_eq_u32 {s(S_W)}, 2
    s_cbranch_scc1 chain_pro_c1n
    s_branch chain_pro_c2n
    """)
    for isW in (True, False):
        for cls in range(3):
            emit_loop(cls, isW)
    A(f"""
    chain_fin:
    s_waitcnt vmcnt(0)
    """)
    flag(t3)
    A(f"""
    s_endpgm
    chain_abort:
    v_mov_b32 {v(t0)}, 128
    v_mov_b32 {v(t1)}, 1
    s_mov_b64 exec, 1
    buffer_atomic_add {v(t1)}, {v(t0)}, {s(S_DBG,4)}, 0 offen
    s_endpgm
    """)
```

```python
from common import *

def gen_init(A):
    kernel_head(A, "init")
    SW, SM0, SC, SWM = 8, 12, 16, 20
    srd(A, SW, "ws"); srd(A, SM0, "mem0"); srd(A, SC, "c"); srd(A, SWM, "wmod")
    A(f"""
    s_cmp_ge_u32 s2, 64
    s_cbranch_scc1 init_end
    s_lshl_b32 s3, s2, 8
    v_add_u32 v1, s3, v0
    v_lshlrev_b32 v2, 4, v1
    v_mov_b32 v4, -1
    v_mov_b32 v5, -1
    v_mov_b32 v6, -1
    v_mov_b32 v7, -1
    v_mov_b32 v8, 0
    v_mov_b32 v9, 0
    v_mov_b32 v10, 0
    v_mov_b32 v11, 0
    s_waitcnt lgkmcnt(0)
    """)
    for i in range(8):
        A(f"s_mov_b32 s4, {SENT_BEG + i*16384*16}")
        A(f"buffer_store_dwordx4 v[4:7], v2, {s(SW,4)}, s4 offen")
    A(f"""
    s_cmp_ge_u32 s2, 16
    s_cbranch_scc1 init_nf
    buffer_store_dwordx4 v[8:11], v2, {s(SW,4)}, 0 offen
    init_nf:
    s_cmp_ge_u32 s2, 60
    s_cbranch_scc0 init_mod
    s_sub_u32 s5, s2, 60
    s_lshl_b32 s5, s5, 8
    v_add_u32 v1, s5, v0
    v_cmp_gt_u32 vcc, 640, v1
    s_and_b64 exec, exec, vcc
    s_cbranch_execz init_end
    v_lshrrev_b32 v12, 6, v1
    v_lshlrev_b32 v12, 7, v12
    v_bfe_u32 v13, v1, 5, 1
    v_lshlrev_b32 v13, 6, v13
    v_add_u32 v12, v12, v13
    v_bfe_u32 v13, v1, 4, 1
    v_lshlrev_b32 v13, 4, v13
    v_add_u32 v12, v12, v13
    v_bfe_u32 v13, v1, 1, 1
    v_lshlrev_b32 v13, 2, v13
    v_add_u32 v12, v12, v13
    v_bfe_u32 v13, v1, 2, 2
    v_lshlrev_b32 v13, 1, v13
    v_and_b32 v18, 1, v1
    v_add_u32 v13, v13, v18
    v_mul_u32_u24 v13, 1280, v13
    v_add_u32 v12, v12, v13
    buffer_load_dword v14, v12, {s(SM0,4)}, 0 offen
    buffer_load_dword v15, v12, {s(SM0,4)}, 0 offen offset:32
    buffer_load_dword v16, v12, {s(SM0,4)}, 0 offen offset:8
    buffer_load_dword v17, v12, {s(SM0,4)}, 0 offen offset:40
    v_lshlrev_b32 v2, 4, v1
    s_waitcnt vmcnt(0)
    """)
    for x in range(8):
        A(f"s_mov_b32 s4, {OFF_MEM + x*10240}")
        A(f"buffer_store_dwordx4 v[14:17], v2, {s(SW,4)}, s4 offen")
    A("s_branch init_end")
    A(f"""
    init_mod:
    v_lshlrev_b32 v12, 2, v0
    buffer_load_dword v13, v12, {s(SC,4)}, 0 offen
    buffer_load_dword v14, v12, {s(SC,4)}, 0 offen offset:1024
    v_lshrrev_b32 v20, 5, v0
    v_and_b32 v21, 31, v0
    v_mul_u32_u24 v22, {80*7680}, v20
    v_lshlrev_b32 v23, 2, v21
    v_add_u32 v22, v22, v23
    s_lshl_b32 s6, s2, 7
    """)
    for i in range(80):
        A(f"buffer_load_dword v{40+i}, v22, {s(SWM,4)}, s6 offen")
        A(f"s_add_u32 s6, s6, 7680")
    A("s_waitcnt vmcnt(63)\ns_waitcnt vmcnt(63)")
    def silu(src, d0, d1):
        A(f"""
        v_lshlrev_b32 v{d0}, 16, v{src}
        v_and_b32 v{d1}, 0xffff0000, v{src}
        v_mul_f32 v30, 0xbfb8aa3b, v{d0}
        v_mul_f32 v31, 0xbfb8aa3b, v{d1}
        v_exp_f32 v30, v30
        v_exp_f32 v31, v31
        v_add_f32 v30, 1.0, v30
        v_add_f32 v31, 1.0, v31
        v_rcp_f32 v30, v30
        v_rcp_f32 v31, v31
        v_mul_f32 v{d0}, v{d0}, v30
        v_mul_f32 v{d1}, v{d1}, v31
        v_cvt_pk_bf16_f32 v30, v{d0}, v{d1}
        v_lshlrev_b32 v{d0}, 16, v30
        v_and_b32 v{d1}, 0xffff0000, v30
        """)
    silu(13, 24, 25); silu(14, 26, 27)
    A(f"""
    v_lshlrev_b32 v12, 3, v0
    ds_write_b64 v12, v[24:25]
    ds_write_b64 v12, v[26:27] offset:2048
    s_waitcnt lgkmcnt(0)
    s_barrier
    v_mul_u32_u24 v12, 320, v20
    v_mov_b32 v24, 0
    v_mov_b32 v25, 0
    """)
    for i in range(20):
        A(f"ds_read_b128 v[{124+4*i}:{127+4*i}], v12 offset:{16*i}")
    A("s_waitcnt vmcnt(0) lgkmcnt(0)")
    for i in range(80):
        A(f"""
        v_lshlrev_b32 v26, 16, v{40+i}
        v_and_b32 v27, 0xffff0000, v{40+i}
        v_fmac_f32 v24, v26, v{124+i}
        v_fmac_f32 v25, v27, v{124+i}
        """)
    A(f"""
    v_lshlrev_b32 v12, 3, v0
    ds_write_b64 v12, v[24:25] offset:4096
    s_waitcnt lgkmcnt(0)
    s_barrier
    v_cmp_gt_u32 vcc, 32, v0
    s_and_b64 exec, exec, vcc
    s_cbranch_execz init_end
    """)
    for i in range(8):
        A(f"ds_read_b64 v[{40+2*i}:{41+2*i}], v12 offset:{4096+256*i}")
    A("s_waitcnt lgkmcnt(0)")
    for i in range(1, 8):
        A(f"v_add_f32 v40, v40, v{40+2*i}\nv_add_f32 v41, v41, v{41+2*i}")
    A(f"""
    v_cvt_pk_bf16_f32 v30, v40, v41
    v_lshlrev_b32 v40, 16, v30
    v_and_b32 v41, 0xffff0000, v30
    s_lshl_b32 s6, s2, 8
    s_add_u32 s6, s6, {OFF_MOD}
    buffer_store_dwordx2 v[40:41], v12, {s(SW,4)}, s6 offen
    init_end:
    s_endpgm
    """)
```

```python
import sys
from common import *
from k_init import gen_init
import k_chain
from k_chain import S_WS, S_DBG, S_X, S_W, S_T, V_LANE

def main_prologue(A, label):
    kernel_head(A, label)
    srd(A, S_WS, "ws"); srd(A, S_DBG, "dbg")
    A(f"""
    s_getreg_b32 {s(S_X)}, hwreg(HW_REG_XCC_ID)
    s_and_b32 {s(S_X)}, {s(S_X)}, 7
    v_and_b32 {v(V_LANE)}, 63, v0
    v_lshrrev_b32 v2, 6, v0
    v_readfirstlane_b32 {s(S_W)}, v2
    v_mov_b32 v3, 1
    s_lshl_b32 s3, {s(S_X)}, 2
    v_mov_b32 v4, s3
    v_mov_b32 v5, 0
    s_waitcnt lgkmcnt(0)
    v_cmp_eq_u32 vcc, 0, v0
    s_and_b64 exec, exec, vcc
    s_cbranch_execz {label}_tk
    buffer_atomic_add v3, v4, {s(S_DBG,4)}, 0 offen sc0
    s_waitcnt vmcnt(0)
    ds_write_b32 v5, v3
    s_waitcnt lgkmcnt(0)
    {label}_tk:
    s_mov_b64 exec, -1
    s_barrier
    ds_read_b32 v3, v5
    s_waitcnt lgkmcnt(0)
    v_readfirstlane_b32 {s(S_T)}, v3
    s_barrier
    """)

def build(roles=("chain",), prof=False, launches=None, opt=()):
    A = Asm()
    gen_init(A)
    main_prologue(A, "main")
    A(f"s_cmp_lt_u32 {s(S_T)}, 12\ns_cbranch_scc1 role_chain\ns_endpgm\nrole_chain:")
    k_chain.gen_chain(A, prof=prof, opt=opt)
    head = ""
    head += "; @launch kernel=init_kernel grid=(64,1,1) block=(256,1,1) lds=8192\n"
    head += "; @launch kernel=main_kernel grid=(256,1,1) block=(256,1,1) lds=163840\n"
    head += '.amdgcn_target "amdgcn-amd-amdhsa--gfx950"\n.text\n'
    tail = '.section .rodata,"a"\n' + kernel_desc("init", 256, 256) + kernel_desc("main", 512, 256)
    return head + A.text() + tail

if __name__ == "__main__":
    t = build(prof="prof" in sys.argv, opt=sys.argv[2:])
    open(sys.argv[1], "w").write(t)
    print(len(t), "bytes")
```

```python
import re

def v(i, n=1): return f"v{i}" if n == 1 else f"v[{i}:{i+n-1}]"
def a(i, n=1): return f"a{i}" if n == 1 else f"a[{i}:{i+n-1}]"
def s(i, n=1): return f"s{i}" if n == 1 else f"s[{i}:{i+n-1}]"
def r(i, n=1):
    if i >= 256:
        return a(i - 256, n)
    assert i + n <= 256
    return v(i, n)

_reg = re.compile(r"^(-?\|?)([vas])(\d+)\|?$")
_rng = re.compile(r"^(-?\|?)([vas])\[(\d+):(\d+)\]\|?$")
SPECIAL = {"vcc": [("s", 106), ("s", 107)], "vcc_lo": [("s", 106)], "vcc_hi": [("s", 107)],
           "exec": [("s", 126), ("s", 127)], "exec_lo": [("s", 126)], "exec_hi": [("s", 127)],
           "m0": [("s", 124)]}

def regs_of(tok):
    tok = tok.strip()
    if tok in SPECIAL: return list(SPECIAL[tok])
    m = _reg.match(tok)
    if m: return [(m.group(2), int(m.group(3)))]
    m = _rng.match(tok)
    if m: return [(m.group(2), i) for i in range(int(m.group(3)), int(m.group(4)) + 1)]
    return []

TRANS = ("v_exp_f32", "v_log_f32", "v_rcp_f32", "v_rsq_f32", "v_sqrt_f32", "v_sin_f32", "v_cos_f32", "v_rcp_iflag_f32")

class Ins:
    __slots__ = ("text", "op", "kind", "dst", "src", "extra", "nops", "label", "target")
    def __init__(self, text):
        self.text = text; self.nops = 0; self.label = None; self.target = None
        self.dst = []; self.src = []; self.extra = {}
        t = text.split(";")[0].strip()
        if t.endswith(":"):
            self.kind = "label"; self.label = t[:-1]; self.op = ""; return
        if not t or t.startswith("."):
            self.kind = "dir"; self.op = ""; return
        parts = t.split(None, 1)
        op = parts[0]; self.op = op
        rest = parts[1] if len(parts) > 1 else ""
        rest = re.sub(r"(quad_perm|op_sel|op_sel_hi|neg_lo|neg_hi):\[[^\]]*\]", lambda m: m.group(1) + ":x", rest)
        ops = [x.strip() for x in rest.split(",")] if rest else []
        mods = ""
        if ops:
            lastp = ops[-1].split(None, 1)
            ops[-1] = lastp[0]
            mods = lastp[1] if len(lastp) > 1 else ""
        R = [regs_of(o) for o in ops]
        flat = lambda L: [x for l in L for x in l]
        base = re.sub(r"_(e32|e64|dpp|sdwa)$", "", op)
        if op.startswith("v_mfma") or op.startswith("v_smfmac"):
            self.kind = "mfma"
            self.dst = R[0]
            passes = 8 if "32x32" in op else 4
            if op.startswith("v_smfmac"):
                self.extra = dict(ab=R[1] + R[2] + R[3], c=R[0], passes=passes)
            else:
                self.extra = dict(ab=R[1] + R[2], c=R[3], passes=passes)
            self.src = self.extra["ab"] + self.extra["c"]
        elif op.startswith("v_"):
            self.kind = "valu"
            dpp = op.endswith("_dpp") or any(k in mods for k in ("row_", "quad_perm", "wave_"))
            self.extra["dpp"] = dpp
            self.extra["trans"] = base in TRANS
            self.extra["opsel"] = ("op_sel" in mods and not base.startswith("v_pk_")) or op.endswith("_sdwa")
            if base.startswith("v_permlane") and "swap" in base or base == "v_swap_b32":
                self.dst = R[0] + R[1]; self.src = R[0] + R[1]
                self.extra["perm"] = base.startswith("v_permlane")
            elif base.startswith("v_cmpx"):
                raise ValueError("v_cmpx not supported")
            elif base.startswith("v_cmp"):
                self.dst = R[0]; self.src = flat(R[1:])
            elif base in ("v_add_co_u32", "v_sub_co_u32", "v_subrev_co_u32"):
                self.dst = R[0] + R[1]; self.src = flat(R[2:])
            elif base in ("v_addc_co_u32", "v_subb_co_u32"):
                self.dst = R[0] + R[1]; self.src = flat(R[2:])
            elif base in ("v_readfirstlane_b32", "v_readlane_b32"):
                self.dst = R[0]; self.src = flat(R[1:]); self.extra["rl"] = True
                self.extra["lanesel"] = R[2] if len(R) > 2 else []
            elif base == "v_writelane_b32":
                self.dst = R[0]; self.src = flat(R[1:]) + R[0]; self.extra["lanesel"] = R[2]
            elif base == "v_nop":
                pass
            else:
                self.dst = R[0]; self.src = flat(R[1:])
                if base.startswith("v_fmac") or base.startswith("v_mac") or base.startswith("v_pk_fmac") or base.startswith("v_dot2c") or dpp:
                    self.src = self.src + R[0]
                if base == "v_cndmask_b32" and len(ops) == 3:
                    self.src = self.src + SPECIAL["vcc"]
        elif op.startswith("ds_"):
            self.kind = "ds"
            if op.startswith("ds_read") or op.startswith("ds_bpermute") or op.startswith("ds_permute") or op.startswith("ds_swizzle") or "_rtn" in op:
                self.dst = R[0]; self.src = flat(R[1:])
            else:
                self.src = flat(R)
        elif op.startswith("buffer_") or op.startswith("global_"):
            self.kind = "vmem"
            lds = bool(re.search(r"\blds\b", mods))
            self.extra["lds"] = lds
            if "load" in op and not lds:
                self.dst = R[0]; self.src = flat(R[1:])
            elif "load" in op:
                self.src = flat(R) + SPECIAL["m0"]
            elif "atomic" in op:
                self.src = flat(R)
                if re.search(r"\bsc0\b", mods): self.dst = R[0]
            else:
                self.src = flat(R)
                if op.endswith("x3") or op.endswith("x4"):
                    self.extra["wide"] = R[0] if op.startswith("buffer_") else R[1]
        elif op.startswith("s_"):
            self.kind = "salu"
            if op in ("s_branch",) or op.startswith("s_cbranch"):
                self.kind = "branch"; self.target = ops[0]
            elif op == "s_nop":
                self.kind = "nop"; self.extra["n"] = int(ops[0], 0) + 1
            elif op == "s_endpgm":
                self.kind = "end"
            elif op.startswith("s_cmp") or op.startswith("s_bitcmp") or op in ("s_waitcnt", "s_barrier", "s_sleep", "s_setprio", "s_setreg_b32", "s_sethalt"):
                self.src = flat(R)
            else:
                self.dst = R[0] if R else []; self.src = flat(R[1:])
        else:
            raise ValueError("unknown instruction: " + text)

BIG = 1000
class State:
    def __init__(self): self.ev = {}
    def copy(self):
        n = State(); n.ev = dict(self.ev); return n
    def tick(self, n):
        self.ev = {k: (x[0] + n, x[1]) for k, x in self.ev.items() if x[0] + n < 24}
    def merge(self, o):
        ch = False
        for k, x in o.ev.items():
            if k not in self.ev or self.ev[k][0] > x[0]:
                self.ev[k] = x; ch = True
            elif self.ev[k][0] == x[0] and self.ev[k][1] != x[1] and self.ev[k][1] is not None:
                self.ev[k] = (x[0], None); ch = True
        return ch
    def age(self, e, reg): return self.ev.get((e, reg), (BIG, None))[0]
    def info(self, e, reg): return self.ev.get((e, reg), (BIG, None))[1]

MF_RAW = {4: 8, 8: 12}; MF_COV = {4: 6, 8: 10}; MF_WARC = {4: 3, 8: 7}

def need(ins, st):
    n = 0
    def req(e, reg, d):
        nonlocal n
        ag = st.age(e, reg)
        if ag < d: n = max(n, d - ag)
    k = ins.kind
    vsrc = [x for x in ins.src if x[0] in "va"]; vdst = [x for x in ins.dst if x[0] in "va"]
    ssrc = [x for x in ins.src if x[0] == "s"]
    if k == "mfma":
        for x in vsrc: req("valu", x, 2)
        for x in vsrc + vdst: req("dl", x, 3)
        for p in (4, 8):
            for x in ins.extra["ab"]: req(f"mf{p}", x, MF_RAW[p])
            c = ins.extra["c"]
            for x in c:
                if st.age(f"mf{p}", x) < BIG:
                    same = st.info(f"mf{p}", x) == (ins.op, tuple(c)) and p == ins.extra["passes"]
                    if not same: req(f"mf{p}", x, MF_COV[p])
            if tuple(ins.dst) != tuple(c):
                for x in ins.dst: req(f"mf{p}", x, MF_COV[p])
    elif k == "valu":
        for p in (4, 8):
            for x in vsrc + vdst: req(f"mf{p}", x, MF_RAW[p])
            for x in vdst: req(f"mc{p}", x, MF_WARC[p])
        for x in vdst: req("wide", x, 2)
        if ins.extra.get("dpp") or ins.extra.get("perm"):
            for x in vsrc: req("valu", x, 2)
        if ins.extra.get("rl"):
            for x in vsrc: req("valu", x, 1)
        for x in ins.extra.get("lanesel", []): req("vsg", x, 4)
        for x in ssrc: req("vsg", x, 2)
        if not ins.extra.get("trans"):
            for x in vsrc: req("trans", x, 1)
        for x in vsrc + vdst: req("opsel", x, 1)
        for x in vsrc + vdst:
            if not (ins.op.startswith("v_dot") and x in vdst and st.info("dl", x) == ins.op and vsrc.count(x) <= 1): req("dl", x, 3)
    elif k in ("ds", "vmem"):
        for p in (4, 8):
            for x in vsrc + vdst: req(f"mf{p}", x, MF_RAW[p])
            for x in vdst: req(f"mc{p}", x, MF_WARC[p])
        for x in vdst: req("wide", x, 1)
        for x in vsrc: req("trans", x, 1)
        for x in vsrc + vdst: req("dl", x, 3)
        if k == "vmem":
            for x in ssrc: req("vsg", x, 5)
            if ins.extra.get("lds"): req("m0", ("s", 124), 1)
    elif k in ("salu", "branch"):
        for x in ssrc: req("vsg", x, 1)
    return n

def apply(ins, st):
    k = ins.kind
    if k == "nop":
        st.tick(ins.extra["n"]); return
    st.tick(1)
    if k == "mfma":
        p = ins.extra["passes"]
        for x in ins.dst:
            st.ev[(f"mf{p}", x)] = (0, (ins.op, tuple(ins.dst))); st.ev.pop(("valu", x), None)
        for x in ins.extra["c"]: st.ev[(f"mc{p}", x)] = (0, None)
    elif k == "valu":
        for x in ins.dst:
            if x[0] == "s": st.ev[("vsg", x)] = (0, None)
            else:
                st.ev[("valu", x)] = (0, None)
                if ins.extra.get("trans"): st.ev[("trans", x)] = (0, None)
                if ins.extra.get("opsel"): st.ev[("opsel", x)] = (0, None)
                if ins.op.startswith("v_dot"): st.ev[("dl", x)] = (0, ins.op)
    elif k == "vmem":
        for x in ins.extra.get("wide", []): st.ev[("wide", x)] = (0, None)
    elif k == "salu":
        if ("s", 124) in ins.dst: st.ev[("m0", ("s", 124))] = (0, None)

def fix_hazards(lines):
    I = [Ins(t) for t in lines]
    entry = {}
    for it in range(12):
        changed = False
        st = State(); live = True
        for ins in I:
            if ins.kind == "label":
                if not live: st = State()
                if ins.label in entry: st.merge(entry[ins.label])
                live = True
                continue
            if ins.kind == "dir": continue
            if ins.nops: st.tick(ins.nops)
            n = need(ins, st)
            if n > 0:
                ins.nops += n; st.tick(n); changed = True
            apply(ins, st)
            if ins.kind == "branch":
                e = entry.setdefault(ins.target, State())
                if e.merge(st): changed = True
                if ins.op == "s_branch": live = False
            if ins.kind == "end": live = False
        if not changed: break
    out = []
    for ins in I:
        n = ins.nops
        while n > 0:
            k = min(n, 16); out.append(f"  s_nop {k-1}"); n -= k
        out.append(ins.text)
    return out

class Asm:
    def __init__(self):
        self.lines = []; self._n = 0
    def __call__(self, text):
        for t in text.split("\n"):
            t = t.strip()
            if t: self.lines.append(("" if t.endswith(":") or t.startswith(".") else "  ") + t)
    def label(self, p="L"):
        self._n += 1; return f"{p}_{self._n}"
    def text(self): return "\n".join(fix_hazards(self.lines)) + "\n"
```

```python
from asmlib import *

NAME = "adaLN_cond__memory_aug_recurrent_mem_tr__moe_arch_mod__prompt"
OFF_FLAGS = 0x0
PPROG = OFF_FLAGS + 0x0000
CPROG = OFF_FLAGS + 0x1000
HPROG = OFF_FLAGS + 0x2000
SPROG = OFF_FLAGS + 0x3000
MPROG = OFF_FLAGS + 0x5000
FLAGS_BYTES = 0x10000
OFF_MOD = 0x10000
OFF_MEM = 0x20000
MEM_SLOT = 8 * 10240
OFF_SV = 0x60000
OFF_SV2 = 0x340000
SV_SLOT = 36864
SV_X = 4 * SV_SLOT
OFF_XP = 0x1000000
XP_SLOT = 10 * 2 * 4 * 8 * 256
XPN = [1]
OFF_TF = 0x1100000
SENT_BEG = OFF_MEM + MEM_SLOT
SENT_END = OFF_XP + 4 * XP_SLOT
OFF_H = 0xEC00000
H_X = 2048 * 1280
OFF_X1 = 0x500000
OFF_H2 = 0x800000
OFF_R = 0x200000
OFF_ACT = 0xB10000
OFF_DBG = 0xC00000
OFF_AFL = 0x210000
OFF_DUMMY = 0x230000
OFF_YP = 0x238000
SENT_CHUNKS = 10
OFF_RING = 0x4000000
RING_X = 0x400000
QS = 3 * 4 * 12288
QKV_MAT = 4 * 12288
R4 = 8 * QS
R_U = R4
R_WM = R_U + 4 * 40960
R_KM = R_WM + 4 * 10240
R_PT = R_KM + 4 * 3072
R_PM = R_PT + 4 * 2048
S4 = R_PM + 2048 - R4
RING_BYTES = R4 + 4 * S4
R5_KM = 4 * QS; R5_PT = R5_KM + 4 * 3072; R5_PM = R5_PT + 4 * 2048; S5 = 24576
import os
HLOC = int(os.environ.get('HLOC', 24))
OFF_AOP = 0xD800000
WS_BYTES = 268435456

KA = dict(x=0, mem0=8, wq=16, wk=24, wv=32, wo=40, wr=64, wg=72, wu=80, wd=88, c=96, wmod=104, out=112, dbg=120, ws=128)
SZ = dict(x=2048*640*2, mem0=8*640*2, wq=640*6144*2, wk=640*6144*2, wv=640*6144*2, wo=6144*640*2, wr=1280,
          wg=640*1536*2, wu=640*1536*2, wd=1536*640*2, c=1280, wmod=640*3840*2, out=2048*640*2, dbg=256, ws=WS_BYTES)

def srd(A, sreg, name):
    A(f"s_load_dwordx2 {s(sreg,2)}, s[0:1], {KA[name]}")
    A(f"s_mov_b32 {s(sreg+2)}, {SZ[name]}")
    A(f"s_mov_b32 {s(sreg+3)}, 0x00020000")

def kernel_head(A, label):
    A(f".globl {label}_kernel\n.p2align 8\n.type {label}_kernel,@function\n{label}_kernel:")

def kernel_desc(label, vgpr=512, accum=256, sgpr=102):
    return f""".p2align 6
.amdhsa_kernel {label}_kernel
  .amdhsa_next_free_vgpr {vgpr}
  .amdhsa_next_free_sgpr {sgpr}
  .amdhsa_accum_offset {accum}
  .amdhsa_group_segment_fixed_size 0
  .amdhsa_kernarg_size 136
  .amdhsa_user_sgpr_count 2
  .amdhsa_user_sgpr_kernarg_segment_ptr 1
  .amdhsa_system_sgpr_workgroup_id_x 1
.end_amdhsa_kernel
"""

class Alloc:
    def __init__(self, lo, hi): self.p = lo; self.hi = hi
    def __call__(self, n=1, al=None):
        al = al or (2 if n >= 2 else 1)
        self.p = (self.p + al - 1) // al * al
        x = self.p; self.p += n
        assert self.p <= self.hi, f"register overflow {self.p} > {self.hi}"
        return x

SPIN_LIMIT = 1 << 16

def panel_src_off(A, vdst, vtmp, vlane, stride):
    A(f"v_lshrrev_b32 {v(vtmp)}, 4, {v(vlane)}")
    A(f"v_and_b32 {v(vtmp)}, 3, {v(vtmp)}")
    A(f"v_lshlrev_b32 {v(vtmp)}, 1, {v(vtmp)}")
    A(f"v_and_b32 {v(vdst)}, 7, {v(vlane)}")
    A(f"v_xor_b32 {v(vdst)}, {v(vdst)}, {v(vtmp)}")
    A(f"v_lshlrev_b32 {v(vdst)}, 4, {v(vdst)}")
    A(f"v_lshrrev_b32 {v(vtmp)}, 3, {v(vlane)}")
    A(f"v_mul_u32_u24 {v(vtmp)}, {stride}, {v(vtmp)}")
    A(f"v_add_u32 {v(vdst)}, {v(vdst)}, {v(vtmp)}")

def panel_dma(A, srdreg, voff, ssoff, sm0, stride, ninstr):
    for i in range(ninstr):
        A(f"s_mov_b32 m0, {s(sm0)}")
        A(f"s_add_u32 {s(sm0)}, {s(sm0)}, 1024")
        A(f"buffer_load_dwordx4 {v(voff)}, {s(srdreg,4)}, {s(ssoff)} offen lds")
        A(f"s_add_u32 {s(ssoff)}, {s(ssoff)}, {8*stride}")

def panel_rd_addr(A, vdst, vt1, vt2, vlane, tile):
    A(f"v_lshrrev_b32 {v(vt1)}, 2, {v(vlane)}")
    A(f"v_lshrrev_b32 {v(vt2)}, 1, {v(vt1)}")
    A(f"v_and_b32 {v(vt2)}, 3, {v(vt2)}")
    A(f"v_lshlrev_b32 {v(vt2)}, 1, {v(vt2)}")
    A(f"v_bfe_u32 {v(vdst)}, {v(vlane)}, 1, 1")
    t2 = 2 * tile if isinstance(tile, int) else tile
    A(f"v_add_u32 {v(vdst)}, {t2}, {v(vdst)}")
    A(f"v_xor_b32 {v(vdst)}, {v(vdst)}, {v(vt2)}")
    A(f"v_lshlrev_b32 {v(vdst)}, 4, {v(vdst)}")
    A(f"v_lshlrev_b32 {v(vt1)}, 7, {v(vt1)}")
    A(f"v_add_u32 {v(vdst)}, {v(vdst)}, {v(vt1)}")
    A(f"v_and_b32 {v(vt1)}, 1, {v(vlane)}")
    A(f"v_lshlrev_b32 {v(vt1)}, 3, {v(vt1)}")
    A(f"v_add_u32 {v(vdst)}, {v(vdst)}, {v(vt1)}")

def panel_read_frag(A, dst, vaddr, off):
    assert off + 2048 < 65536
    A(f"ds_read_b64_tr_b16 {r(dst,2)}, {v(vaddr)} offset:{off}")
    A(f"ds_read_b64_tr_b16 {r(dst+2,2)}, {v(vaddr)} offset:{off+2048}")

S_WS, S_DBG, S_X, S_W, S_T = 8, 12, 16, 17, 18
V_LANE = 1
import struct
def f32bits(x): return "0x%08x" % struct.unpack("<I", struct.pack("<f", x))[0]

def wave_sum(A, xs, ts, op="add"):
    for r_ in (8, 4, 2, 1):
        for x in xs: A(f"v_{op}_f32_dpp {v(x)}, {v(x)}, {v(x)} row_ror:{r_} row_mask:0xf bank_mask:0xf")
    for sw in (16, 32):
        for x, t in zip(xs, ts): A(f"v_mov_b32 {v(t)}, {v(x)}")
        for x, t in zip(xs, ts): A(f"v_permlane{sw}_swap_b32 {v(x)}, {v(t)}")
        for x, t in zip(xs, ts): A(f"v_{op}_f32 {v(x)}, {v(x)}, {v(t)}")

def unpack(A, d, src):
    A(f"v_lshlrev_b32 {v(d)}, 16, {v(src)}\nv_and_b32 {v(d+1)}, 0xffff0000, {v(src)}")
def round2(A, d, t):
    A(f"v_cvt_pk_bf16_f32 {v(t)}, {v(d)}, {v(d+1)}"); unpack(A, d, t)

def poll_ge(A, vreg, vaddr, sneed, mask, scnt, abort, slp=2, soff="0", first=True, ty="u32"):
    lp, ok, ck = A.label("pw"), A.label("po"), A.label("pc")
    A(f"s_mov_b32 {s(scnt)}, 0")
    if not first: A(f"s_branch {ck}")
    A(f"""
    {lp}:
    buffer_load_dword {v(vreg)}, {v(vaddr)}, {s(S_WS,4)}, {soff} offen sc1
    s_add_u32 {s(scnt)}, {s(scnt)}, 1
    s_cmp_gt_u32 {s(scnt)}, {SPIN_LIMIT}
    s_cbranch_scc1 {abort}
    s_waitcnt vmcnt(0)
    {ck}:
    v_cmp_gt_{ty} vcc, {sneed}, {v(vreg)}
    s_and_b32 vcc_lo, vcc_lo, {mask & 0xffffffff:#x}
    s_and_b32 vcc_hi, vcc_hi, {mask >> 32:#x}
    s_cmp_eq_u64 vcc, 0
    s_cbranch_scc1 {ok}
    s_sleep {slp}
    s_branch {lp}
    {ok}:
    """)


class Cnt:
    def __init__(self, A, name, mx): self.A = A; self.name = name; self.mx = mx; self.q = []
    def issue(self, text, tag=None):
        self.A(text); self.q.append(tag)
    def note(self, tag=None): self.q.append(tag)
    def after(self, tag):
        idx = [i for i, t in enumerate(self.q) if t == tag]
        if not idx: return None
        return len(self.q) - 1 - idx[-1]
    def wait(self, tag):
        n = self.after(tag)
        if n is None: return
        if n <= self.mx: self.A(f"s_waitcnt {self.name}({n})")
        else:
            n = self.mx; self.A(f"s_waitcnt {self.name}({n})")
        self.q = self.q[len(self.q) - n:] if n else []
    def clear(self): self.q = []

OFF_DBG2 = 0x3800000
class Prof:
    def __init__(self, A, on, sa, n):
        self.A = A; self.on = on; self.n = n
        if on:
            self.st = [sa(2, 2) for _ in range(n)]; self.so = sa()
            A(f"""
            s_lshl_b32 {s(self.so)}, {s(S_X)}, 5
            s_add_u32 {s(self.so)}, {s(self.so)}, {s(S_T)}
            s_lshl_b32 {s(self.so)}, {s(self.so)}, 2
            s_add_u32 {s(self.so)}, {s(self.so)}, {s(S_W)}
            s_lshl_b32 {s(self.so)}, {s(self.so)}, 13
            s_add_u32 {s(self.so)}, {s(self.so)}, {OFF_DBG2}
            """)
    def stamp(self, i, real=False):
        if self.on: self.A(f"s_mem{'real' if real else ''}time {s(self.st[i],2)}")
    def dump(self, t0, t1):
        if not self.on: return
        self.A("s_waitcnt lgkmcnt(0)")
        for i in range(self.n): self.A(f"v_writelane_b32 {v(t0)}, {s(self.st[i])}, {i}")
        self.A(f"""
        v_lshlrev_b32 {v(t1)}, 2, {v(V_LANE)}
        s_mov_b64 exec, {(1 << self.n) - 1:#x}
        buffer_store_dword {v(t0)}, {v(t1)}, {s(S_WS,4)}, {s(self.so)} offen
        s_mov_b64 exec, -1
        s_add_u32 {s(self.so)}, {s(self.so)}, 64
        """)

PROF_ON = [False]
def ev(A, k, va_=254, src=4):
    if not PROF_ON[0]: return
    A(f"""
    s_memrealtime s[4:5]
    s_lshl_b32 s6, {s(S_X)}, 5
    s_add_u32 s6, s6, {s(S_T)}
    s_lshl_b32 s6, s6, 2
    s_add_u32 s6, s6, {s(S_W)}
    s_lshl_b32 s6, s6, 13
    s_add_u32 s6, s6, {OFF_DBG2 + 127*64 + 4*k}
    s_waitcnt lgkmcnt(0)
    v_mov_b32 {v(va_)}, s{src}
    v_mov_b32 {v(va_+1)}, s6
    s_mov_b64 s[4:5], exec
    s_mov_b64 exec, 1
    buffer_store_dword {v(va_)}, {v(va_+1)}, {s(S_WS,4)}, 0 offen
    s_mov_b64 exec, s[4:5]
    s_waitcnt vmcnt(0)
    """)
```

```python
from common import *
from k_boot import *

LDS_MEM, LDS_T, LDS_T2, LDS_H, LDS_KR, LDS_PROF = 0, 10240, 12288, 16384, 65536, 131072

class CProf:
    def __init__(self, A, on, sa, names, vL4, vL16, sSeg, T):
        self.A = A; self.on = on; self.names = names; self.vL4 = vL4; self.vL16 = vL16; self.sSeg = sSeg; self.T = T
        if on:
            self.st = [sa(2, 2) for _ in range(10)]; self.cn = [sa() for _ in range(3)]
            for c in self.cn: A(f"s_mov_b32 {s(c)}, 0")
    def stamp(self, n):
        if self.on and str(n) in self.names: self.A(f"s_memtime {s(self.st[self.names.index(str(n))],2)}")
    def cnt(self, i, src):
        if self.on: self.A(f"s_mov_b32 {s(self.cn[i])}, {s(src)}")
    def dump(self, d=0, s8=False):
        if not self.on: return
        A = self.A; t0, t1, a, b = self.T
        if s8: A(f"s_memtime {s(self.st[8],2)}")
        A(f"""
        s_memrealtime {s(self.st[9],2)}
        s_lshl_b32 {s(a)}, {s(S_W)}, 12
        s_sub_u32 {s(b)}, {s(self.sSeg)}, {d}
        s_and_b32 {s(b)}, {s(b)}, 63
        s_lshl_b32 {s(b)}, {s(b)}, 6
        s_add_u32 {s(a)}, {s(a)}, {s(b)}
        s_add_u32 {s(a)}, {s(a)}, {LDS_PROF}
        v_add_u32 {v(t1)}, {s(a)}, {v(self.vL4)}
        s_waitcnt lgkmcnt(0)
        """)
        for i in range(10): A(f"v_writelane_b32 {v(t0)}, {s(self.st[i])}, {i}")
        for i, c in enumerate(self.cn): A(f"v_writelane_b32 {v(t0)}, {s(c)}, {10+i}")
        A(f"s_mov_b64 exec, 0x1fff\nds_write_b32 {v(t1)}, {v(t0)}\ns_mov_b64 exec, -1\ns_waitcnt lgkmcnt(0)")
    def out(self, R):
        if not self.on: return
        A = self.A; t0, t1, a, b = self.T
        A(f"""
        s_mul_i32 {s(a)}, {s(S_X)}, 28
        s_add_u32 {s(a)}, {s(a)}, {s(S_T)}
        s_lshl_b32 {s(a)}, {s(a)}, 2
        s_add_u32 {s(a)}, {s(a)}, {s(S_W)}
        s_lshl_b32 {s(a)}, {s(a)}, 12
        s_add_u32 {s(a)}, {s(a)}, {OFF_DBG}
        s_lshl_b32 {s(b)}, {s(S_W)}, 12
        s_add_u32 {s(b)}, {s(b)}, {LDS_PROF}
        v_add_u32 {v(t1)}, {s(b)}, {v(self.vL16)}
        s_waitcnt vmcnt(0) lgkmcnt(0)
        """)
        for i in range(4): A(f"ds_read_b128 {v(R+4*i,4)}, {v(t1)} offset:{1024*i}")
        A("s_waitcnt lgkmcnt(0)")
        for i in range(4): A(f"buffer_store_dwordx4 {v(R+4*i,4)}, {v(self.vL16)}, {s(S_WS,4)}, {s(a)} offen offset:{1024*i}")

def nap(A, gd):
    while gd > 0:
        A(f"s_nop {min(gd, 16) - 1}"); gd -= 16

def gen_b(A, prof=False, opt=()):
    optv = dict(o.split("=") for o in opt if "=" in o)
    NP = XPN[0]
    sa = Alloc(20, 100)
    SWt = sa(4, 4)
    sF, sLH, sKK, sMat, sSeg, sPn, sCnt, sT0, sT1, sT2, sM0 = [sa() for _ in range(11)]
    sMemB, sMemCur, sSVb, sSVs, sKmb, sKm, sOb, sOut, sHo, sBuf, sRs, sRb, sXb, sNeed, sTc, sOd, sOt = [sa() for _ in range(17)]
    sMS, sMhi = sa(2, 2), sa(2, 2)
    XB = "xb" in opt; sXp, sXm, sXl = sa(), sa(), [sa(), sa(), sa()]
    TF = "tf" in optv; assert not TF or (XB and NP == 1)
    sRt, sCk, sNw = sa(2, 2), sa(2, 2), sa(2, 2); sPr, sPc, sN, sFw, sFr = sa(), sa(), sa(), sa(), sa()
    TN = int(optv.get('tfn', 1))
    va = Alloc(2, 192)
    W = 192
    def Wf(j, ks): return W + (j * 20 + ks) * 4
    MF = va(40, 4); KX = va(8, 4); QF = va(8, 4)
    acc = [va(4, 4), va(4, 4)]; accS = va(4, 4); SENT = va(4, 4)
    PS = [(va(4, 4), va(4, 4), va(2, 2)) for _ in range(2)]
    ACC = va(16, 4)
    NB = 4
    B = [va(4, 4) for _ in range(NB)]
    PK = va(8, 4); PB = va(2, 2), va(2, 2)
    (vL16, vL8, vL4, vMemG, vMemG8, vTw, vPub, vIdx, vSel, vKm, vFl, vFk, vMk, vHp, vPg, vLr, vKrW, vKrR, vKw, vKr, vXr, vTc, vTd,
     t0, t1, t2, t3) = [va() for _ in range(27)]
    vRd = va(4, 2); vKw2 = va(); SELA = va(4, 4)
    vTK, vTF, vTa, vTt, vTI, vHq, vNq = [va() for _ in range(7)]
    SL = "sl" in opt; sLo = sa(2, 2)
    L = V_LANE; WSR = s(S_WS, 4)
    A(f"""
    s_load_dwordx2 {s(SWt,2)}, s[0:1], {KA['wq']}
    s_load_dwordx2 s[4:5], s[0:1], {KA['wk']}
    s_load_dwordx2 s[6:7], s[0:1], {KA['wv']}
    s_mov_b32 {s(SWt+2)}, {SZ['wq']}
    s_mov_b32 {s(SWt+3)}, 0x00020000
    s_and_b32 {s(sT0)}, {s(S_W)}, 1
    s_lshl_b32 {s(sF)}, {s(S_T)}, 1
    s_add_u32 {s(sF)}, {s(sF)}, {s(sT0)}
    s_lshl_b32 {s(sT1)}, {s(S_T)}, 2
    s_add_u32 {s(sT1)}, {s(sT1)}, {s(S_W)}
    s_sub_u32 {s(sT1)}, {s(sT1)}, 48
    s_lshr_b32 {s(sMat)}, {s(S_W)}, 1
    s_cmp_lt_u32 {s(S_T)}, 12
    s_cselect_b32 {s(sF)}, {s(sF)}, {s(sT1)}
    s_cselect_b32 {s(sMat)}, {s(sMat)}, 2
    s_mul_i32 {s(sLH)}, {s(sF)}, 43
    s_lshr_b32 {s(sLH)}, {s(sLH)}, 8
    s_mul_i32 {s(sT1)}, {s(sLH)}, 6
    s_sub_u32 {s(sKK)}, {s(sF)}, {s(sT1)}
    s_mul_i32 {s(sT2)}, {s(S_X)}, 1536
    s_lshr_b32 {s(sT1)}, {s(sF)}, 1
    s_lshl_b32 {s(sT1)}, {s(sT1)}, 7
    s_add_u32 {s(sT2)}, {s(sT2)}, {s(sT1)}
    s_mul_i32 {s(sT1)}, {s(sT0)}, {80*12288}
    s_add_u32 {s(sT2)}, {s(sT2)}, {s(sT1)}
    s_lshr_b32 {s(sT1)}, {s(S_W)}, 1
    s_mul_i32 {s(sBuf)}, {s(sT1)}, 81920
    s_mul_i32 {s(sM0)}, {s(sT0)}, 10240
    s_add_u32 {s(sM0)}, {s(sM0)}, {s(sBuf)}
    """)
    vSrc = MF
    panel_src_off(A, vSrc, t0, L, 12288)
    A(f"""
    s_waitcnt lgkmcnt(0)
    s_cmp_eq_u32 {s(sMat)}, 1
    s_cselect_b64 {s(SWt,2)}, s[4:5], {s(SWt,2)}
    s_cmp_eq_u32 {s(sMat)}, 2
    s_cselect_b64 {s(SWt,2)}, s[6:7], {s(SWt,2)}
    """)
    VW = Cnt(A, "vmcnt", 63)
    def w_issue(ch):
        for n in range(10):
            A(f"s_add_u32 m0, {s(sM0)}, {ch*20480 + n*1024}\ns_add_u32 {s(sT1)}, {s(sT2)}, {(ch*160 + n*8)*12288}")
            VW.issue(f"buffer_load_dwordx4 {v(vSrc)}, {s(SWt,4)}, {s(sT1)} offen nt lds", ch)
    WD = int(optv.get("bdep", 3))
    BW = int(optv.get("bw", 0)); nis = [0]
    def w_one():
        i = nis[0]
        if i >= 40: return
        nis[0] += 1; ch, n = divmod(i, 10)
        A(f"s_add_u32 m0, {s(sM0)}, {ch*20480 + n*1024}\ns_add_u32 {s(sT1)}, {s(sT2)}, {(ch*160 + n*8)*12288}")
        if i >= BW: A(f"s_waitcnt vmcnt({BW - 1})")
        VW.issue(f"buffer_load_dwordx4 {v(vSrc)}, {s(SWt,4)}, {s(sT1)} offen nt lds", ch)
    if BW:
        for i in range(BW): w_one()
    else:
        for ch in range(WD): w_issue(ch)
    for j in range(4):
        A(f"s_lshl_b32 {s(sT1)}, {s(sT0)}, 2\ns_xor_b32 {s(sT1)}, {s(sT1)}, {2*j}")
        panel_rd_addr(A, vRd + j, t0, t1, L, s(sT1))
        A(f"v_add_u32 {v(vRd+j)}, {s(sBuf)}, {v(vRd+j)}")
    g_, fl_ = QF, QF + 1
    A(f"""
    v_lshlrev_b32 {v(vL16)}, 4, {v(L)}
    v_lshlrev_b32 {v(vL8)}, 3, {v(L)}
    v_lshlrev_b32 {v(vL4)}, 2, {v(L)}
    s_mul_i32 {s(sT1)}, {s(S_W)}, 2560
    v_add_u32 {v(vMemG)}, {s(sT1)}, {v(vL16)}
    s_add_u32 {s(sT1)}, {s(sT1)}, 2048
    v_add_u32 {v(vMemG8)}, {s(sT1)}, {v(vL4)}
    v_lshrrev_b32 {v(g_)}, 4, {v(L)}
    v_and_b32 {v(fl_)}, 15, {v(L)}
    v_bfe_u32 {v(t0)}, {v(L)}, 1, 1
    v_mul_u32_u24 {v(t0)}, 0xaaaa, {v(t0)}
    v_add_u32 {v(vIdx)}, 0x4444, {v(t0)}
    v_and_b32 {v(t0)}, 1, {v(L)}
    v_mov_b32 {v(vSel)}, 0x05040100
    v_mov_b32 {v(t1)}, 0x03020706
    v_cmp_eq_u32 vcc, 1, {v(t0)}
    v_cndmask_b32 {v(vSel)}, {v(vSel)}, {v(t1)}, vcc
    s_lshl_b32 {s(sT1)}, {s(S_W)}, 10
    s_add_u32 {s(sT1)}, {s(sT1)}, {LDS_T}
    v_lshl_add_u32 {v(vTw)}, {v(fl_)}, 5, {s(sT1)}
    s_lshr_b32 {s(sT1)}, {s(S_W)}, 1
    s_add_u32 {s(sT1)}, {s(sT1)}, 2
    v_lshlrev_b32 {v(t0)}, {s(sT1)}, {v(g_)}
    v_add_u32 {v(vTw)}, {v(vTw)}, {v(t0)}
    ; v publish: (n>>3)*256 + (4g + (n&3))*16 + ((n>>2)&1)*8
    v_and_b32 {v(t0)}, 3, {v(L)}
    v_lshl_add_u32 {v(t0)}, {v(g_)}, 2, {v(t0)}
    v_lshlrev_b32 {v(t0)}, 4, {v(t0)}
    v_bfe_u32 {v(t1)}, {v(L)}, 3, 1
    v_lshl_add_u32 {v(t0)}, {v(t1)}, 8, {v(t0)}
    v_bfe_u32 {v(t1)}, {v(L)}, 2, 1
    v_lshl_add_u32 {v(vPub)}, {v(t1)}, 3, {v(t0)}
    v_bfe_u32 {v(t0)}, {v(L)}, 2, 2
    v_lshlrev_b32 {v(t0)}, 1, {v(t0)}
    v_and_b32 {v(t1)}, 1, {v(L)}
    v_add_u32 {v(t0)}, {v(t0)}, {v(t1)}
    v_lshl_add_u32 {v(t0)}, {v(g_)}, 3, {v(t0)}
    v_lshlrev_b32 {v(vKm)}, 4, {v(t0)}
    v_lshlrev_b32 {v(t0)}, 11, {v(g_)}
    v_lshl_add_u32 {v(vXr)}, {v(fl_)}, 4, {v(t0)}
    v_and_b32 {v(t0)}, 7, {v(L)}
    v_lshlrev_b32 {v(t0)}, 7, {v(t0)}
    v_bfe_u32 {v(t1)}, {v(L)}, 3, 1
    v_mul_u32_u24 {v(t1)}, 6144, {v(t1)}
    v_add_u32 {v(vTc)}, {v(t0)}, {v(t1)}
    ; K ring in LDS: [slot][tt][kk&1][1024]
    s_mul_i32 {s(sT1)}, {s(sT0)}, 3072
    s_add_u32 {s(sT1)}, {s(sT1)}, {LDS_KR}
    v_add_u32 {v(vKrW)}, {s(sT1)}, {v(vL16)}
    s_mul_i32 {s(sOt)}, {s(sT0)}, 6144
    s_lshl_b32 {s(sOd)}, {s(sT0)}, 11
    s_sub_u32 {s(sOd)}, 1024, {s(sOd)}
    s_mul_i32 {s(sT1)}, {s(sT0)}, 20480
    v_add_u32 {v(vLr)}, {s(sT1)}, {v(vL16)}
    s_lshl_b32 {s(sT1)}, {s(sT0)}, 11
    s_add_u32 {s(sT1)}, {s(sT1)}, {LDS_KR}
    v_add_u32 {v(vKrR)}, {s(sT1)}, {v(vL16)}
    s_mov_b32 {s(sMhi)}, 0xff00ff00
    s_mov_b32 {s(sMhi+1)}, 0xff00ff00
    s_not_b64 {s(sMS,2)}, {s(sMhi,2)}
    s_cmp_eq_u32 {s(S_W)}, 0
    s_cselect_b64 {s(sMS,2)}, {s(sMS,2)}, {s(sMhi,2)}
    s_mul_i32 {s(sMemB)}, {s(S_X)}, 10240
    s_add_u32 {s(sMemB)}, {s(sMemB)}, {OFF_MEM}
    s_lshl_b32 {s(sSVb)}, {s(S_X)}, 17
    s_lshl_b32 {s(sT1)}, {s(sLH)}, 13
    s_add_u32 {s(sSVb)}, {s(sSVb)}, {s(sT1)}
    s_add_u32 {s(sSVb)}, {s(sSVb)}, {OFF_SV2}
    s_lshl_b32 {s(sOb)}, {s(S_X)}, 22
    s_add_u32 {s(sOb)}, {s(sOb)}, {OFF_RING}
    s_lshr_b32 {s(sT1)}, {s(sF)}, 1
    s_lshl_b32 {s(sKmb)}, {s(sT1)}, 10
    s_add_u32 {s(sKmb)}, {s(sKmb)}, {s(sOb)}
    s_add_u32 {s(sKmb)}, {s(sKmb)}, {R5_KM}
    s_mul_i32 {s(sT1)}, {s(sMat)}, {QKV_MAT}
    s_add_u32 {s(sOb)}, {s(sOb)}, {s(sT1)}
    s_mul_i32 {s(sT1)}, {s(sLH)}, 12288
    s_add_u32 {s(sOb)}, {s(sOb)}, {s(sT1)}
    s_lshl_b32 {s(sT1)}, {s(sKK)}, 10
    s_add_u32 {s(sOb)}, {s(sOb)}, {s(sT1)}
    s_mul_i32 {s(sHo)}, {s(S_X)}, {H_X}
    s_add_u32 {s(sHo)}, {s(sHo)}, {OFF_H}
    s_mul_i32 {s(sT1)}, {s(S_W)}, 10240
    s_add_u32 {s(sHo)}, {s(sHo)}, {s(sT1)}
    s_add_u32 {s(sTc)}, {s(sT1)}, {LDS_H}
    ; flags
    s_lshl_b32 {s(sRb)}, {s(S_X)}, 8
    v_add_u32 {v(vHp)}, {s(sRb)}, {v(vL4)}
    s_lshl_b32 {s(sT1)}, {s(sLH)}, 6
    s_add_u32 {s(sT1)}, {s(sT1)}, {s(sRb)}
    s_lshr_b32 {s(sRs)}, {s(sKK)}, 1
    s_lshl_b32 {s(sRs)}, {s(sRs)}, 2
    s_add_u32 {s(sRs)}, {s(sRs)}, {s(sT1)}
    s_add_u32 {s(sNeed)}, {s(sRs)}, {PPROG + 48}
    v_mov_b32 {v(vFk)}, {s(sNeed)}
    s_add_u32 {s(sRs)}, {s(sRs)}, {SPROG}
    s_lshl_b32 {s(sNeed)}, {s(sKK)}, 2
    s_add_u32 {s(sT1)}, {s(sT1)}, {s(sNeed)}
    s_add_u32 {s(sNeed)}, {s(sT1)}, {SPROG + 12}
    s_cmp_lt_u32 {s(S_T)}, 12
    s_cselect_b32 {s(sRs)}, {s(sRs)}, {s(sNeed)}
    v_mov_b32 {v(vMk)}, {s(sRs)}
    s_mul_i32 {s(sNeed)}, {s(sMat)}, 24
    s_add_u32 {s(sT1)}, {s(sT1)}, {s(sNeed)}
    s_add_u32 {s(sT1)}, {s(sT1)}, {PPROG}
    s_lshl_b32 {s(sNeed)}, {s(sF)}, 2
    s_add_u32 {s(sNeed)}, {s(sNeed)}, {s(sRb)}
    s_add_u32 {s(sNeed)}, {s(sNeed)}, {CPROG}
    s_cmp_lt_u32 {s(S_T)}, 12
    s_cselect_b32 {s(sT1)}, {s(sT1)}, {s(sNeed)}
    v_mov_b32 {v(vFl)}, {s(sT1)}
    s_lshl_b32 {s(sXb)}, {s(sF)}, 13
    s_add_u32 {s(sXb)}, {s(sXb)}, {s(sRb)}
    s_add_u32 {s(sXb)}, {s(sXb)}, {OFF_XP}
    s_mov_b32 {s(sSeg)}, 0
    s_mov_b32 {s(sPn)}, 0
    v_mov_b32 {v(t2)}, 0
    v_mov_b32 {v(t3)}, 0
    """)
    for i in range(4): A(f"v_mov_b32 {v(SENT+i)}, -1")
    if SL:
        A(f"""
        s_mov_b64 {s(sLo,2)}, 0xffff
        v_add_u32 {v(t0)}, {HPROG - CPROG}, {v(vHp)}
        v_cndmask_b32 {v(vHq)}, {v(vHp)}, {v(t0)}, {s(sLo,2)}
        """)
    if TF:
        A(f"""
        v_and_b32 {v(t0)}, {8 * TN - 1}, {v(L)}
        v_lshlrev_b32 {v(vTa)}, 7, {v(t0)}
        s_mul_i32 {s(sFw)}, {s(S_X)}, {TN * 128}
        s_cmp_eq_u32 {s(S_T)}, 15
        s_cselect_b32 {s(sT1)}, 128, 0
        s_add_u32 {s(sFw)}, {s(sFw)}, {s(sT1)}
        s_add_u32 {s(sFw)}, {s(sFw)}, {OFF_TF}
        s_cmp_eq_u32 {s(S_T)}, {15 if TN == 2 else 12}
        s_cselect_b32 {s(sT1)}, 12, {s(S_T)}
        s_lshl_b32 {s(sT1)}, {s(sT1)}, 2
        s_add_u32 {s(sT1)}, {s(sT1)}, {s(S_W)}
        s_cmp_eq_u32 {s(sT1)}, 48
        s_cselect_b32 {s(sFw)}, {s(sFw)}, 0
        s_mov_b32 {s(sFr)}, {OFF_TF}
        s_memrealtime {s(sRt,2)}
        s_memtime {s(sCk,2)}
        s_mov_b32 {s(sPr)}, 0
        s_mov_b32 {s(sPc)}, 0
        """)
    A(f"""
    s_and_b32 {s(sXm)}, {s(sF)}, 15
    s_add_u32 {s(sXm)}, {s(sXm)}, 24
    s_cmp_lt_u32 {s(S_T)}, 12
    s_cselect_b32 {s(sXm)}, {s(sXm)}, {s(sF)}
    s_lshr_b32 {s(sXp)}, {s(sXm)}, 2
    s_mul_i32 {s(sXp)}, {s(sXp)}, {NP * 16384}
    s_and_b32 {s(sT1)}, {s(sXm)}, 3
    s_lshl_b32 {s(sT1)}, {s(sT1)}, 11
    s_add_u32 {s(sXp)}, {s(sXp)}, {s(sT1)}
    s_add_u32 {s(sXp)}, {s(sXp)}, {OFF_XP - 8192}
    s_lshl_b32 {s(sXm)}, {s(sXm)}, 8
    v_and_b32 {v(t1)}, 3, {v(L)}
    v_mov_b32 {v(PK)}, 0x3f80
    v_cmp_eq_u32 vcc, 0, {v(t1)}
    v_cndmask_b32 {v(PK+1)}, {v(t2)}, {v(PK)}, vcc
    v_mov_b32 {v(PK)}, 0x3f800000
    v_cmp_eq_u32 vcc, 1, {v(t1)}
    v_cndmask_b32 {v(PK+1)}, {v(PK+1)}, {v(PK)}, vcc
    v_lshrrev_b32 {v(t0)}, 2, {v(fl_)}
    """)
    for d in range(4):
        A(f"v_cmp_eq_u32 vcc, {d}, {v(t0)}\nv_cndmask_b32 {v(SELA+d)}, {v(t2)}, {v(PK+1)}, vcc")
    def h_loads():
        H = []
        for i in range(10):
            pre = f"s_add_u32 m0, {s(sBuf)}, {i*1024}\ns_add_u32 {s(sT0)}, {s(sHo)}, {i*1024}\n" if i % 4 == 0 else ""
            H.append(pre + f"buffer_load_dwordx4 {v(vL16)}, {WSR}, {s(sT0)} offen offset:{(i % 4)*1024} sc1 lds")
        return H
    S5_ = "s5" in opt; assert not S5_ or (not BW and WD == 3)
    for ch in range(4):
        while BW and nis[0] < min(40, 10 * ch + 9 + BW): w_one()
        VW.wait(ch)
        if S5_ and ch == 0:
            A(f"s_lshl_b32 {s(sT0)}, {s(S_X)}, 2\ns_add_u32 {s(sT0)}, {s(sT0)}, {G0}\nv_mov_b32 {v(t0)}, {s(sT0)}")
            VW.issue(f"buffer_load_dword {v(vTd)}, {v(t0)}, {s(S_DBG,4)}, 0 offen sc1", 2)
        if S5_ and ch == 2:
            A(f"v_cmp_gt_u32 vcc, {G0N[0]}, {v(vTd)}\ns_cbranch_vccz b_g0")
            g0_wait(A, t0, sCnt)
            A(f"b_g0:\ns_mov_b32 {s(sT2)}, {HPROG}")
            VW.issue(f"buffer_load_dword {v(vPg)}, {v(vHp)}, {WSR}, {s(sT2)} offen sc1", 3)
        if BW: w_one()
        elif ch + WD < 4: w_issue(ch + WD)
        if S5_ and ch == 3: A("s_waitcnt lgkmcnt(0)")
        A("s_barrier")
        if S5_ and ch == 3:
            A(f"s_mov_b32 {s(sBuf)}, {s(sTc)}")
            poll_ge(A, vPg, vHp, 2, 0xfff, sCnt, "role_abort", soff=s(sT2), first=False, slp=int(optv.get("hsl", 2)))
            for x in h_loads(): A(x)
            A(f"buffer_load_dword {v(vPg)}, {v(vHp)}, {WSR}, {s(sT2)} offen sc1")
        if ch == 2:
            for j in range(4): A(f"v_add_u32 {v(vRd+j)}, 40960, {v(vRd+j)}")
        for k5 in range(5):
            for j in range(4): panel_read_frag(A, Wf(j, ch * 5 + k5), vRd + j, ((ch & 1) * 5 + k5) * 4096)
            A("s_waitcnt lgkmcnt(6)")
            if BW: w_one()
    if S5_: A("s_waitcnt lgkmcnt(0)")
    else: A(f"s_mov_b32 {s(sBuf)}, {s(sTc)}\ns_waitcnt lgkmcnt(0)\ns_barrier")
    ev(A, 1, t0)
    PR = CProf(A, prof, sa, optv.get("pb", "0,1,2,3,4,5,6,7").split(","), vL4, vL16, sSeg, (t0, t1, sT0, sT1))
    if not S5_:
        g0_wait(A, t0, sCnt)
        A(f"s_mov_b32 {s(sT2)}, {HPROG}")
        poll_ge(A, vPg, vHp, 2, 0xfff, sCnt, "role_abort", soff=s(sT2), slp=int(optv.get("hsl", 2)))
        ev(A, 6, t0)
    for x in h_loads() * (not S5_): A(x)
    A(f"""
    s_xor_b32 {s(sBuf)}, {s(sBuf)}, 0x10000
    s_add_u32 {s(sHo)}, {s(sHo)}, {32*1280}
    s_waitcnt vmcnt(0)
    s_barrier
    """)
    ev(A, 2, t0)
    A(f"""
    s_cmp_ge_u32 {s(S_T)}, 12
    s_cbranch_scc1 b_pro3
    s_cmp_lt_u32 {s(S_W)}, 2
    s_cbranch_scc1 b_pro0
    s_cmp_eq_u32 {s(S_W)}, 2
    s_cbranch_scc1 b_pro1
    s_branch b_pro2
    """)
    def spin():
        A(f"s_add_u32 {s(sCnt)}, {s(sCnt)}, 1\ns_cmp_gt_u32 {s(sCnt)}, {SPIN_LIMIT}\ns_cbranch_scc1 chain_abort")
    def mem_poll(cls):
        lb = A.label("mq")
        def ld(P):
            A(f"""
            buffer_load_dwordx4 {v(P[0],4)}, {v(vMemG)}, {WSR}, {s(sMemCur)} offen sc1
            buffer_load_dwordx4 {v(P[1],4)}, {v(vMemG)}, {WSR}, {s(sMemCur)} offen offset:1024 sc1
            buffer_load_dword {v(P[2])}, {v(vMemG8)}, {WSR}, {s(sMemCur)} offen sc1
            buffer_load_dword {v(P[2]+1)}, {v(vMemG8)}, {WSR}, {s(sMemCur)} offen offset:256 sc1
            """)
        def chk(P, k):
            A(f"""
            s_waitcnt vmcnt({4 + k})
            {"" if k else f"buffer_store_dword {v(t2)}, {v(vFl)}, {WSR}, 0 offen"}
            v_max3_u32 {v(t0)}, {v(P[0])}, {v(P[1])}, {v(P[2])}
            v_max_u32 {v(t0)}, {v(t0)}, {v(P[2]+1)}
            v_cmp_eq_u32 vcc, -1, {v(t0)}
            ds_write_b128 {v(vMemG)}, {v(P[0],4)}
            ds_write_b128 {v(vMemG)}, {v(P[1],4)} offset:1024
            ds_write2st64_b32 {v(vMemG8)}, {v(P[2])}, {v(P[2]+1)} offset0:0 offset1:1
            """)
        A(f"s_mov_b32 {s(sCnt)}, 0")
        ld(PS[0]); nap(A, int(optv.get("n2s", 32)))
        A(f"{lb}:")
        for k in range(2):
            ld(PS[1 - k])
            if prof or k == 0: spin()
            chk(PS[k], k)
            A(f"s_cbranch_vccz {lb}_ok")
        A(f"s_branch {lb}")
        if "bk" in optv: A(".p2align 7\n" + "s_nop 0\n" * int(optv.get(f"bk{cls}", optv["bk"])))
        A(f"{lb}_ok:\ns_waitcnt lgkmcnt(0)\ns_barrier")
    MP = int(optv.get("mp", 0)); sMk = [sa(2, 2) for _ in range(4)] if MP else None
    def mem_poll2(cls, flag):
        lb = A.label("mq"); P = PS[0]
        LD = [f"buffer_load_dwordx4 {v(P[0],4)}, {v(vMemG)}, {WSR}, {s(sMemCur)} offen sc1",
              f"buffer_load_dwordx4 {v(P[1],4)}, {v(vMemG)}, {WSR}, {s(sMemCur)} offen offset:1024 sc1",
              f"buffer_load_dword {v(P[2])}, {v(vMemG8)}, {WSR}, {s(sMemCur)} offen sc1",
              f"buffer_load_dword {v(P[2]+1)}, {v(vMemG8)}, {WSR}, {s(sMemCur)} offen offset:256 sc1"]
        for x in LD: A(x)
        if flag: A(f"s_waitcnt vmcnt(4)\nbuffer_store_dword {v(t2)}, {v(vFl)}, {WSR}, 0 offen")
        A(f"s_mov_b32 {s(sCnt)}, 0")
        nap(A, int(optv.get("n2s", 32)))
        A(f"{lb}:")
        for k in range(MP):
            A(f"""
            v_max3_u32 {v(t0)}, {v(P[0])}, {v(P[0]+1)}, {v(P[0]+2)}
            v_max3_u32 {v(t1)}, {v(P[1])}, {v(P[1]+1)}, {v(P[1]+2)}
            v_max_u32 {v(t0)}, {v(t0)}, {v(P[0]+3)}
            v_max_u32 {v(t1)}, {v(t1)}, {v(P[1]+3)}
            v_max3_u32 {v(vTt)}, {v(t0)}, {v(t1)}, {v(P[2])}
            v_max_u32 {v(vTt)}, {v(vTt)}, {v(P[2]+1)}
            v_cmp_eq_u32 vcc, -1, {v(vTt)}
            s_cbranch_vccz {lb}_ok
            """)
            nap(A, int(optv.get("mpn", 0)))
        for i, (x, R_) in enumerate(zip(LD, (t0, t1, P[2], P[2] + 1))): A(f"v_cmp_eq_u32 {s(sMk[i],2)}, -1, {v(R_)}")
        spin()
        A("s_waitcnt vmcnt(16)")
        for i, x in enumerate(LD): A(f"s_mov_b64 exec, {s(sMk[i],2)}\ns_cbranch_execz {lb}_s{i}\n{x}\n{lb}_s{i}:")
        A(f"s_mov_b64 exec, -1\ns_branch {lb}")
        if "bk" in optv: A(".p2align 7\n" + "s_nop 0\n" * int(optv.get(f"bk{cls}", optv["bk"])))
        A(f"""
        {lb}_ok:
        ds_write_b128 {v(vMemG)}, {v(P[0],4)}
        ds_write_b128 {v(vMemG)}, {v(P[1],4)} offset:1024
        ds_write2st64_b32 {v(vMemG8)}, {v(P[2])}, {v(P[2]+1)} offset0:0 offset1:1
        s_waitcnt lgkmcnt(0)
        s_barrier
        """)
    def trq(): return [f"ds_read_b64_tr_b16 {v(QF+2*i,2)}, {v(vL8)} offset:{LDS_T+512*i}" for i in range(4)]
    def trk(): return [f"ds_read_b64_tr_b16 {v(KX+2*i,2)}, {v(vL8)} offset:{LDS_T2+512*i}" for i in range(4)]
    def t_reset(cls):
        if cls in (1, 2):
            for i in range(2): A(f"ds_write_b128 {v(vL16)}, {v(SENT,4)} offset:{(LDS_T if cls == 1 else LDS_T2) + 1024*i}")

    def emit(cls):
        cold = []
        top, bs = f"b_top{cls}", f"b_step{cls}"
        A(f"b_pro{cls}:")
        if cls == 0:
            A(f"""
            s_lshr_b32 {s(sT0)}, {s(sKK)}, 1
            s_lshl_b32 {s(sT0)}, {s(sT0)}, 10
            s_cmp_eq_u32 {s(S_W)}, 0
            s_cselect_b32 {s(sRb)}, {s(sT0)}, 3072
            s_add_u32 {s(sRb)}, {s(sRb)}, {s(sSVb)}
            s_add_u32 {s(sSVb)}, {s(sSVb)}, {s(sT0)}
            """)
        elif cls == 1:
            A(f"""
            s_lshl_b32 {s(sT0)}, {s(sKK)}, 7
            s_add_u32 {s(sSVb)}, {s(sSVb)}, {s(sT0)}
            s_add_u32 {s(sSVb)}, {s(sSVb)}, 3072
            s_min_u32 {s(sT0)}, {s(S_T)}, 9
            s_lshl_b32 {s(sT0)}, {s(sT0)}, 10
            s_add_u32 {s(sRb)}, {s(sMemB)}, {s(sT0)}
            """)
        elif cls == 3:
            A(f"""
            s_lshl_b32 {s(sT0)}, {s(sKK)}, 9
            s_add_u32 {s(sSVb)}, {s(sSVb)}, {s(sT0)}
            s_add_u32 {s(sSVb)}, {s(sSVb)}, 4096
            s_cmp_lt_u32 {s(sF)}, {20 * NP if NP == 1 else 24}
            s_cselect_b32 {s(sT0)}, 0, {4*8192}
            s_sub_u32 {s(sXb)}, {s(sXb)}, {s(sT0)}
            s_cmp_lt_u32 {s(sF)}, {(20 * NP - 1) % 24 + 1}
            s_cselect_b32 {s(sRb)}, {(20 * NP - 1) // 24 * 24 * 8192}, 0
            """)
        t_reset(cls)
        XC = XB and cls in (0, 3)
        XR, XD = [B[0], B[2], ACC], ACC + 8
        TC = TF and XC
        if TC: XR[0] = QF
        XL = [f"""buffer_load_dwordx4 {v(XR[k],4)}, {v(vL16)}, {WSR}, {s(sXl[k])} offen sc1
                  buffer_load_dwordx4 {v(XR[k]+4,4)}, {v(vL16)}, {WSR}, {s(sXl[k])} offen offset:1024 sc1""" for k in range(NP)]
        xp = int(optv.get(f"xp{cls}", 0))
        if "bo" in optv: A(".p2align 7\n" + "s_nop 0\n" * int(optv.get(f"bo{cls}", optv["bo"])))
        A(f"{top}:")
        if XC:
            A(f"""
            s_add_u32 {s(sT0)}, {s(sSeg)}, 3
            s_and_b32 {s(sT0)}, {s(sT0)}, 3
            s_mul_i32 {s(sT0)}, {s(sT0)}, {XP_SLOT * NP}
            s_add_u32 {s(sXl[0])}, {s(sXp)}, {s(sT0)}
            s_add_u32 {s(sXl[1])}, {s(sXl[0])}, 16384
            s_add_u32 {s(sXl[2])}, {s(sXl[0])}, 32768
            """)
        A(f"s_cmp_ge_u32 {s(sPn)}, 64\ns_cbranch_scc1 {bs}0")
        PR.stamp(4)
        if prof: A("s_waitcnt lgkmcnt(0)")
        LG = Cnt(A, "lgkmcnt", 15)
        def rd(f): LG.issue(f"ds_read_b128 {v(B[f % NB],4)}, {v(vLr)} offset:{LDS_H + f*1024}", f)
        for f in range(NB - 1): rd(f)
        A(f"""
        s_and_b32 {s(sT0)}, {s(sPn)}, 3
        s_mul_i32 {s(sT0)}, {s(sT0)}, {QS}
        s_add_u32 {s(sOut)}, {s(sOb)}, {s(sT0)}
        s_add_u32 {s(sOut)}, {s(sOut)}, {s(sOt)}
        s_add_u32 {s(sTc)}, {s(sPn)}, 2
        s_lshl_b32 {s(sNeed)}, {s(sTc)}, 1
        s_min_u32 {s(sNeed)}, {s(sNeed)}, 128
        s_and_b32 {s(sT0)}, {s(sPn)}, 3
        s_lshl_b32 {s(sT0)}, {s(sT0)}, 12
        v_add_u32 {v(vKw)}, {s(sT0)}, {v(vKrW)}
        v_xor_b32 {v(vKw2)}, 1024, {v(vKw)}
        s_add_u32 {s(sPn)}, {s(sPn)}, 1
        s_mov_b32 {s(sT2)}, {CPROG if SL else HPROG}
        """)
        if SL:
            A(f"""
            s_max_u32 {s(sT0)}, {s(sPn)}, 4
            s_sub_u32 {s(sT0)}, {s(sT0)}, 4
            v_mov_b32 {v(vNq)}, {s(sT0)}
            v_mov_b32 {v(t0)}, {s(sNeed)}
            v_cndmask_b32 {v(vNq)}, {v(vNq)}, {v(t0)}, {s(sLo,2)}
            """)
        def epilogue(h):
            E = []
            for j in range(2):
                a0 = ACC + 8 * h + 4 * j
                E.append(f"v_cvt_pk_bf16_f32 {v(PK+4*h+2*j)}, {v(a0)}, {v(a0+1)}")
                E.append(f"v_cvt_pk_bf16_f32 {v(PK+4*h+2*j+1)}, {v(a0+2)}, {v(a0+3)}")
            E.append(f"buffer_store_dwordx4 {v(PK+4*h,4)}, {v(vL16)}, {WSR}, {s(sOut)} offen\ns_add_u32 {s(sOut)}, {s(sOut)}, {s(sOd)}")
            if cls in (1, 2): E.append(f"ds_write_b128 {v(vKw2 if h else vKw)}, {v(PK+4*h,4)}")
            return E
        hp = int(optv.get("bhp", 4 if cls != 2 else 10))
        side = [None] * hp
        if cls == 2: side += [f"s_waitcnt vmcnt(0)\nbuffer_store_dword {v(t3)}, {v(vFk)}, {WSR}, 0 offen"]
        side += ["HP"] + [y for x in h_loads() for y in (x, None)] + [f"buffer_load_dword {v(vPg)}, {v(vHq if SL else vHp)}, {WSR}, {s(sT2)} offen sc1"]
        if "hs1" in opt: side = side[:hp] + [x for x in side[hp:] if x] + [None] * 10
        at = {}
        if TC:
            TW = 2048; tfl, tfc, tfx = int(optv.get("tfl", 16)), int(optv.get("tfc", 56)), int(optv.get("tfx", 12))
            assert side[tfl] is None
            side[tfl] = f"""s_and_b32 {s(sN)}, {s(sSeg)}, 63
                s_lshl_b32 {s(sN)}, {s(sN)}, 14
                s_add_u32 {s(sN)}, {s(sN)}, {s(sFr)}
                s_mov_b64 exec, 0xffff
                buffer_load_dword {v(vTF)}, {v(vTa)}, {WSR}, {s(sN)} offen sc1
                s_mov_b64 exec, -1"""
            nl = sum(x is not None for x in side[tfl + 1:])
            assert 2 * len(side) <= tfc
            side[0] = f"""s_sub_u32 {s(sPr)}, {s(sRt)}, {s(sPr)}
                s_sub_u32 {s(sPc)}, {s(sCk)}, {s(sPc)}
                s_lshl_b32 {s(sPr)}, {s(sPr)}, 4
                v_cvt_f32_u32 {v(vTI)}, {s(sPc)}"""
            side[1] = f"v_cvt_f32_u32 {v(vTK)}, {s(sPr)}\nv_rcp_f32 {v(vTt)}, {v(vTI)}\ns_mov_b32 {s(sPr)}, {s(sRt)}\ns_mov_b32 {s(sPc)}, {s(sCk)}"
            side[2] = f"v_mul_f32 {v(vTK)}, {v(vTK)}, {v(vTt)}"
            side[3] = f"v_rcp_f32 {v(vTI)}, {v(vTK)}\ns_lshl_b32 {s(sRt)}, {s(sRt)}, 4"
            dp = lambda c: f"v_max_u32_dpp {v(vTF)}, {v(vTF)}, {v(vTF)} {c} row_mask:0xf bank_mask:0xf"
            C_ = [(f"s_memtime {s(PR.st[2],2)}\n" if prof else "") + f"""s_waitcnt vmcnt({nl})
                  s_memtime {s(sNw,2)}
                  v_subrev_u32 {v(vTF)}, {s(sRt)}, {v(vTF)}""" + (f"\ns_memtime {s(PR.st[3],2)}" if prof else "")]
            C_ += [dp("row_ror:8")] * (TN - 1) + [dp("row_ror:4"), dp("row_ror:2"), dp("row_ror:1")]
            C_ += [f"""s_waitcnt lgkmcnt(0)
                  s_sub_u32 {s(sN)}, {s(sNw)}, {s(sCk)}
                  v_cvt_f32_u32 {v(vTF)}, {v(vTF)}
                  v_cvt_f32_u32 {v(vTt)}, {s(sN)}""",
                  f"v_fma_f32 {v(vTF)}, {v(vTF)}, {v(vTI)}, -{v(vTt)}\nv_mul_f32 {v(vTF)}, {f32bits(1.0 / int(optv.get('tfu', 42)))}, {v(vTF)}",
                  f"v_cvt_u32_f32 {v(vTF)}, {v(vTF)}\nv_readfirstlane_b32 {s(sN)}, {v(vTF)}"]
            for i, x in enumerate(C_): at[tfc + i] = x
            cp = list(range(tfc + len(C_), 80, 2)); J = len(cp)
            at[cp[0] - 1] += f"\ns_min_u32 {s(sN)}, {s(sN)}, {J + tfx}"
            for k, i in enumerate(cp):
                at[i] = f"s_cmp_eq_u32 {s(sN)}, {k}\ns_cbranch_scc1 {bs}e{k}\n{bs}f{k}:"
                def e_cold(k=k):
                    A(f"{bs}e{k}:\n{XL[0]}"); PR.stamp(6); A(f"s_branch {bs}f{k}")
                cold.append(e_cold)
        for ks in range(20):
            LG.wait(ks)
            for j in range(4):
                c = "0" if ks == 0 else v(ACC + 4*j, 4)
                A(f"v_mfma_f32_16x16x32_bf16 {v(ACC+4*j,4)}, {r(Wf(j,ks),4)}, {v(B[ks % NB],4)}, {c}")
                if 4 * ks + j in at: A(at[4 * ks + j])
                if j == 0 and ks + NB - 1 < 20: rd(ks + NB - 1)
                elif j & 1 and side:
                    x = side.pop(0)
                    if x == "HP":
                        if SL: poll_ge(A, vPg, vHq, v(vNq), 0xf000fff, sCnt, "role_abort", first=False, slp=4, soff=s(sT2))
                        else: poll_ge(A, vPg, vHp, s(sNeed), 0xfff, sCnt, "role_abort", first=False, slp=4, soff=s(sT2))
                        if PROF_ON[0] and "pev" in opt: A(f"s_memrealtime {s(sNw,2)}")
                    elif x: A(x)
        assert not side
        A(f"""
        s_xor_b32 {s(sBuf)}, {s(sBuf)}, 0x10000
        v_xor_b32 {v(vLr)}, 0x10000, {v(vLr)}
        s_cmp_lt_u32 {s(sPn)}, 63
        s_cselect_b32 {s(sT0)}, {32*1280}, 0
        s_add_u32 {s(sHo)}, {s(sHo)}, {s(sT0)}
        s_mul_i32 {s(sT0)}, {s(S_X)}, {H_X}
        s_cmp_eq_u32 {s(sPn)}, {HLOC // 2 - 1}
        s_cselect_b32 {s(sT0)}, {s(sT0)}, 0
        s_sub_u32 {s(sHo)}, {s(sHo)}, {s(sT0)}
        v_mov_b32 {v(t2)}, {s(sPn)}
        """)
        for x in epilogue(0) + epilogue(1): A(x)
        A(f"""
        s_cmp_gt_u32 {s(sPn)}, {1 if "d1" in opt and cls < 3 else 2}
        s_cbranch_scc1 {bs}3
        {f"s_memrealtime {s(sRt,2)}" if PROF_ON[0] and not TF else ""}
        s_waitcnt vmcnt(0) lgkmcnt(0)
        {f"s_memrealtime {s(sCk,2)}" if PROF_ON[0] and not TF else ""}
        buffer_store_dword {v(t2)}, {v(vFl)}, {WSR}, 0 offen
        s_cmp_eq_u32 {s(sPn)}, {1 if "d1" in opt and cls == 3 else 2}
        s_barrier
        s_cbranch_scc1 {top}
        s_mov_b32 {s(sT2)}, {CPROG}
        """)
        poll_ge(A, vTd, vHp, 1, 1 << 28, sCnt, "role_abort", soff=s(sT2))
        A(f"v_readlane_b32 {s(sT0)}, {v(vTd)}, 28\ns_lshl_b32 {s(sT0)}, {s(sT0)}, 13\ns_add_u32 {s(sXp)}, {s(sXp)}, {s(sT0)}")
        if TF: A(f"s_add_u32 {s(sFr)}, {s(sT0)}, {OFF_TF - 8192}")
        ev(A, 3, t0); ev(A, 7, t0, sRt); ev(A, 8, t0, sCk); ev(A, 9, t0, sNw)
        A(f"s_branch {bs}2\n{bs}0:")
        if cls == 2: A(f"s_waitcnt vmcnt(0)\nbuffer_store_dword {v(t3)}, {v(vFk)}, {WSR}, 0 offen")
        A(f"s_sleep {optv.get('bsl2', 24)}")
        if TC:
            A(f"""
            s_mov_b32 {s(sN)}, {J + int(optv.get('tfe', 3)) + xp // 10}
            {bs}3:
            s_cmp_lt_u32 {s(sN)}, {J}
            s_cbranch_scc1 {bs}4
            s_waitcnt vmcnt(2) lgkmcnt(0)
            s_barrier
            """)
            PR.stamp(5)
            A(f"""
            s_sub_u32 {s(sT0)}, {s(sN)}, {J + int(optv.get('tfe', 3))}
            s_cbranch_scc1 {bs}6
            {bs}5:
            s_nop 6
            s_sub_u32 {s(sT0)}, {s(sT0)}, 1
            s_cbranch_scc0 {bs}5
            {bs}6:
            {XL[0]}
            """)
            PR.stamp(6)
            A(f"{bs}7:")
            def e4():
                A(f"{bs}4:\ns_waitcnt vmcnt(4) lgkmcnt(0)\ns_barrier"); PR.stamp(5); A(f"s_branch {bs}7")
            cold.append(e4)
            PR.cnt(1, sN)
        else:
            A(f"{bs}3:\ns_waitcnt vmcnt(2) lgkmcnt(0)\ns_barrier")
            PR.stamp(5)
        if not XC or NP > 1: PR.dump(0, True)
        if XC and not TC:
            nap(A, xp); A(XL[0]); PR.stamp(6)
        t_reset(cls)
        def setup():
            A(f"""
            s_and_b32 {s(sT0)}, {s(sSeg)}, 3
            s_mul_i32 {s(sMemCur)}, {s(sT0)}, {MEM_SLOT}
            s_add_u32 {s(sMemCur)}, {s(sMemCur)}, {s(sMemB)}
            s_lshl_b32 {s(sT1)}, {s(sT0)}, 15
            s_add_u32 {s(sSVs)}, {s(sSVb)}, {s(sT1)}
            s_add_u32 {s(sSeg)}, {s(sSeg)}, 1
            v_mov_b32 {v(t3)}, {s(sSeg)}
            """)
            if cls == 0:
                A(f"""
                s_lshl_b32 {s(sT1)}, {s(sT0)}, 12
                v_add_u32 {v(vKr)}, {s(sT1)}, {v(vKrR)}
                ds_read_b128 {v(KX,4)}, {v(vKr)}
                ds_read_b128 {v(KX+4,4)}, {v(vKr)} offset:1024
                """)
            if cls == 2: A(f"s_mul_i32 {s(sKm)}, {s(sT0)}, {S5}\ns_add_u32 {s(sKm)}, {s(sKm)}, {s(sKmb)}")
            for a_ in acc:
                for i in range(4): A(f"v_mov_b32 {v(a_+i)}, 0")
            if MP:
                for R_, n in zip(PS[0], (4, 4, 2)):
                    for i in range(n): A(f"v_mov_b32 {v(R_+i)}, -1")
        if XC:
            def xred(k): return f"""
            v_mfma_f32_16x16x32_bf16 {v(XD,4)}, {v(SELA,4)}, {v(XR[k],4)}, 0
            v_mfma_f32_16x16x32_bf16 {v(XD,4)}, {v(SELA,4)}, {v(XR[k]+4,4)}, {v(XD,4)}
            v_cmp_u_f32 vcc, {v(XD)}, {v(XD+1)}
            v_cvt_pk_bf16_f32 {v(t1)}, {v(XD)}, {v(XD+1)}
            """
            setup()
            A(f"s_mov_b32 {s(sCnt)}, 0\ns_add_u32 {s(sT0)}, {s(sMemCur)}, {s(sXm)}")
            for k in range(1, NP):
                nap(A, int(optv.get("xd", 40)) - (24 if k == 1 else 2)); A(XL[k])
            if TC: A(f"s_cmp_lt_u32 {s(sN)}, {J}\ns_cbranch_scc1 {bs}8\ns_waitcnt vmcnt(0)\n{bs}8:")
            A(f"""
            s_waitcnt vmcnt({2 if TC else 2 * (NP - 1)})
            {f"s_memtime {s(PR.st[0],2)}" if prof and "x0" in opt else ""}
            {xred(0)}
            s_cbranch_vccnz {bs}xr
            {bs}x:
            buffer_store_dword {v(t1)}, {v(vL4)}, {WSR}, {s(sT0)} offen
            """)
            PR.stamp(7); PR.cnt(2, sCnt)
            A(f"buffer_store_dword {v(t2)}, {v(vFl)}, {WSR}, 0 offen")
            nap(A, int(optv.get("xm", 0)))
            if NP == 1: PR.dump(1, True)
            A(f"s_branch {bs}P")
            def x_cold():
                A(f"{bs}xr:")
                for k in range(NP):
                    A(XL[k]); spin()
                    A(f"s_waitcnt vmcnt({2 * (NP - 1)})\n{xred((k + 1) % NP)}\ns_cbranch_vccz {bs}x")
                A(f"s_branch {bs}xr")
            cold.append(x_cold)
        A(f"""
        {bs}S:
        s_sleep {optv.get('bslv' if cls == 3 else 'bsl', optv.get('bsl', 4))}
        {bs}2:
        """)
        setup()
        if "bp" in optv and XC: A(".p2align 7\n" + "s_nop 0\n" * int(optv.get(f"bp{cls}", optv["bp"])))
        A(f"{bs}P:")
        PR.stamp(0)
        if TC: A(f"s_memrealtime {s(sRt,2)}\ns_memtime {s(sCk,2)}")
        if MP: mem_poll2(cls, not XC)
        else: mem_poll(cls)
        PR.stamp(1)
        PR.cnt(0, sCnt)
        if prof: A("s_waitcnt lgkmcnt(0)")
        if TF and cls == 3: A(f"s_memtime {s(sNw,2)}")
        for b in range(10):
            A(f"ds_read_b128 {v(MF+4*b,4)}, {v(vL16)} offset:{LDS_MEM+b*1024}")
        od = optv.get("bord", "01" * 7 + "000111")
        assert od.count("0") == 10 and od.count("1") == 10
        def add2(a_): return [f"v_add_f32 {v(a_)}, {v(a_)}, {v(a_+2)}", f"v_add_f32 {v(a_+1)}, {v(a_+1)}, {v(a_+3)}"]
        def epi(j):
            E = add2(acc[j]) + [f"v_cvt_pk_bf16_f32 {v(PB[0]+j)}, {v(acc[j])}, {v(acc[j]+1)}"]
            if cls == 3:
                E += [f"v_mov_b32_dpp {v(PB[1]+j)}, {v(PB[0]+j)} quad_perm:[1,0,3,2] row_mask:0xf bank_mask:0xf",
                      f"v_perm_b32 {v(PB[0]+j)}, {v(PB[1]+j)}, {v(PB[0]+j)}, {v(vSel)}"]
            else: E += [f"ds_write2_b32 {v(vTw)}, {v(PB[0]+j)}, {v(PB[0]+j)} offset0:{128*j} offset1:{128*j + (4 if cls == 0 else 1)}"]
            return E
        e0 = od.rindex("0"); seen = -1; mk = int(optv.get(f"mk{cls}", optv.get("mk", 6)))
        for i, c in enumerate(od):
            j = int(c); b = od[:i].count(c)
            if b > seen: A(f"s_waitcnt lgkmcnt({9-b})"); seen = b
            A(f"v_smfmac_f32_16x16x64_bf16 {v(acc[j],4)}, {v(MF+4*b,4)}, {r(Wf(j,2*b),8)}, {v(vIdx)}")
            if i == mk and cls >= 2: A(f"buffer_store_dword {v(t3)}, {v(vMk)}, {WSR}, 0 offen")
            if i in (e0, e0 + 1) and e0 + 2 < 20: A("s_nop 2")
            if i == min(e0 + 2, 19):
                for x in epi(0): A(x)
        for x in epi(1): A(x)
        PR.stamp(2)
        sx = A.label("sx")
        smf = [f"v_mfma_f32_16x16x32_bf16 {v(accS,4)}, {v(KX,4)}, {v(QF,4)}, 0",
               f"v_mfma_f32_16x16x32_bf16 {v(accS,4)}, {v(KX+4,4)}, {v(QF+4,4)}, {v(accS,4)}"]
        chk_s = f"v_cmp_u_f32 vcc, {v(accS)}, {v(accS+1)}"
        if cls < 2:
            A(f"s_mov_b32 {s(sCnt)}, 0")
            nap(A, int(optv.get(f"tq{cls}", optv.get("tq", 6))))
            A(f"{sx}:")
            q_, k_ = trq(), trk()
            R = q_ if cls == 0 else q_[:2] + k_[:2] + q_[2:] + k_[2:]
            for x in R: A(x)
            A(f"""
            s_waitcnt lgkmcnt({0 if prof else len(R) // 2})
            {smf[0]}
            s_waitcnt lgkmcnt(0)
            {smf[1]}
            {chk_s}
            """)
            if cls == 0:
                A(f"""
                s_mov_b64 exec, {s(sMS,2)}
                s_cbranch_vccnz {sx}_r
                buffer_store_dwordx4 {v(accS,4)}, {v(vL16)}, {WSR}, {s(sSVs)} offen
                s_mov_b64 exec, -1
                """)
            else:
                A(f"""
                v_cndmask_b32 {v(t0)}, {v(accS)}, {v(accS+1)}, {s(sMhi,2)}
                s_cbranch_vccnz {sx}_r
                buffer_store_dword {v(t0)}, {v(vL4)}, {WSR}, {s(sSVs)} offen
                """)
            def s_cold():
                A(f"{sx}_r:\ns_mov_b64 exec, -1"); spin(); A(f"s_branch {sx}")
            cold.append(s_cold)
            if not TC: PR.cnt(1, sCnt)
        elif cls == 3:
            A(f"buffer_store_dwordx2 {v(PB[0],2)}, {v(vPub)}, {WSR}, {s(sSVs)} offen")
            if TF:
                A(f"""
                s_cmp_eq_u32 {s(sFw)}, 0
                s_cbranch_scc1 {bs}9
                s_sub_u32 {s(sT0)}, {s(sNw)}, {s(sCk)}
                s_add_u32 {s(sT0)}, {s(sT0)}, {optv['tf']}
                v_cvt_f32_u32 {v(vTt)}, {s(sT0)}
                s_lshl_b32 {s(sT1)}, {s(sRt)}, 4
                v_mul_f32 {v(vTt)}, {v(vTt)}, {v(vTK)}
                s_and_b32 {s(sT0)}, {s(sSeg)}, 63
                v_cvt_u32_f32 {v(vTt)}, {v(vTt)}
                s_lshl_b32 {s(sT0)}, {s(sT0)}, 14
                v_add_u32 {v(vTt)}, {s(sT1)}, {v(vTt)}
                s_add_u32 {s(sT0)}, {s(sT0)}, {s(sFw)}
                s_add_u32 {s(sT1)}, {s(sT0)}, 8192
                s_mov_b64 exec, 0xffffffff
                buffer_store_dword {v(vTt)}, {v(vL4)}, {WSR}, {s(sT0)} offen sc1
                buffer_store_dword {v(vTt)}, {v(vL4)}, {WSR}, {s(sT1)} offen sc1
                s_mov_b64 exec, -1
                {bs}9:
                """)
        else:
            A(f"s_mov_b32 {s(sCnt)}, 0")
            nap(A, int(optv.get("tq2", 24)))
            A(f"{sx}:")
            for x in trk(): A(x)
            A(f"""
            s_waitcnt lgkmcnt(0)
            v_pk_max_u16 {v(t0)}, {v(KX)}, {v(KX+1)}
            v_pk_max_u16 {v(t1)}, {v(KX+2)}, {v(KX+3)}
            v_pk_max_u16 {v(t0)}, {v(t0)}, {v(KX+4)}
            v_pk_max_u16 {v(t1)}, {v(t1)}, {v(KX+5)}
            v_pk_max_u16 {v(t0)}, {v(t0)}, {v(KX+6)}
            v_pk_max_u16 {v(t1)}, {v(t1)}, {v(KX+7)}
            v_pk_max_u16 {v(t0)}, {v(t0)}, {v(t1)}
            v_lshlrev_b32 {v(t1)}, 16, {v(t0)}
            v_max_u32 {v(t0)}, {v(t0)}, {v(t1)}
            v_cmp_le_u32 vcc, 0xffff0000, {v(t0)}
            s_cbranch_vccnz {sx}_r
            buffer_store_dwordx4 {v(KX,4)}, {v(vKm)}, {WSR}, {s(sKm)} offen
            buffer_store_dwordx4 {v(KX+4,4)}, {v(vKm)}, {WSR}, {s(sKm)} offen offset:512
            """)
            def k_cold():
                A(f"{sx}_r:"); spin(); A(f"s_branch {sx}")
            cold.append(k_cold)
        PR.stamp(3)
        A(f"s_add_u32 {s(sT0)}, {s(sSeg)}, 2\ns_and_b32 {s(sT0)}, {s(sT0)}, 3")
        if cls == 2: A(f"s_cmp_lg_u32 {s(sSeg)}, 64\ns_cbranch_scc1 {top}\ns_waitcnt vmcnt(0)\nbuffer_store_dword {v(t3)}, {v(vFk)}, {WSR}, 0 offen")
        A(f"s_cmp_eq_u32 {s(sSeg)}, 64\ns_cbranch_scc1 b_end")
        nap(A, int(optv.get("brs", 0)))
        if cls == 0:
            A(f"""
            s_lshl_b32 {s(sT0)}, {s(sT0)}, 15
            s_add_u32 {s(sT0)}, {s(sT0)}, {s(sRb)}
            buffer_store_dwordx4 {v(SENT,4)}, {v(vL16)}, {WSR}, {s(sT0)} offen
            """)
        elif cls == 1:
            A(f"""
            s_mul_i32 {s(sT0)}, {s(sT0)}, {MEM_SLOT}
            s_add_u32 {s(sT0)}, {s(sT0)}, {s(sRb)}
            buffer_store_dwordx4 {v(SENT,4)}, {v(vL16)}, {WSR}, {s(sT0)} offen
            """)
        elif cls == 3:
            A(f"""
            s_lshl_b32 {s(sT0)}, {s(sT0)}, 15
            s_add_u32 {s(sT0)}, {s(sT0)}, {s(sSVb)}
            buffer_store_dwordx2 {v(SENT,2)}, {v(vPub)}, {WSR}, {s(sT0)} offen
            s_add_u32 {s(sT0)}, {s(sSeg)}, 1
            s_and_b32 {s(sT0)}, {s(sT0)}, 3
            s_mul_i32 {s(sT0)}, {s(sT0)}, {XP_SLOT*NP}
            s_add_u32 {s(sT0)}, {s(sT0)}, {s(sXb)}
            s_add_u32 {s(sT1)}, {s(sT0)}, {s(sRb)}
            """)
            for i in range(max(1, (20 * NP - 1) // 24)):
                A(f"buffer_store_dwordx4 {v(SENT,4)}, {v(vXr)}, {WSR}, {s(sT0)} offen sc1\ns_add_u32 {s(sT0)}, {s(sT0)}, {24*8192}")
            if NP > 1: A(f"buffer_store_dwordx4 {v(SENT,4)}, {v(vXr)}, {WSR}, {s(sT1)} offen sc1")
        A(f"s_branch {top}")
        for f in cold: f()
    for cls in range(4): emit(cls)
    A("b_end:")
    PR.dump(); PR.out(MF)
    ev(A, 4, t0)
    if "spec" in opt: A(f"s_cmp_lt_u32 {s(S_T)}, 4\ns_waitcnt vmcnt(0) lgkmcnt(0)\ns_cbranch_scc1 r_help")
    A(f"""
    s_endpgm
    chain_abort:
    v_mov_b32 {v(t0)}, 128
    v_mov_b32 {v(t1)}, 1
    s_mov_b64 exec, 1
    buffer_atomic_add {v(t1)}, {v(t0)}, {s(S_DBG,4)}, 0 offen
    s_endpgm
    """)
```

```python
from common import *
G1, G2, GM, G3, GT = 192, 196, 200, 204, 208
G1_N, G2_N, GM_N = 16, 64 + 40, 20
G0, G0_N = 32, 2

G0N = [G0_N]
def g0_add(A, va_, st):
    A(f"""
    s_lshl_b32 {s(st)}, {s(S_X)}, 2
    s_add_u32 {s(st)}, {s(st)}, {G0}
    v_mov_b32 {v(va_)}, {s(st)}
    v_mov_b32 {v(va_+1)}, 1
    s_waitcnt vmcnt(0)
    s_mov_b64 exec, 1
    buffer_atomic_add {v(va_+1)}, {v(va_)}, {s(S_DBG,4)}, 0 offen
    s_mov_b64 exec, -1
    """)

def g0_wait(A, va_, scnt, abort="role_abort", slp=4, n=None):
    if n is None: n = G0N[0]
    lp, ok = A.label("gw"), A.label("gk")
    A(f"""
    s_lshl_b32 {s(scnt)}, {s(S_X)}, 2
    s_add_u32 {s(scnt)}, {s(scnt)}, {G0}
    v_mov_b32 {v(va_)}, {s(scnt)}
    s_mov_b32 {s(scnt)}, 0
    s_mov_b64 exec, 1
    {lp}:
    buffer_load_dword {v(va_+1)}, {v(va_)}, {s(S_DBG,4)}, 0 offen sc1
    s_add_u32 {s(scnt)}, {s(scnt)}, 1
    s_cmp_gt_u32 {s(scnt)}, {SPIN_LIMIT}
    s_cbranch_scc1 {abort}
    s_waitcnt vmcnt(0)
    v_cmp_gt_u32 vcc, {n}, {v(va_+1)}
    s_cbranch_vccz {ok}
    s_sleep {slp}
    s_branch {lp}
    {ok}:
    s_mov_b64 exec, -1
    """)

def g_add(A, off, va_):
    A(f"""
    v_mov_b32 {v(va_)}, {off}
    v_mov_b32 {v(va_+1)}, 1
    s_waitcnt vmcnt(0)
    s_mov_b64 exec, 1
    buffer_atomic_add {v(va_+1)}, {v(va_)}, {s(S_DBG,4)}, 0 offen sc1
    s_mov_b64 exec, -1
    """)

def g_wait(A, off, n, va_, scnt, abort="role_abort", slp=4):
    lp, ok = A.label("gw"), A.label("gk")
    A(f"""
    v_mov_b32 {v(va_)}, {off}
    s_mov_b32 {s(scnt)}, 0
    {lp}:
    buffer_load_dword {v(va_+1)}, {v(va_)}, {s(S_DBG,4)}, 0 offen sc1
    s_add_u32 {s(scnt)}, {s(scnt)}, 1
    s_cmp_gt_u32 {s(scnt)}, {SPIN_LIMIT}
    s_cbranch_scc1 {abort}
    s_waitcnt vmcnt(0)
    v_cmp_gt_u32 vcc, {n}, {v(va_+1)}
    s_cbranch_vccz {ok}
    s_sleep {slp}
    s_branch {lp}
    {ok}:
    """)

def boot_sm(A, sWv, opt=()):
    optv = dict(o.split("=") for o in opt if "=" in o)
    SM0 = 24; a, b, c = 28, 29, 30
    assert sWv not in range(24, 32)
    L = V_LANE; WSR = s(S_WS, 4)
    srd(A, SM0, "mem0")
    A(f"""
    v_lshlrev_b32 v2, 4, {v(L)}
    v_lshlrev_b32 v3, 7, {v(L)}
    v_mov_b32 v4, -1
    v_mov_b32 v5, -1
    v_mov_b32 v6, -1
    v_mov_b32 v7, -1
    v_mov_b32 v8, 0
    v_mov_b32 v9, 0
    v_mov_b32 v10, 0
    v_mov_b32 v11, 0
    v_lshrrev_b32 v12, 4, {v(L)}
    v_and_b32 v13, 15, {v(L)}
    v_lshlrev_b32 v13, 4, v13
    v_lshl_add_u32 v14, v12, 12, v13
    v_lshl_add_u32 v15, v12, 11, v13
    s_lshl_b32 s{a}, {s(S_X)}, 8
    s_cmp_lg_u32 {s(sWv)}, 4
    s_cbranch_scc1 boot_nf
    buffer_load_dwordx4 v[40:43], v14, {WSR}, s{a} offen sc1
    s_waitcnt vmcnt(0)
    buffer_store_dwordx4 v[8:11], v14, {WSR}, s{a} offen
    """)
    g0_add(A, 16, c)
    ev(A, 6, 60)
    A(f"""
    boot_nf:
    """)
    C2 = "c2" in opt; C3 = "c3" in opt
    NXB = 10 * XPN[0]
    if C2:
        A(f"""
        s_lshl_b32 s{b}, {s(S_X)}, 3
        s_add_u32 s{b}, s{b}, {s(sWv)}
        s_mul_i32 s{b}, s{b}, {SV_X // 8}
        s_add_u32 s{b}, s{b}, {OFF_SV2}
        buffer_load_dword v44, v3, {WSR}, s{b} offen sc1
        s_add_u32 s{c}, s{b}, 8192
        buffer_load_dword v45, v3, {WSR}, s{c} offen sc1
        s_add_u32 s{c}, s{b}, 10240
        buffer_load_dword v54, v3, {WSR}, s{c} offen sc1
        """)
    else:
        A(f"""
        s_lshl_b32 s{b}, {s(S_X)}, 17
        s_lshl_b32 s{c}, {s(sWv)}, 14
        s_add_u32 s{b}, s{b}, s{c}
        s_add_u32 s{b}, s{b}, {OFF_SV2 if C3 else OFF_SV}
        buffer_load_dword v44, v3, {WSR}, s{b} offen sc1
        s_add_u32 s{c}, s{b}, 8192
        buffer_load_dword v45, v3, {WSR}, s{c} offen sc1
        """)
    A(f"""
    v_bfe_u32 v13, {v(L)}, 5, 1
    v_lshlrev_b32 v12, 6, v13
    v_bfe_u32 v13, {v(L)}, 4, 1
    v_lshl_add_u32 v12, v13, 4, v12
    v_bfe_u32 v13, {v(L)}, 1, 1
    v_lshl_add_u32 v12, v13, 2, v12
    v_bfe_u32 v13, {v(L)}, 2, 2
    v_lshlrev_b32 v13, 1, v13
    v_and_b32 v18, 1, {v(L)}
    v_add_u32 v13, v13, v18
    v_mul_u32_u24 v13, 1280, v13
    v_add_u32 v12, v12, v13
    s_waitcnt lgkmcnt(0)
    """)
    for k in range(2):
        if k == 0: A(f"s_mov_b32 s31, {s(sWv)}")
        else: A(f"s_add_u32 s31, {s(sWv)}, 8\ns_min_u32 s31, s31, 9")
        A(f"""
        s_lshl_b32 s{c}, s31, 7
        buffer_load_dword v{20+4*k}, v12, {s(SM0,4)}, s{c} offen
        buffer_load_dword v{21+4*k}, v12, {s(SM0,4)}, s{c} offen offset:32
        buffer_load_dword v{22+4*k}, v12, {s(SM0,4)}, s{c} offen offset:8
        buffer_load_dword v{23+4*k}, v12, {s(SM0,4)}, s{c} offen offset:40
        s_lshl_b32 s31, s31, 10
        s_mul_i32 s{c}, {s(S_X)}, 10240
        s_add_u32 s{32+2*k}, s31, s{c}
        s_add_u32 s{32+2*k}, s{32+2*k}, {OFF_MEM}
        s_add_u32 s{33+2*k}, s{32+2*k}, {MEM_SLOT}
        buffer_load_dwordx4 v[46:49], v2, {WSR}, s{32+2*k} offen sc1
        buffer_load_dwordx4 v[50:53], v2, {WSR}, s{33+2*k} offen sc1
        """)
        if C3:
            A(f"""
            s_add_u32 s{36+2*k}, s{32+2*k}, {2*MEM_SLOT}
            s_add_u32 s{37+2*k}, s{32+2*k}, {3*MEM_SLOT}
            buffer_load_dwordx4 v[46:49], v2, {WSR}, s{36+2*k} offen sc1
            buffer_load_dwordx4 v[50:53], v2, {WSR}, s{37+2*k} offen sc1
            """)
    A("s_waitcnt vmcnt(0)")
    ev(A, 5, 60)
    for k in range(2):
        A(f"buffer_store_dwordx4 v[{20+4*k}:{23+4*k}], v2, {WSR}, s{32+2*k} offen\nbuffer_store_dwordx4 v[4:7], v2, {WSR}, s{33+2*k} offen")
        if C3: A(f"buffer_store_dwordx4 v[4:7], v2, {WSR}, s{36+2*k} offen\nbuffer_store_dwordx4 v[4:7], v2, {WSR}, s{37+2*k} offen")
    for i in range(18 if C2 else 16):
        A(f"buffer_store_dwordx4 v[4:7], v2, {WSR}, s{b} offen offset:{(i % 4)*1024}")
        if i % 4 == 3: A(f"s_add_u32 s{b}, s{b}, 4096")
    A(f"""
    s_mul_i32 s{c}, {s(sWv)}, {NXB*8192}
    s_add_u32 s{c}, s{c}, s{a}
    s_add_u32 s{c}, s{c}, {OFF_XP}
    """)
    for i in range(NXB):
        A(f"buffer_store_dwordx4 v[4:7], v15, {WSR}, s{c} offen sc1\ns_add_u32 s{c}, s{c}, 8192")
    if "x8" in opt:
        n5 = (20 * XPN[0] + 7) // 8
        A(f"s_mul_i32 s{c}, {s(sWv)}, {n5*8192}\ns_add_u32 s{c}, s{c}, s{a}\ns_add_u32 s{c}, s{c}, {OFF_XP + 0x400000}")
        for i in range(n5):
            A(f"buffer_store_dwordx4 v[4:7], v15, {WSR}, s{c} offen sc1\ns_add_u32 s{c}, s{c}, 8192")
    A(f"""
    v_lshrrev_b32 v12, 3, {v(L)}
    v_and_b32 v13, 7, {v(L)}
    v_lshlrev_b32 v13, 4, v13
    v_lshl_add_u32 v12, v12, 10, v13
    s_lshl_b32 s{c}, {s(sWv)}, 13
    s_lshl_b32 s31, {s(S_X)}, 7
    s_add_u32 s{c}, s{c}, s31
    s_add_u32 s{c}, s{c}, {OFF_AFL}
    buffer_store_dwordx4 v[4:7], v12, {WSR}, s{c} offen sc1
    """)
    A(f"s_waitcnt vmcnt(0)\ns_barrier\ns_cmp_lg_u32 {s(S_W)}, 0\ns_cbranch_scc1 boot_ng")
    g_add(A, G1, 16)
    A(f"""
    boot_ng:
    s_lshl_b32 s{a}, {s(S_X)}, 22
    s_lshl_b32 s{b}, {s(sWv)}, 13
    s_add_u32 s{a}, s{a}, s{b}
    s_add_u32 s{a}, s{a}, {OFF_RING}
    """)
    r0 = int(optv.get("rts", 1))
    T = []
    for sl in range(4):
        if sl >= r0: T += [sl * QS + QKV_MAT, sl * QS + QS - 65536, R_U + sl * S4, R_U + sl * S4 + 65536, R_U + sl * S4 + 98304]
        T += [sl * QS, R_U + ((sl + 3) % 4 + 1) * S4 - 65536]
    if "c5" in opt:
        T = [2 * QS + 65536 * i for i in (5, 4, 0, 1, 2, 3)]
    if "s1" in opt:
        A(f"s_cmp_ge_u32 {s(sWv)}, 4\ns_cbranch_scc1 boot_nt")
        T = [o + h for o in T for h in (0, 32768)]
    if "nst" not in opt:
        for i, off in enumerate(T):
            A(f"s_add_u32 s{b}, s{a}, {off}\nbuffer_load_dword v{20 + i}, v3, {WSR}, s{b} offen sc1")
            if i % 2: A(f"s_waitcnt vmcnt({optv.get('std', 2)})")
    A("boot_nt:")

def calib(A, sr, vr, opt=(), word=PPROG + 240):
    optv = dict(o.split("=") for o in opt if "=" in o)
    WSR = s(S_WS, 4)
    c, n, m0_, m1_ = sr + 4, sr + 5, sr + 6, sr + 7
    A(f"""
    s_lshl_b32 s{c}, {s(S_X)}, 8
    s_add_u32 s{c}, s{c}, {OFF_XP + 3*XP_SLOT*XPN[0]}
    s_mov_b32 s{n}, 0
    s_mov_b32 s{m0_}, -1
    s_mov_b32 s{m1_}, -1
    v_lshlrev_b32 v{vr}, 2, {v(V_LANE)}
    v_mov_b32 v{vr+1}, -1
    s_waitcnt vmcnt(0)
    boot_cal:
    s_memtime {s(sr,2)}
    s_waitcnt lgkmcnt(0)
    buffer_store_dword v{vr+1}, v{vr}, {WSR}, s{c} offen sc1
    s_waitcnt vmcnt(0)
    s_memtime {s(sr+2,2)}
    s_waitcnt lgkmcnt(0)
    s_sub_u32 s{sr}, s{sr+2}, s{sr}
    s_min_u32 s{sr}, s{sr}, s{m0_}
    s_mov_b32 s{m0_}, s{m1_}
    s_mov_b32 s{m1_}, s{sr}
    s_xor_b32 s{c}, s{c}, 8192
    s_add_u32 s{n}, s{n}, 1
    s_cmp_lt_u32 s{n}, {2*int(optv.get("ncal", 5))}
    s_cbranch_scc1 boot_cal
    """)
    ev(A, 8, vr)
    g_wait(A, G1, G1_N, vr, n, slp=int(optv.get('g1s', 8)))
    A(f"""
    s_cmp_lt_u32 s{m0_}, s{m1_}
    s_cselect_b32 s{n}, 1, 2
    s_lshl_b32 s{c}, {s(S_X)}, 8
    s_add_u32 s{c}, s{c}, {word}
    v_mov_b32 v{vr}, s{n}
    v_mov_b32 v{vr+1}, s{c}
    s_mov_b64 exec, 1
    buffer_store_dword v{vr}, v{vr+1}, {WSR}, 0 offen
    s_mov_b64 exec, -1
    """)
    ev(A, 7, vr)
    if PROF_ON[0]: A(f"s_lshl_b32 s4, s{m0_}, 16\ns_or_b32 s4, s4, s{m1_}\nv_mov_b32 v{vr}, s4\ns_mov_b64 exec, 1\nbuffer_store_dword v{vr}, v{vr+1}, {WSR}, 0 offen offset:32\ns_mov_b64 exec, -1")

def boot_sm2(A, sWv, sa_, sb_, vS, vL16, vt):
    WSR = s(S_WS, 4)
    for i in range(4): A(f"v_mov_b32 {v(vS+i)}, -1")
    A(f"""
    s_lshl_b32 {s(sb_)}, {s(S_X)}, 3
    s_add_u32 {s(sb_)}, {s(sb_)}, {s(sWv)}
    s_lshl_b32 {s(sa_)}, {s(sb_)}, 10
    s_add_u32 {s(sa_)}, {s(sa_)}, {OFF_R}
    buffer_store_dwordx4 {v(vS,4)}, {v(vL16)}, {WSR}, {s(sa_)} offen sc1
    s_mul_i32 {s(sa_)}, {s(sb_)}, {15*1024}
    s_add_u32 {s(sa_)}, {s(sa_)}, {OFF_YP}
    """)
    for i in range(15):
        A(f"buffer_store_dwordx4 {v(vS,4)}, {v(vL16)}, {WSR}, {s(sa_)} offen sc1\ns_add_u32 {s(sa_)}, {s(sa_)}, 1024")
    g_add(A, G2, vt)

def mod_round(A, sB, SC, SWM, gword, tag, mid=None):
    W, S, ACC = 28, 108, 148
    A(f"""
    v_lshlrev_b32 v12, 2, v0
    buffer_load_dword v13, v12, {s(SC,4)}, 0 offen
    buffer_load_dword v14, v12, {s(SC,4)}, 0 offen offset:1024
    v_lshrrev_b32 v20, 3, v0
    v_and_b32 v21, 7, v0
    v_mul_u32_u24 v22, {20*7680}, v20
    v_lshl_add_u32 v22, v21, 4, v22
    s_lshl_b32 s6, {s(sB)}, 7
    """)
    for i in range(20):
        A(f"buffer_load_dwordx4 v[{W+4*i}:{W+4*i+3}], v22, {s(SWM,4)}, s6 offen nt")
        A(f"s_add_u32 s6, s6, 7680")
    nx = mid() if mid else 0
    assert 20 + nx <= 63
    A(f"s_waitcnt vmcnt({20 + nx})")
    def silu(src, d0, d1):
        A(f"""
        v_lshlrev_b32 v{d0}, 16, v{src}
        v_and_b32 v{d1}, 0xffff0000, v{src}
        v_mul_f32 v16, 0xbfb8aa3b, v{d0}
        v_mul_f32 v17, 0xbfb8aa3b, v{d1}
        v_exp_f32 v16, v16
        v_exp_f32 v17, v17
        v_add_f32 v16, 1.0, v16
        v_add_f32 v17, 1.0, v17
        v_rcp_f32 v16, v16
        v_rcp_f32 v17, v17
        v_mul_f32 v{d0}, v{d0}, v16
        v_mul_f32 v{d1}, v{d1}, v17
        v_cvt_pk_bf16_f32 v16, v{d0}, v{d1}
        v_lshlrev_b32 v{d0}, 16, v16
        v_and_b32 v{d1}, 0xffff0000, v16
        """)
    silu(13, 24, 25); silu(14, 26, 27)
    A(f"""
    v_lshlrev_b32 v12, 3, v0
    ds_write_b64 v12, v[24:25]
    ds_write_b64 v12, v[26:27] offset:2048
    v_mul_u32_u24 v12, 80, v20
    s_waitcnt lgkmcnt(0)
    s_barrier
    """)
    for i in range(5):
        A(f"ds_read_b128 v[{S+4*i}:{S+4*i+3}], v12 offset:{16*i}")
    for i in range(8): A(f"v_mov_b32 v{ACC+i}, 0")
    A("s_waitcnt lgkmcnt(0)")
    for i in range(20): A(f"v_lshrrev_b32 v{S+20+i}, 16, v{S+i}")
    for i in range(20):
        if i % 2 == 0: A(f"s_waitcnt vmcnt({18 - i + nx})")
        for j in range(4):
            A(f"v_dot2c_f32_bf16 v{ACC+2*j}, v{W+4*i+j}, v{S+20+i}\nv_dot2c_f32_bf16 v{ACC+2*j+1}, v{W+4*i+j}, v{S+i}")
    A(f"""
    v_lshlrev_b32 v12, 5, v0
    ds_write_b128 v12, v[{ACC}:{ACC+3}] offset:4096
    ds_write_b128 v12, v[{ACC+4}:{ACC+7}] offset:4112
    v_lshlrev_b32 v12, 2, v0
    s_waitcnt lgkmcnt(0)
    s_barrier
    s_cmp_lg_u32 {s(S_W)}, 0
    s_cbranch_scc1 mod_end{tag}
    """)
    for i in range(16):
        A(f"ds_read2st64_b32 v[{W+2*i}:{W+2*i+1}], v12 offset0:{16+2*i} offset1:{17+2*i}")
    for i in range(1, 16):
        if i % 4 == 1: A(f"s_waitcnt lgkmcnt({max(0, 12 - i)})")
        A(f"v_pk_add_f32 v[{W}:{W+1}], v[{W}:{W+1}], v[{W+2*i}:{W+2*i+1}]")
    A(f"""
    v_add_f32 v{W}, v{W}, v{W+1}
    v_cvt_pk_bf16_f32 v{W}, v{W}, v{W}
    v_lshlrev_b32 v{W}, 16, v{W}
    s_lshl_b32 s6, {s(sB)}, 8
    s_add_u32 s6, s6, {OFF_MOD}
    buffer_store_dword v{W}, v12, {s(S_WS,4)}, s6 offen sc1
    """)
    g_add(A, gword, 16)
    A(f"mod_end{tag}:")
```

```python
from common import *
from k_boot import *

S_WS, S_DBG, S_X, S_W, S_T = 8, 12, 16, 17, 18
V_LANE = 1

LDS_MEM, LDS_T, LDS_T2, LDS_RED = 0, 10240, 12288, 14336
SCALE = 192 ** -0.5
import struct
def f32bits(x): return "0x%08x" % struct.unpack("<I", struct.pack("<f", x))[0]
PMASK_LO, PMASK_HI = 0x00fff000, 0x00fffff0

def gen_chain(A, prof=False, opt=()):
    optv = dict(o.split("=") for o in opt if "=" in o)
    NSEG = int(optv.get("nseg", 64))
    sa = Alloc(20, 100)
    SQ, SK, SV_, SO = sa(4, 4), sa(4, 4), sa(4, 4), sa(4, 4)
    sC, sLH, sP, sHead, sSeg, sCnt = sa(), sa(), sa(), sa(), sa(), sa()
    sT0, sT1, sT2, sM0 = sa(), sa(), sa(), sa()
    sMemCur, sMemNxt = sa(), sa()
    sSVb, sSVgb = sa(), sa()
    sSVs, sSVv, sSVg, sSVgv = sa(), sa(), sa(), sa()
    sSVsz, sSVvz = sa(), sa()
    sSoff = sa()
    sKm, sWm = sa(), sa()
    sKx, sUx = sa(), sa()
    sXPw, sXPr, sXPz, sXPb = sa(), sa(), sa(), sa()
    sMlo, sMhi, sMS = sa(2, 2), sa(2, 2), sa(2, 2)
    sC1, sC2, sC3 = sa(2, 2), sa(2, 2), sa(2, 2)
    sPf, sRoff = sa(), sa()
    sKmb, sWmb, sUb = SK, SK + 1, SK + 2
    NST = 10
    stamps = [sa(2, 2) for _ in range(NST)] if prof else []
    cnts = [SQ, SQ+1, SQ+2] if prof else []

    va = Alloc(2, 176)
    def WOf(ct, kk):
        f = ct * 6 + kk
        return 176 + 4 * f if f < 20 else 256 + 240 + 4 * (f - 20)
    WQ, WK, WV = 256, 256 + 80, 256 + 160
    MF = va(40, 4)
    U = va(16, 4)
    KX = va(8, 4)
    accq, acck, accv, accS = va(4, 4), va(4, 4), va(4, 4), va(4, 4)
    SENT, ONES = va(4, 4), va(4, 4)
    WMD = va(16, 4)
    WMP = va(8, 2)
    PX, PM = va(4, 4), va(2, 2)
    QK = va(2, 2)
    (vL16, vL8, vMemG, vMemG8, vTw, vTw2, vVst, vRedW, vRedR, vMemW, vPf, vCp, vIdx, vSel, vKm,
     vProg, t0, t1, t2, t3) = [va() for _ in range(20)]
    QF = va(8, 4)
    G_SX, G_SM, G_V = MF, MF + 12, MF + 16
    FD = MF + 16
    FD = QF
    FD = va(16, 4)
    ZD = accS
    L = V_LANE
    WSR = s(S_WS, 4)

    def stamp(i):
        if prof: A(f"s_memtime {s(stamps[i],2)}")

    srd(A, SQ, "wq"); srd(A, SK, "wk"); srd(A, SV_, "wv"); srd(A, SO, "wo")
    A(f"""
    s_mov_b32 {s(sC)}, {s(S_T)}
    s_mul_i32 {s(sLH)}, {s(sC)}, 43
    s_lshr_b32 {s(sLH)}, {s(sLH)}, 7
    s_mul_i32 {s(sT0)}, {s(sLH)}, 3
    s_sub_u32 {s(sP)}, {s(sC)}, {s(sT0)}
    s_lshl_b32 {s(sHead)}, {s(S_X)}, 2
    s_add_u32 {s(sHead)}, {s(sHead)}, {s(sLH)}
    """)
    vSrc, vSrcO = MF, MF + 1
    vRdq, vRo = MF + 2, MF + 6
    panel_src_off(A, vSrc, t0, L, 12288)
    A(f"s_lshl_b32 {s(sT0)}, {s(S_W)}, 1")
    panel_rd_addr(A, vRdq, t0, t1, L, s(sT0))
    for b in range(1, 4): A(f"v_add_u32 {v(vRdq+b)}, {40960*b}, {v(vRdq)}")
    panel_src_off(A, vSrcO, t0, L, 0)
    A(f"""
    v_bfe_u32 {v(t0)}, {v(L)}, 3, 2
    v_lshlrev_b32 {v(t0)}, 2, {v(t0)}
    v_bfe_u32 {v(t1)}, {v(L)}, 5, 1
    v_lshl_add_u32 {v(t0)}, {v(t1)}, 1, {v(t0)}
    v_mul_u32_u24 {v(t0)}, 1280, {v(t0)}
    v_add_u32 {v(vSrcO)}, {v(vSrcO)}, {v(t0)}
    s_mul_i32 {s(sM0)}, {s(S_W)}, 10240
    """)
    for ct in range(4):
        panel_rd_addr(A, vRo + ct, t0, t1, L, ct)
        A(f"v_add_u32 {v(vRo+ct)}, {s(sM0)}, {v(vRo+ct)}")
    A(f"""
    s_mul_i32 {s(sT1)}, {s(sHead)}, 384
    s_lshl_b32 {s(sT0)}, {s(sP)}, 7
    s_add_u32 {s(sT1)}, {s(sT1)}, {s(sT0)}
    s_mul_i32 {s(sT0)}, {s(S_W)}, {80*12288}
    s_add_u32 {s(sT1)}, {s(sT1)}, {s(sT0)}
    s_lshl_b32 {s(sT0)}, {s(S_X)}, 2
    s_add_u32 {s(sT0)}, {s(sT0)}, {s(S_W)}
    s_mul_i32 {s(sT2)}, {s(sT0)}, {192*1280}
    s_min_u32 {s(sT0)}, {s(sC)}, 9
    s_lshl_b32 {s(sT0)}, {s(sT0)}, 7
    s_add_u32 {s(sT2)}, {s(sT2)}, {s(sT0)}
    s_waitcnt lgkmcnt(0)
    """)
    CH = {"v": (SV_, WV), "k": (SK, WK), "q": (SQ, WQ)}
    order = optv.get("word", "v1k1q1v0k0q0o2o1o0")
    order = [(order[i], int(order[i+1])) for i in range(0, len(order), 2)]
    DEPTH = int(optv.get("wdep", 2))
    assert DEPTH <= 3
    VMW = Cnt(A, "vmcnt", 63)
    def w_issue(i):
        m, h = order[i]; buf = i % 4
        for n in range(10 if m != "o" else 8):
            if m != "o":
                A(f"s_add_u32 m0, {s(sM0)}, {buf*40960 + n*1024}\ns_add_u32 {s(sT0)}, {s(sT1)}, {(h*320 + n*8)*12288}")
                VMW.issue(f"buffer_load_dwordx4 {v(vSrc)}, {s(CH[m][0],4)}, {s(sT0)} offen nt lds", i)
            else:
                nn = h * 8 + n
                rows = 64 * (nn >> 3) + 32 * ((nn >> 2) & 1) + 16 * (nn & 1) + ((nn >> 1) & 1)
                A(f"s_add_u32 m0, {s(sM0)}, {buf*40960 + n*1024}\ns_add_u32 {s(sT0)}, {s(sT2)}, {rows*1280}")
                VMW.issue(f"buffer_load_dwordx4 {v(vSrcO)}, {s(SO,4)}, {s(sT0)} offen nt lds", i)
    def w_read(i):
        m, h = order[i]; buf = i % 4
        VMW.wait(i)
        if i + DEPTH < len(order): w_issue(i + DEPTH)
        if m != "o":
            A("s_barrier")
            for ks in range(10): panel_read_frag(A, CH[m][1] + 4 * (h * 10 + ks), vRdq + buf, ks * 4096)
            A("s_waitcnt lgkmcnt(0)\ns_barrier")
        else:
            for ct in range(4):
                A(f"v_add_u32 {v(t0)}, {buf*40960}, {v(vRo+ct)}")
                for k2 in range(2): panel_read_frag(A, WOf(ct, 2 * h + k2), t0, k2 * 4096)
            A("s_waitcnt lgkmcnt(0)")
    if int(optv.get('cw', 0)): A(f"s_sleep {optv['cw']}")
    for i in range(DEPTH): w_issue(i)
    for i in range(len(order)):
        w_read(i)
    A("s_barrier")
    ev(A, 1, t0)
    if "wonly" in opt: A("s_endpgm")
    for i in range(4):
        A(f"v_mov_b32 {v(SENT+i)}, -1\nv_mov_b32 {v(ONES+i)}, 0x3f803f80")
    g_, q_, hb_, fl_ = MF, MF + 1, MF + 2, MF + 3
    A(f"""
    v_lshlrev_b32 {v(vL16)}, 4, {v(L)}
    v_lshlrev_b32 {v(vL8)}, 3, {v(L)}
    s_mul_i32 {s(sT0)}, {s(S_W)}, 2560
    v_add_u32 {v(vMemG)}, {s(sT0)}, {v(vL16)}
    s_add_u32 {s(sT0)}, {s(sT0)}, 2048
    v_add_u32 {v(vMemG8)}, {s(sT0)}, {v(vL8)}
    v_lshrrev_b32 {v(g_)}, 4, {v(L)}
    v_and_b32 {v(q_)}, 7, {v(L)}
    v_bfe_u32 {v(hb_)}, {v(L)}, 3, 1
    v_and_b32 {v(fl_)}, 15, {v(L)}
    v_bfe_u32 {v(t0)}, {v(L)}, 1, 1
    v_mul_u32_u24 {v(t0)}, 0xaaaa, {v(t0)}
    v_add_u32 {v(vIdx)}, 0x4444, {v(t0)}
    v_bfe_u32 {v(t0)}, {v(L)}, 2, 1
    v_mov_b32 {v(vSel)}, 0x05040100
    v_mov_b32 {v(t1)}, 0x03020706
    v_cmp_eq_u32 vcc, 1, {v(t0)}
    v_cndmask_b32 {v(vSel)}, {v(vSel)}, {v(t1)}, vcc
    s_lshl_b32 {s(sT0)}, {s(S_W)}, 9
    s_add_u32 {s(sT0)}, {s(sT0)}, {LDS_T}
    v_lshlrev_b32 {v(t0)}, 5, {v(fl_)}
    v_lshl_add_u32 {v(t0)}, {v(g_)}, 2, {v(t0)}
    v_add_u32 {v(vTw)}, {s(sT0)}, {v(t0)}
    v_lshl_add_u32 {v(vTw2)}, {v(g_)}, 2, {v(vTw)}
    v_add_u32 {v(vTw2)}, {LDS_T2-LDS_T}, {v(vTw2)}
    s_lshl_b32 {s(sT0)}, {s(S_W)}, 8
    v_lshl_add_u32 {v(vVst)}, {v(L)}, 2, {s(sT0)}
    s_lshl_b32 {s(sT0)}, {s(sC)}, 10
    v_add_u32 {v(vMemW)}, {s(sT0)}, {v(vVst)}
    s_lshl_b32 {s(sT0)}, {s(sP)}, 10
    s_lshl_b32 {s(sT1)}, {s(sP)}, 2
    s_add_u32 {s(sT1)}, {s(sT1)}, 3072
    s_cmp_lt_u32 {s(S_W)}, 2
    s_cselect_b32 {s(sSoff)}, {s(sT0)}, {s(sT1)}
    s_add_u32 {s(sT1)}, {s(sT0)}, 4096
    s_cmp_eq_u32 {s(S_W)}, 0
    s_cselect_b32 {s(sRoff)}, {s(sT0)}, {s(sT1)}
    s_cmp_eq_u32 {s(S_W)}, 2
    s_cselect_b32 {s(sRoff)}, 3072, {s(sRoff)}
    v_bfe_u32 {v(t0)}, {v(L)}, 2, 2
    v_lshlrev_b32 {v(t0)}, 1, {v(t0)}
    v_and_b32 {v(t1)}, 1, {v(L)}
    v_add_u32 {v(t0)}, {v(t0)}, {v(t1)}
    v_lshl_add_u32 {v(t0)}, {v(g_)}, 3, {v(t0)}
    v_lshlrev_b32 {v(t0)}, 4, {v(t0)}
    v_add_u32 {v(vKm)}, {s(sT0)}, {v(t0)}
    ; (g*8+q)*16
    v_lshl_add_u32 {v(t2)}, {v(g_)}, 3, {v(q_)}
    v_lshlrev_b32 {v(t2)}, 4, {v(t2)}
    s_lshl_b32 {s(sT0)}, {s(S_W)}, 11
    s_add_u32 {s(sT0)}, {s(sT0)}, {LDS_RED}
    v_add_u32 {v(vRedW)}, {s(sT0)}, {v(t2)}
    s_lshr_b32 {s(sT0)}, {s(S_W)}, 1
    s_lshl_b32 {s(sT0)}, {s(sT0)}, 10
    s_and_b32 {s(sT1)}, {s(S_W)}, 1
    s_lshl_b32 {s(sT1)}, {s(sT1)}, 8
    s_add_u32 {s(sT0)}, {s(sT0)}, {s(sT1)}
    s_add_u32 {s(sT0)}, {s(sT0)}, {LDS_RED}
    v_and_b32 {v(t0)}, 3, {v(L)}
    v_lshlrev_b32 {v(t0)}, 5, {v(t0)}
    v_bfe_u32 {v(t1)}, {v(L)}, 4, 1
    v_lshl_add_u32 {v(t0)}, {v(t1)}, 4, {v(t0)}
    v_bfe_u32 {v(t1)}, {v(L)}, 5, 1
    v_lshl_add_u32 {v(t0)}, {v(t1)}, 3, {v(t0)}
    v_bfe_u32 {v(t1)}, {v(L)}, 2, 1
    v_lshl_add_u32 {v(t0)}, {v(t1)}, 9, {v(t0)}
    v_bfe_u32 {v(t1)}, {v(L)}, 3, 1
    v_lshl_add_u32 {v(t0)}, {v(t1)}, 7, {v(t0)}
    v_add_u32 {v(vRedR)}, {s(sT0)}, {v(t0)}
    ; masks
    s_mov_b32 {s(sMlo)}, 0x00ff00ff
    s_mov_b32 {s(sMlo+1)}, 0x00ff00ff
    s_mov_b32 {s(sMhi)}, 0xff00ff00
    s_mov_b32 {s(sMhi+1)}, 0xff00ff00
    s_cmp_eq_u32 {s(S_W)}, 0
    s_cselect_b64 {s(sMS,2)}, {s(sMlo,2)}, {s(sMhi,2)}
    s_mul_i32 {s(sMemCur)}, {s(S_X)}, 10240
    s_add_u32 {s(sMemCur)}, {s(sMemCur)}, {OFF_MEM}
    s_add_u32 {s(sMemNxt)}, {s(sMemCur)}, {MEM_SLOT}
    s_lshl_b32 {s(sT0)}, {s(S_X)}, 17
    s_add_u32 {s(sT0)}, {s(sT0)}, {OFF_SV}
    s_lshl_b32 {s(sT1)}, {s(sLH)}, 13
    s_add_u32 {s(sSVb)}, {s(sT0)}, {s(sT1)}
    s_lshl_b32 {s(sT1)}, {s(S_W)}, 13
    s_add_u32 {s(sSVgb)}, {s(sT0)}, {s(sT1)}
    s_lshl_b32 {s(sT2)}, {s(S_X)}, 22
    s_add_u32 {s(sT2)}, {s(sT2)}, {OFF_RING}
    s_mul_i32 {s(sKmb)}, {s(sLH)}, 3072
    s_add_u32 {s(sKmb)}, {s(sKmb)}, {s(sT2)}
    s_add_u32 {s(sKmb)}, {s(sKmb)}, {R_KM}
    s_mul_i32 {s(sKx)}, {s(sLH)}, 12288
    s_add_u32 {s(sKx)}, {s(sKx)}, {s(sT2)}
    s_add_u32 {s(sKx)}, {s(sKx)}, {QKV_MAT}
    s_and_b32 {s(sT0)}, {s(S_W)}, 1
    s_mul_i32 {s(sT0)}, {s(sT0)}, 6144
    s_add_u32 {s(sKx)}, {s(sKx)}, {s(sT0)}
    s_lshl_b32 {s(sT0)}, {s(sP)}, 11
    s_add_u32 {s(sKx)}, {s(sKx)}, {s(sT0)}
    s_mul_i32 {s(sUb)}, {s(S_W)}, 40960
    s_add_u32 {s(sUb)}, {s(sUb)}, {s(sT2)}
    s_add_u32 {s(sUb)}, {s(sUb)}, {R_U}
    s_lshl_b32 {s(sT1)}, {s(sC)}, 12
    s_add_u32 {s(sUb)}, {s(sUb)}, {s(sT1)}
    s_mul_i32 {s(sWmb)}, {s(S_W)}, 10240
    s_add_u32 {s(sWmb)}, {s(sWmb)}, {s(sT2)}
    s_add_u32 {s(sWmb)}, {s(sWmb)}, {R_WM}
    s_lshl_b32 {s(sT1)}, {s(sC)}, 10
    s_add_u32 {s(sWmb)}, {s(sWmb)}, {s(sT1)}
    s_lshl_b32 {s(sXPb)}, {s(sC)}, 14
    s_lshl_b32 {s(sT0)}, {s(S_W)}, 11
    s_add_u32 {s(sXPb)}, {s(sXPb)}, {s(sT0)}
    s_add_u32 {s(sXPb)}, {s(sXPb)}, {OFF_XP}
    s_lshl_b32 {s(sT0)}, {s(S_X)}, 8
    v_lshlrev_b32 {v(vPf)}, 2, {v(L)}
    v_add_u32 {v(vPf)}, {s(sT0)}, {v(vPf)}
    s_lshl_b32 {s(sT1)}, {s(sC)}, 4
    s_add_u32 {s(sT0)}, {s(sT0)}, {s(sT1)}
    s_lshl_b32 {s(sT1)}, {s(S_W)}, 2
    s_add_u32 {s(sT0)}, {s(sT0)}, {s(sT1)}
    s_add_u32 {s(sT0)}, {s(sT0)}, {CPROG}
    v_mov_b32 {v(vCp)}, {s(sT0)}
    v_mov_b32 {v(vProg)}, 0
    s_mov_b32 {s(sSeg)}, 0
    v_bfe_u32 {v(t0)}, {v(L)}, 3, 2
    v_mul_u32_u24 {v(t0)}, {S4}, {v(t0)}
    v_and_b32 {v(t1)}, 7, {v(L)}
    v_lshl_add_u32 {v(t0)}, {v(t1)}, 7, {v(t0)}
    s_lshl_b32 {s(sT0)}, {s(sP)}, 10
    s_add_u32 {s(sT0)}, {s(sT0)}, {s(sKmb)}
    {'' if 'ctch' in opt else ';'}buffer_load_dword {v(t1)}, {v(t0)}, {WSR}, {s(sWmb)} offen sc1
    {'' if 'ctch' in opt else ';'}buffer_load_dword {v(t2)}, {v(t0)}, {WSR}, {s(sT0)} offen sc1
    """)
    g0_wait(A, t0, sCnt, abort='chain_abort')

    def ensure_prog(xm=0):
        lp, ok = A.label("cpw"), A.label("cpo")
        A(f"""
        s_mov_b32 {s(sCnt)}, 0
        {lp}:
        v_cmp_gt_u32 vcc, {s(sPf)}, {v(vProg)}
        s_and_b32 vcc_lo, vcc_lo, {PMASK_LO:#x}
        s_and_b32 vcc_hi, vcc_hi, {PMASK_HI | xm:#x}
        s_cmp_eq_u64 vcc, 0
        s_cbranch_scc1 {ok}
        s_sleep 1
        buffer_load_dword {v(vProg)}, {v(vPf)}, {WSR}, 0 offen sc1
        s_add_u32 {s(sCnt)}, {s(sCnt)}, 1
        s_cmp_gt_u32 {s(sCnt)}, {SPIN_LIMIT}
        s_cbranch_scc1 chain_abort
        s_waitcnt vmcnt(0)
        s_branch {lp}
        {ok}:
        """)

    def prefetch_k(cls):
        if cls == 0:
            A(f"""
            s_sub_u32 {s(sT0)}, {s(sPf)}, 1
            s_and_b32 {s(sT0)}, {s(sT0)}, 7
            s_mul_i32 {s(sT0)}, {s(sT0)}, {QS}
            s_add_u32 {s(sT0)}, {s(sT0)}, {s(sKx)}
            """)
            for i in range(2):
                A(f"buffer_load_dwordx4 {v(KX+4*i,4)}, {v(vL16)}, {WSR}, {s(sT0)} offen offset:{i*1024} sc1")

    def adv_rec(isW):
        A(f"""
        s_sub_u32 {s(sT1)}, {s(sSeg)}, 1
        s_and_b32 {s(sT1)}, {s(sT1)}, 3
        s_mul_i32 {s(sT1)}, {s(sT1)}, {S4}
        s_add_u32 {s(sKm)}, {s(sKmb)}, {s(sT1)}
        """)
        if isW: A(f"s_add_u32 {s(sWm)}, {s(sWmb)}, {s(sT1)}")

    def step_setup(isW):
        adv_rec(isW)
        A(f"""
        s_add_u32 {s(sSVsz)}, {s(sSVvz)}, {s(sRoff)}
        s_and_b32 {s(sT0)}, {s(sSeg)}, 3
        s_lshl_b32 {s(sT1)}, {s(sT0)}, 15
        s_add_u32 {s(sSVg)}, {s(sSVgb)}, {s(sT1)}
        s_add_u32 {s(sSVgv)}, {s(sSVg)}, 4096
        s_add_u32 {s(sSVvz)}, {s(sSVb)}, {s(sT1)}
        s_add_u32 {s(sSVs)}, {s(sSVvz)}, {s(sSoff)}
        s_lshl_b32 {s(sT2)}, {s(sP)}, 10
        s_add_u32 {s(sSVv)}, {s(sSVvz)}, {s(sT2)}
        s_add_u32 {s(sSVv)}, {s(sSVv)}, 4096
        """)
        if isW:
            A(f"""
            s_mul_i32 {s(sUx)}, {s(sT0)}, {S4}
            s_add_u32 {s(sUx)}, {s(sUx)}, {s(sUb)}
            s_mul_i32 {s(sXPr)}, {s(sT0)}, {XP_SLOT}
            s_add_u32 {s(sXPr)}, {s(sXPr)}, {s(sXPb)}
            s_lshl_b32 {s(sT1)}, {s(S_X)}, 8
            s_add_u32 {s(sXPw)}, {s(sXPr)}, {s(sT1)}
            s_xor_b32 {s(sXPz)}, {s(sXPw)}, 8192
            """)
            for i in range(16): A(f"v_mov_b32 {v(WMD+i)}, 0")
        for acc in (accq, acck, accv):
            for i in range(4): A(f"v_mov_b32 {v(acc+i)}, 0")

    def km_st(cls):
        if cls != 2: return []
        return [f"buffer_store_dwordx4 {v(KX,4)}, {v(vKm)}, {WSR}, {s(sKm)} offen",
                f"buffer_store_dwordx4 {v(KX+4,4)}, {v(vKm)}, {WSR}, {s(sKm)} offen offset:512"]
    wm_st = f"buffer_store_dwordx4 {v(ZD,4)}, {v(vL16)}, {WSR}, {s(sWm)} offen"
    def house_b(cls, isW):
        H = []
        if isW:
            H += [f"buffer_load_dwordx4 {v(U+4*i,4)}, {v(vL16)}, {WSR}, {s(sUx)} offen offset:{i*1024} sc1" for i in range(4)]
            H += [wm_st]
        H += km_st(cls)
        if cls < 2: H += [f"buffer_store_dwordx4 {v(SENT,4)}, {v(vL16)}, {WSR}, {s(sSVsz)} offen"]
        H += [f"buffer_load_dword {v(vProg)}, {v(vPf)}, {WSR}, 0 offen sc1"]
        return H

    def flag(reg):
        A(f"buffer_store_dword {v(reg)}, {v(vCp)}, {WSR}, 0 offen")

    def spin():
        A(f"s_add_u32 {s(sCnt)}, {s(sCnt)}, 1\ns_cmp_gt_u32 {s(sCnt)}, {SPIN_LIMIT}\ns_cbranch_scc1 chain_abort")

    def mem_loads(P, k0=0):
        Ls = [f"buffer_load_dwordx4 {v(P[0],4)}, {v(vMemG)}, {WSR}, {s(sMemCur)} offen sc1",
              f"buffer_load_dwordx4 {v(P[1],4)}, {v(vMemG)}, {WSR}, {s(sMemCur)} offen offset:1024 sc1",
              f"buffer_load_dwordx2 {v(P[2],2)}, {v(vMemG8)}, {WSR}, {s(sMemCur)} offen sc1"]
        for x in Ls[k0:]: A(x)
    def masked_reload(lb, pieces, tmp):
        for i, (R, n, ld) in enumerate(pieces):
            if n >= 3: A(f"v_max3_u32 {v(tmp)}, {v(R)}, {v(R+1)}, {v(R+2)}")
            else: A(f"v_max_u32 {v(tmp)}, {v(R)}, {v(R+1)}")
            if n == 4: A(f"v_max_u32 {v(tmp)}, {v(tmp)}, {v(R+3)}")
            A(f"v_cmp_eq_u32 vcc, -1, {v(tmp)}\ns_cbranch_vccz {lb}_s{i}\ns_mov_b64 exec, vcc\n{ld}\ns_mov_b64 exec, -1\n{lb}_s{i}:")
    def mem_poll(P, slp):
        lb = A.label("mp")
        a_, b_, c_ = P
        PL = [(a_, 4, f"buffer_load_dwordx4 {v(a_,4)}, {v(vMemG)}, {WSR}, {s(sMemCur)} offen sc1"),
              (b_, 4, f"buffer_load_dwordx4 {v(b_,4)}, {v(vMemG)}, {WSR}, {s(sMemCur)} offen offset:1024 sc1"),
              (c_, 2, f"buffer_load_dwordx2 {v(c_,2)}, {v(vMemG8)}, {WSR}, {s(sMemCur)} offen sc1")]
        if "msl" in optv: A(f"s_sleep {optv['msl']}")
        for x in PL: A(x[2])
        A(f"""
        s_mov_b32 {s(sCnt)}, 0
        {lb}:
        s_waitcnt vmcnt(0)
        ds_write_b128 {v(vMemG)}, {v(a_,4)}
        ds_write_b128 {v(vMemG)}, {v(b_,4)} offset:1024
        ds_write_b64 {v(vMemG8)}, {v(c_,2)}
        v_max3_u32 {v(t0)}, {v(a_)}, {v(a_+1)}, {v(a_+2)}
        v_max3_u32 {v(t1)}, {v(a_+3)}, {v(b_)}, {v(b_+1)}
        v_max3_u32 {v(t0)}, {v(t0)}, {v(b_+2)}, {v(b_+3)}
        v_max3_u32 {v(t1)}, {v(t1)}, {v(c_)}, {v(c_+1)}
        v_max_u32 {v(t0)}, {v(t0)}, {v(t1)}
        v_cmp_eq_u32 vcc, -1, {v(t0)}
        s_cbranch_vccnz {lb}_r
        s_waitcnt lgkmcnt(0)
        s_barrier
        """)
        def retry():
            A(f"{lb}_r:")
            if slp: A(f"s_sleep {slp}")
            masked_reload(lb, PL, t0)
            spin()
            A(f"s_branch {lb}")
        return retry

    def mem_poll2(PA, PB):
        lb = A.label("mq")
        def chk(P):
            a_, b_, c_ = P
            A(f"""
            s_waitcnt vmcnt(3)
            v_max3_u32 {v(t0)}, {v(a_)}, {v(a_+1)}, {v(a_+2)}
            v_max3_u32 {v(t1)}, {v(a_+3)}, {v(b_)}, {v(b_+1)}
            v_max3_u32 {v(t0)}, {v(t0)}, {v(b_+2)}, {v(b_+3)}
            v_max3_u32 {v(t1)}, {v(t1)}, {v(c_)}, {v(c_+1)}
            v_max_u32 {v(t0)}, {v(t0)}, {v(t1)}
            v_cmp_eq_u32 vcc, -1, {v(t0)}
            """)
        def wr(P):
            a_, b_, c_ = P
            A(f"""
            ds_write_b128 {v(vMemG)}, {v(a_,4)}
            ds_write_b128 {v(vMemG)}, {v(b_,4)} offset:1024
            ds_write_b64 {v(vMemG8)}, {v(c_,2)}
            """)
        A(f"s_mov_b32 {s(sCnt)}, 0")
        mem_loads(PA)
        A(f"s_sleep {optv.get('n2s', 2)}\n{lb}:")
        mem_loads(PB)
        chk(PA)
        A(f"s_cbranch_vccz {lb}_a")
        mem_loads(PA)
        spin()
        chk(PB)
        A(f"s_cbranch_vccnz {lb}")
        wr(PB)
        A(f"s_branch {lb}_ok\n{lb}_a:")
        wr(PA)
        A(f"{lb}_ok:\ns_waitcnt lgkmcnt(0)\ns_barrier")

    def prof_dump():
        if prof:
            A(f"""
            s_memrealtime {s(stamps[9],2)}
            s_waitcnt lgkmcnt(0)
            s_mul_i32 {s(sT0)}, {s(S_X)}, 12
            s_add_u32 {s(sT0)}, {s(sT0)}, {s(sC)}
            s_lshl_b32 {s(sT0)}, {s(sT0)}, 2
            s_add_u32 {s(sT0)}, {s(sT0)}, {s(S_W)}
            s_lshl_b32 {s(sT0)}, {s(sT0)}, 12
            s_lshl_b32 {s(sT1)}, {s(sSeg)}, 6
            s_add_u32 {s(sT0)}, {s(sT0)}, {s(sT1)}
            s_add_u32 {s(sT0)}, {s(sT0)}, {OFF_DBG}
            """)
            for i in range(NST):
                A(f"v_writelane_b32 {v(t0)}, {s(stamps[i])}, {i}")
            for i, c_ in enumerate(cnts[:2] + [sCnt]):
                A(f"v_writelane_b32 {v(t0)}, {s(c_)}, {10+i}")
            A(f"v_lshlrev_b32 {v(t2)}, 2, {v(L)}\ns_mov_b64 exec, 0x1fff\nbuffer_store_dword {v(t0)}, {v(t2)}, {WSR}, {s(sT0)} offen\ns_mov_b64 exec, -1")

    def emit_loop(cls, isW):
        tag = f"c{cls}{'w' if isW else 'n'}"
        lp = f"chain_loop_{tag}"
        A(f"chain_pro_{tag}:")
        if isW:
            pass
        else:
            A(f"""
            s_sub_u32 {s(sT0)}, {s(sC)}, 10
            s_lshl_b32 {s(sT0)}, {s(sT0)}, 2
            s_add_u32 {s(sT0)}, {s(sT0)}, {s(S_W)}
            s_cmp_lt_u32 {s(sT0)}, 4
            s_cselect_b32 {s(sXPz)}, 16, 8
            s_lshl_b32 {s(sXPz)}, {s(sXPz)}, 13
            s_lshl_b32 {s(sXPb)}, {s(sT0)}, 13
            s_lshl_b32 {s(sT0)}, {s(S_X)}, 8
            s_add_u32 {s(sXPb)}, {s(sXPb)}, {s(sT0)}
            s_add_u32 {s(sXPb)}, {s(sXPb)}, {OFF_XP}
            v_lshrrev_b32 {v(t0)}, 4, {v(L)}
            v_lshlrev_b32 {v(t0)}, 11, {v(t0)}
            v_and_b32 {v(t1)}, 15, {v(L)}
            v_lshl_add_u32 {v(vRedW)}, {v(t1)}, 4, {v(t0)}
            """)
        A(f"s_mov_b32 {s(sPf)}, 1\nv_mov_b32 {v(t3)}, 0")
        ev(A, 2, t0)
        ensure_prog(1 << 28)
        if isW:
            A(f"""
            v_readlane_b32 {s(sT0)}, {v(vProg)}, 60
            s_sub_u32 {s(sT0)}, {s(sT0)}, 1
            s_lshl_b32 {s(sT0)}, {s(sT0)}, 13
            s_add_u32 {s(sXPb)}, {s(sXPb)}, {s(sT0)}
            """)
        ev(A, 3, t0)
        prefetch_k(cls)
        A(f"s_add_u32 {s(sSVvz)}, {s(sSVb)}, {3<<15}"); step_setup(isW)
        A(f"{lp}:")
        stamp(0)
        PA, PB = (FD, FD + 4, FD + 8), (FD + 10, WMP, WMP + 4)
        if isW and "w2" not in opt: cold = [mem_poll(PA, 0)]
        else:
            cold = []; mem_poll2(PA, PB)
        stamp(1)
        if prof: A(f"s_mov_b32 {s(cnts[0])}, {s(sCnt)}")
        for b in range(10):
            A(f"ds_read_b128 {v(MF+4*b,4)}, {v(vL16)} offset:{LDS_MEM+b*1024}")
        HB = house_b(cls, isW)
        for b in range(10):
            A(f"s_waitcnt lgkmcnt({9-b})")
            A(f"v_smfmac_f32_16x16x64_bf16 {v(accq,4)}, {v(MF+4*b,4)}, {r(WQ+8*b,8)}, {v(vIdx)}")
            A(f"v_smfmac_f32_16x16x64_bf16 {v(acck,4)}, {v(MF+4*b,4)}, {r(WK+8*b,8)}, {v(vIdx)}")
            for _ in range(int(optv.get("hb", 1))):
                if HB: A(HB.pop(0))
        while HB: A(HB.pop(0))
        stamp(2)
        vk = [0]
        def vm(n=1):
            for _ in range(n):
                b = vk[0]
                if b >= 10: return
                A(f"v_smfmac_f32_16x16x64_bf16 {v(accv,4)}, {v(MF+4*b,4)}, {r(WV+8*b,8)}, {v(vIdx)}")
                vk[0] += 1
        vm(2)
        A(f"""
        v_add_f32 {v(accq)}, {v(accq)}, {v(accq+2)}
        v_add_f32 {v(accq+1)}, {v(accq+1)}, {v(accq+3)}
        v_add_f32 {v(acck)}, {v(acck)}, {v(acck+2)}
        v_add_f32 {v(acck+1)}, {v(acck+1)}, {v(acck+3)}
        """)
        vm(1)
        A(f"""
        v_cvt_pk_bf16_f32 {v(QK)}, {v(accq)}, {v(accq+1)}
        v_cvt_pk_bf16_f32 {v(QK+1)}, {v(acck)}, {v(acck+1)}
        ds_write2_b32 {v(vTw)}, {v(QK)}, {v(QK)} offset0:0 offset1:4
        ds_write2_b32 {v(vTw2)}, {v(QK+1)}, {v(QK+1)} offset0:0 offset1:1
        """)
        vm(2)
        A("s_waitcnt lgkmcnt(0)\ns_barrier")
        if cls < 2:
            for i in range(4):
                A(f"ds_read_b64_tr_b16 {v(QF+2*i,2)}, {v(vL8)} offset:{LDS_T+512*i}")
                if cls == 1: A(f"ds_read_b64_tr_b16 {v(KX+2*i,2)}, {v(vL8)} offset:{LDS_T2+512*i}")
        else:
            for i in range(4):
                A(f"ds_read_b64_tr_b16 {v(KX+2*i,2)}, {v(vL8)} offset:{LDS_T2+512*i}")
        vm(3)
        if cls < 2:
            A(f"""
            s_waitcnt lgkmcnt({2 if cls == 0 else 4})
            v_mfma_f32_16x16x32_bf16 {v(accS,4)}, {v(KX,4)}, {v(QF,4)}, 0
            s_waitcnt lgkmcnt(0)
            v_mfma_f32_16x16x32_bf16 {v(accS,4)}, {v(KX+4,4)}, {v(QF+4,4)}, {v(accS,4)}
            """)
            vm(2)
            if cls == 0:
                A(f"""
                s_mov_b64 exec, {s(sMS,2)}
                buffer_store_dwordx4 {v(accS,4)}, {v(vL16)}, {WSR}, {s(sSVs)} offen
                s_mov_b64 exec, -1
                """)
            else:
                A(f"""
                v_cndmask_b32 {v(accS)}, {v(accS)}, {v(accS+1)}, {s(sMhi,2)}
                buffer_store_dword {v(accS)}, {v(vL16)}, {WSR}, {s(sSVs)} offen
                """)
        else:
            vm(2)
        A(f"""
        v_add_f32 {v(accv)}, {v(accv)}, {v(accv+2)}
        v_add_f32 {v(accv+1)}, {v(accv+1)}, {v(accv+3)}
        v_cvt_pk_bf16_f32 {v(t0)}, {v(accv)}, {v(accv+1)}
        v_mov_b32_dpp {v(t1)}, {v(t0)} row_ror:4 row_mask:0xf bank_mask:0xa
        v_mov_b32_dpp {v(t1)}, {v(t0)} row_ror:12 row_mask:0xf bank_mask:0x5
        v_perm_b32 {v(t0)}, {v(t1)}, {v(t0)}, {v(vSel)}
        buffer_store_dword {v(t0)}, {v(vVst)}, {WSR}, {s(sSVv)} offen
        """)
        stamp(3)
        swap_mem = f"""
        s_mov_b32 {s(sT0)}, {s(sMemCur)}
        s_mov_b32 {s(sMemCur)}, {s(sMemNxt)}
        s_mov_b32 {s(sMemNxt)}, {s(sT0)}
        """
        if not isW:
            A(f"""
            s_and_b32 {s(sT0)}, {s(sSeg)}, 3
            s_xor_b32 {s(sT0)}, {s(sT0)}, 2
            s_mul_i32 {s(sT0)}, {s(sT0)}, {XP_SLOT}
            s_add_u32 {s(sT0)}, {s(sT0)}, {s(sXPb)}
            s_add_u32 {s(sT1)}, {s(sT0)}, {8*8192}
            s_add_u32 {s(sT2)}, {s(sT0)}, {s(sXPz)}
            s_waitcnt vmcnt(0)
            s_barrier
            buffer_store_dwordx4 {v(SENT,4)}, {v(vRedW)}, {WSR}, {s(sT0)} offen sc1
            buffer_store_dwordx4 {v(SENT,4)}, {v(vRedW)}, {WSR}, {s(sT1)} offen sc1
            buffer_store_dwordx4 {v(SENT,4)}, {v(vRedW)}, {WSR}, {s(sT2)} offen sc1
            v_mov_b32 {v(t3)}, {s(sSeg)}
            s_add_u32 {s(sSeg)}, {s(sSeg)}, 1
            s_cmp_eq_u32 {s(sSeg)}, {NSEG}
            s_cbranch_scc1 chain_last_{tag}
            s_add_u32 {s(sPf)}, {s(sSeg)}, 1
            s_waitcnt vmcnt(0)
            """)
            stamp(4)
            flag(t3)
            prof_dump()
            ensure_prog()
            prefetch_k(cls)
            A(swap_mem)
            step_setup(isW)
            A(f"s_sleep {optv.get('nsl', 16)}\ns_branch {lp}")
            for f in cold: f()
            A(f"chain_last_{tag}:")
            adv_rec(isW)
            A("s_waitcnt lgkmcnt(0)")
            for x in km_st(cls): A(x)
            A(f"v_mov_b32 {v(t3)}, {s(sSeg)}\ns_branch chain_fin")
            return
        gs, gv = A.label("gs"), A.label("gv")
        def vloads():
            for b in range(3):
                A(f"buffer_load_dwordx4 {v(G_V+4*b,4)}, {v(vL16)}, {WSR}, {s(sSVgv)} offen offset:{b*1024} sc1")
        gd = int(optv.get(f"gsl{cls}", optv.get("gsl", 0)))
        if gd >= 16: A(f"s_sleep {gd // 16}")
        for _ in range(gd % 16 // 4): A("s_nop 3")
        GL = [(G_SX + 4*p, 4, f"buffer_load_dwordx4 {v(G_SX+4*p,4)}, {v(vL16)}, {WSR}, {s(sSVg)} offen offset:{p*1024} sc1") for p in range(3)]
        GL += [(G_SM, 3, f"buffer_load_dwordx3 {v(G_SM,3)}, {v(vL16)}, {WSR}, {s(sSVg)} offen offset:3072 sc1")]
        GL += [(G_V + 4*b, 4, f"buffer_load_dwordx4 {v(G_V+4*b,4)}, {v(vL16)}, {WSR}, {s(sSVgv)} offen offset:{b*1024} sc1") for b in range(3)]
        for g in GL: A(g[2])
        S0 = FD
        def g_retry():
            A(f"{gs}:")
            masked_reload(gs, GL, t2)
            spin()
            A(f"s_waitcnt vmcnt(0)\ns_branch {gs}_in")
        cold.append(g_retry)
        A(f"""
        s_mov_b32 {s(sCnt)}, 0
        s_waitcnt vmcnt(3)
        {gs}_in:
        v_pk_add_f32 {v(S0,2)}, {v(G_SX,2)}, {v(G_SX+4,2)}
        v_pk_add_f32 {v(S0+2,2)}, {v(G_SX+2,2)}, {v(G_SX+6,2)}
        v_add_f32 {v(S0+4)}, {v(G_SM)}, {v(G_SM+1)}
        v_pk_add_f32 {v(S0,2)}, {v(S0,2)}, {v(G_SX+8,2)}
        v_pk_add_f32 {v(S0+2,2)}, {v(S0+2,2)}, {v(G_SX+10,2)}
        v_add_f32 {v(S0+4)}, {v(S0+4)}, {v(G_SM+2)}
        v_cmp_u_f32 {s(sC3,2)}, {v(S0)}, {v(S0+1)}
        v_cmp_u_f32 {s(sC1,2)}, {v(S0+2)}, {v(S0+3)}
        v_cmp_u_f32 {s(sC2,2)}, {v(S0+4)}, {v(S0+4)}
        v_max3_f32 {v(t0)}, {v(S0)}, {v(S0+1)}, {v(S0+2)}
        s_or_b64 {s(sC1,2)}, {s(sC3,2)}, {s(sC1,2)}
        v_max3_f32 {v(t0)}, {v(t0)}, {v(S0+3)}, {v(S0+4)}
        s_or_b64 {s(sC1,2)}, {s(sC1,2)}, {s(sC2,2)}
        """)
        stamp(4)
        cL = f32bits(SCALE * 1.4426950408889634)
        sm = [f"v_max_f32_dpp {v(t0)}, {v(t0)}, {v(t0)} row_ror:8 row_mask:0xf bank_mask:0xf",
              f"v_mov_b32 {v(t1)}, {v(t0)}",
              f"v_mul_f32 {v(S0)}, {cL}, {v(S0)}",
              f"v_mul_f32 {v(S0+1)}, {cL}, {v(S0+1)}",
              f"v_permlane16_swap_b32 {v(t0)}, {v(t1)}",
              f"v_max_f32 {v(t0)}, {v(t0)}, {v(t1)}",
              f"v_mov_b32 {v(t1)}, {v(t0)}",
              f"v_mul_f32 {v(S0+2)}, {cL}, {v(S0+2)}",
              f"v_mul_f32 {v(S0+3)}, {cL}, {v(S0+3)}",
              f"v_permlane32_swap_b32 {v(t0)}, {v(t1)}",
              f"v_max_f32 {v(t0)}, {v(t0)}, {v(t1)}",
              f"v_mul_f32 {v(S0+4)}, {cL}, {v(S0+4)}",
              f"v_mul_f32 {v(t0)}, {cL}, {v(t0)}"]
        sm += [f"v_sub_f32 {v(S0+i)}, {v(S0+i)}, {v(t0)}" for i in (4, 0, 1, 2, 3)]
        sm += [f"v_exp_f32 {v(S0+i)}, {v(S0+i)}" for i in (4, 0, 1, 2, 3)]
        sm += [f"v_mov_b32_dpp {v(S0+5)}, {v(S0+4)} row_ror:8 row_mask:0xf bank_mask:0xf",
               f"v_cvt_pk_bf16_f32 {v(PX)}, {v(S0)}, {v(S0+1)}",
               f"v_cvt_pk_bf16_f32 {v(PX+1)}, {v(S0+2)}, {v(S0+3)}",
               f"v_cvt_pk_bf16_f32 {v(PM)}, {v(S0+4)}, {v(S0+5)}",
               f"v_mov_b32_dpp {v(PX+2)}, {v(PX)} row_ror:8 row_mask:0xf bank_mask:0xf",
               f"v_mov_b32_dpp {v(PX+3)}, {v(PX+1)} row_ror:8 row_mask:0xf bank_mask:0xf",
               f"v_mov_b32 {v(PM+1)}, {v(PM)}"]
        A(f"""
        s_waitcnt vmcnt(0)
        v_max3_u32 {v(t2)}, {v(G_V)}, {v(G_V+1)}, {v(G_V+2)}
        v_max3_u32 {v(t3)}, {v(G_V+3)}, {v(G_V+4)}, {v(G_V+5)}
        v_max3_u32 {v(t2)}, {v(t2)}, {v(G_V+6)}, {v(G_V+7)}
        v_max3_u32 {v(t3)}, {v(t3)}, {v(G_V+8)}, {v(G_V+9)}
        v_max3_u32 {v(t2)}, {v(t2)}, {v(G_V+10)}, {v(G_V+11)}
        v_max_u32 {v(t2)}, {v(t2)}, {v(t3)}
        v_cmp_eq_u32 vcc, -1, {v(t2)}
        s_or_b64 vcc, vcc, {s(sC1,2)}
        s_cbranch_vccnz {gs}
        """)
        stamp(5)
        if prof: A(f"s_mov_b32 {s(cnts[1])}, {s(sCnt)}")
        wm = []
        for b in range(3):
            for ct in range(4):
                wm.append(f"v_smfmac_f32_16x16x64_bf16 {v(WMD+4*ct,4)}, {v(G_V+4*b,4)}, {r(WOf(ct,2*b),8)}, {v(vIdx)}")
        while wm or sm:
            if wm: A(wm.pop(0))
            for _ in range(2):
                if sm: A(sm.pop(0))
        A(f"v_mfma_f32_16x16x32_bf16 {v(ZD,4)}, {v(ONES,4)}, {v(PX,4)}, 0")
        for ct in range(4):
            A(f"v_cvt_pk_bf16_f32 {v(WMP+2*ct)}, {v(WMD+4*ct)}, {v(WMD+4*ct+1)}")
            A(f"v_cvt_pk_bf16_f32 {v(WMP+2*ct+1)}, {v(WMD+4*ct+2)}, {v(WMD+4*ct+3)}")
            A(f"v_mfma_f32_16x16x32_bf16 {v(FD+4*ct,4)}, {v(U+4*ct,4)}, {v(PX,4)}, 0")
            if ct == 1: A(f"v_mfma_f32_16x16x16_bf16 {v(ZD,4)}, {v(HALF,2)}, {v(PM,2)}, {v(ZD,4)}")
        A(f"s_add_u32 {s(sSeg)}, {s(sSeg)}, 1")
        for ct in range(4):
            A(f"v_mfma_f32_16x16x16_bf16 {v(FD+4*ct,4)}, {v(WMP+2*ct,2)}, {v(PM,2)}, {v(FD+4*ct,4)}")
            if ct == 1: A(f"v_rcp_f32 {v(QK)}, {v(ZD)}")
        A(f"""
        v_mov_b32 {v(QK+1)}, {v(QK)}
        s_cmp_eq_u32 {s(sSeg)}, {NSEG}
        s_cbranch_scc1 chain_last_{tag}
        s_mov_b64 exec, {s(sMlo,2)}
        """)
        for ct in range(4):
            A(f"v_pk_mul_f32 {v(FD+4*ct,2)}, {v(QK,2)}, {v(FD+4*ct,2)}")
            A(f"v_pk_mul_f32 {v(FD+4*ct+2,2)}, {v(QK,2)}, {v(FD+4*ct+2,2)}")
            A(f"ds_write_b128 {v(vRedW)}, {v(FD+4*ct,4)} offset:{ct*512}")
        A(f"""
        s_mov_b64 exec, -1
        s_waitcnt lgkmcnt(0)
        s_barrier
        """)
        RR = QF
        for w in range(4):
            A(f"ds_read_b64 {v(RR+2*w,2)}, {v(vRedR)} offset:{w*2048}")
        XD = MF + 32
        def xloads(X):
            for i in range(2):
                A(f"buffer_load_dwordx4 {v(X+4*i,4)}, {v(vL16)}, {WSR}, {s(sM0)} offen offset:{i*1024} sc1")
        def xcheck(X):
            A(f"""
            v_mfma_f32_16x16x32_bf16 {v(XD,4)}, {v(SELA,4)}, {v(X,4)}, 0
            v_mfma_f32_16x16x32_bf16 {v(XD,4)}, {v(SELA,4)}, {v(X+4,4)}, {v(XD,4)}
            """)
            return f"""
            v_cmp_u_f32 vcc, {v(XD)}, {v(XD+1)}
            v_cvt_pk_bf16_f32 {v(t1)}, {v(XD)}, {v(XD+1)}
            """
        A(f"""
        s_mov_b32 {s(sM0)}, {s(sXPr)}
        s_waitcnt lgkmcnt(2)
        v_pk_add_f32 {v(RR,2)}, {v(RR,2)}, {v(RR+2,2)}
        s_waitcnt lgkmcnt(0)
        v_pk_add_f32 {v(RR+4,2)}, {v(RR+4,2)}, {v(RR+6,2)}
        v_pk_add_f32 {v(QK,2)}, {v(RR,2)}, {v(RR+4,2)}
        v_cvt_pk_bf16_f32 {v(QK)}, {v(QK)}, {v(QK+1)}
        buffer_store_dword {v(QK)}, {v(vXw)}, {WSR}, {s(sXPz)} offen sc1
        buffer_store_dword {v(QK)}, {v(vXw)}, {WSR}, {s(sXPw)} offen sc1
        """)
        stamp(6)
        def wm_pack():
            for ct in range(4):
                A(f"v_add_f32 {v(WMD+4*ct)}, {v(WMD+4*ct)}, {v(WMD+4*ct+2)}")
                A(f"v_add_f32 {v(WMD+4*ct+1)}, {v(WMD+4*ct+1)}, {v(WMD+4*ct+3)}")
                A(f"v_cvt_pk_bf16_f32 {v(ZD+ct)}, {v(WMD+4*ct)}, {v(WMD+4*ct+1)}")
        A(f"""
        s_add_u32 {s(sPf)}, {s(sSeg)}, 1
        s_sub_u32 {s(sT0)}, {s(sSeg)}, 1
        v_mov_b32 {v(t3)}, {s(sT0)}
        buffer_store_dword {v(SENT)}, {v(vMemW)}, {WSR}, {s(sMemCur)} offen
        """)
        flag(t3)
        ensure_prog()
        prefetch_k(cls)
        wm_pack()
        A(swap_mem)
        XL = [(MF + 4*i, 4, f"buffer_load_dwordx4 {v(MF+4*i,4)}, {v(vL16)}, {WSR}, {s(sM0)} offen offset:{i*1024} sc1") for i in range(2)]
        late = "xlate" in opt
        if late: step_setup(isW)
        if "xsl" in optv: A(f"s_sleep {optv['xsl']}")
        xloads(MF)
        if not late: step_setup(isW)
        stamp(7)
        xp = A.label("xp")
        def x_retry():
            A(f"{xp}_r:")
            masked_reload(xp, XL, t0)
            spin()
            A(f"s_branch {xp}")
        cold.append(x_retry)
        A(f"s_mov_b32 {s(sCnt)}, 0\n{xp}:\ns_waitcnt vmcnt(0)")
        A(xcheck(MF))
        A(f"s_cbranch_vccnz {xp}_r")
        A(f"buffer_store_dword {v(t1)}, {v(vMemW)}, {WSR}, {s(sMemCur)} offen")
        stamp(8)
        prof_dump()
        A(f"s_branch {lp}")
        for f in cold: f()
        A(f"chain_last_{tag}:")
        adv_rec(isW)
        wm_pack()
        for x in km_st(cls) + [wm_st]: A(x)
        A(f"v_mov_b32 {v(t3)}, {s(sSeg)}\ns_branch chain_fin")

    HALF = va(2, 2)
    vXw = va()
    SELA = va(4, 4)
    A(f"""
    v_and_b32 {v(t0)}, 15, {v(L)}
    v_lshlrev_b32 {v(vXw)}, 2, {v(L)}
    v_and_b32 {v(t1)}, 3, {v(L)}
    v_mov_b32 {v(t2)}, 0
    v_mov_b32 {v(t3)}, 0x3f80
    v_cmp_eq_u32 vcc, 0, {v(t1)}
    v_cndmask_b32 {v(t2)}, {v(t2)}, {v(t3)}, vcc
    v_mov_b32 {v(t3)}, 0x3f800000
    v_cmp_eq_u32 vcc, 1, {v(t1)}
    v_cndmask_b32 {v(t2)}, {v(t2)}, {v(t3)}, vcc
    v_lshrrev_b32 {v(t0)}, 2, {v(t0)}
    v_mov_b32 {v(t3)}, 0
    """)
    for d in range(4):
        A(f"v_cmp_eq_u32 vcc, {d}, {v(t0)}\nv_cndmask_b32 {v(SELA+d)}, {v(t3)}, {v(t2)}, vcc")
    A(f"v_mov_b32 {v(HALF)}, 0x3f803f80\nv_mov_b32 {v(HALF+1)}, 0")
    A(f"""
    s_cmp_lt_u32 {s(sC)}, 10
    s_cbranch_scc0 chain_nw
    s_cmp_lt_u32 {s(S_W)}, 2
    s_cbranch_scc1 chain_pro_c0w
    s_cmp_eq_u32 {s(S_W)}, 2
    s_cbranch_scc1 chain_pro_c1w
    s_branch chain_pro_c2w
    chain_nw:
    s_cmp_lt_u32 {s(S_W)}, 2
    s_cbranch_scc1 chain_pro_c0n
    s_cmp_eq_u32 {s(S_W)}, 2
    s_cbranch_scc1 chain_pro_c1n
    s_branch chain_pro_c2n
    """)
    for isW in (True, False):
        for cls in range(3):
            emit_loop(cls, isW)
    A(f"""
    chain_fin:
    s_waitcnt vmcnt(0)
    """)
    flag(t3)
    ev(A, 4, t0)
    A(f"""
    s_endpgm
    chain_abort:
    v_mov_b32 {v(t0)}, 128
    v_mov_b32 {v(t1)}, 1
    s_mov_b64 exec, 1
    buffer_atomic_add {v(t1)}, {v(t0)}, {s(S_DBG,4)}, 0 offen
    s_endpgm
    """)
```

```python
from common import *
from k_boot import *

LDS_MEM, LDS_RED, LDS_U, LDS_KX = 0, 10240, 18432, 34816
SCALE = 192 ** -0.5
PMASK_LO, PMASK_HI = 0x00fff000, 0x00fffff0

def gen_chain(A, prof=False, opt=()):
    optv = dict(o.split("=") for o in opt if "=" in o)
    NSEG = 64
    sa = Alloc(20, 100)
    SQ, SK, SV_, SO = sa(4, 4), sa(4, 4), sa(4, 4), sa(4, 4)
    sC, sLH, sP, sSeg, sCnt = sa(), sa(), sa(), sa(), sa()
    sT0, sT1, sT2, sM0 = sa(), sa(), sa(), sa()
    sMemCur, sMemNxt = sa(), sa()
    sSVb, sSVgb = sa(), sa()
    sSVp, sSVz, sG0, sG1, sG2 = sa(), sa(), sa(), sa(), sa()
    sKm, sWm, sKmb, sWmb, sUb, sKxb = [sa() for _ in range(6)]
    sXPw, sXPr, sXPz, sXPb, sXPl = [sa() for _ in range(5)]
    sMlo = sa(2, 2)
    sC1 = sa(2, 2)
    sRoff, sLk, sLu = sa(), sa(), sa()
    sD0, sD1, sD2, sD3 = SK, SK + 1, SK + 2, SK + 3
    NST = 10
    stamps = [sa(2, 2) for _ in range(NST)] if prof else []
    cnts = [SQ, SQ + 1, SQ + 2] if prof else []

    va = Alloc(2, 176)
    def WOf(ct, kk):
        f = ct * 6 + kk
        return 176 + 4 * f if f < 20 else 256 + 240 + 4 * (f - 20)
    WQ, WK, WV = 256, 256 + 80, 256 + 160
    MF = va(40, 4)
    KX = va(48, 4)
    SA = va(20, 4)
    accq, acck, accv = SA + 8, SA + 12, SA + 16
    SENT, ONES, SELA, ZD = va(4, 4), va(4, 4), va(4, 4), va(4, 4)
    WMD = va(16, 4)
    PM, QK, HALF = va(2, 2), va(2, 2), va(2, 2)
    (vL16, vMemG, vMemG8, vQst, vKst, vVst, vRedW, vRedR, vMemW, vPf, vCp, vIdx, vSel, vSel2, vXw, vLk,
     vProg, vKd, t0, t1, t2, t3) = [va() for _ in range(22)]
    GQ, GK, GV = MF, MF + 12, MF + 24
    U, FD, WMP, PX = KX, KX + 16, KX + 32, KX + 40
    X_, X1, Y_, Y1, DM = SA, SA + 4, SA + 8, SA + 12, SA + 16
    RR = WMP
    L = V_LANE
    WSR = s(S_WS, 4)

    def stamp(i):
        if prof: A(f"s_memtime {s(stamps[i],2)}")

    srd(A, SQ, "wq"); srd(A, SK, "wk"); srd(A, SV_, "wv"); srd(A, SO, "wo")
    A(f"""
    s_mov_b32 {s(sC)}, {s(S_T)}
    s_mul_i32 {s(sLH)}, {s(sC)}, 43
    s_lshr_b32 {s(sLH)}, {s(sLH)}, 7
    s_mul_i32 {s(sT0)}, {s(sLH)}, 3
    s_sub_u32 {s(sP)}, {s(sC)}, {s(sT0)}
    """)
    vSrc, vSrcO = MF, MF + 1
    vRdv, vRdq, vRo = MF + 2, MF + 6, MF + 10
    sW1, sW2 = sXPw, sXPr
    panel_src_off(A, vSrc, t0, L, 12288)
    A(f"""
    s_lshl_b32 {s(sT0)}, {s(S_X)}, 2
    s_add_u32 {s(sT0)}, {s(sT0)}, {s(sLH)}
    s_mul_i32 {s(sW1)}, {s(sT0)}, 384
    s_lshl_b32 {s(sT0)}, {s(sP)}, 7
    s_add_u32 {s(sW1)}, {s(sW1)}, {s(sT0)}
    s_mul_i32 {s(sT0)}, {s(S_W)}, {80*12288}
    s_add_u32 {s(sW1)}, {s(sW1)}, {s(sT0)}
    s_lshl_b32 {s(sT0)}, {s(S_X)}, 2
    s_add_u32 {s(sT0)}, {s(sT0)}, {s(S_W)}
    s_mul_i32 {s(sW2)}, {s(sT0)}, {192*1280}
    s_min_u32 {s(sT0)}, {s(sC)}, 9
    s_lshl_b32 {s(sT0)}, {s(sT0)}, 7
    s_add_u32 {s(sW2)}, {s(sW2)}, {s(sT0)}
    s_mul_i32 {s(sM0)}, {s(S_W)}, 10240
    s_waitcnt lgkmcnt(0)
    """)
    CH = {"v": (SV_, WV, vRdv), "k": (SK, WK, vRdq), "q": (SQ, WQ, vRdq)}
    order = optv.get("word", "v1k1q1v0k0q0o2o1o0")
    order = [(order[i], int(order[i+1])) for i in range(0, len(order), 2)]
    DEPTH = int(optv.get("wdep", 2))
    assert DEPTH <= 3 and all(m != "o" for m, _ in order[:DEPTH])
    VMW = Cnt(A, "vmcnt", 63)
    def w_issue(i):
        m, h = order[i]; buf = i % 4
        for n in range(10 if m != "o" else 8):
            if m != "o":
                A(f"s_add_u32 m0, {s(sM0)}, {buf*40960 + n*1024}\ns_add_u32 {s(sT0)}, {s(sW1)}, {(h*320 + n*8)*12288}")
                VMW.issue(f"buffer_load_dwordx4 {v(vSrc)}, {s(CH[m][0],4)}, {s(sT0)} offen nt lds", i)
            else:
                nn = h * 8 + n
                rows = 64 * (nn >> 3) + 32 * ((nn >> 2) & 1) + 16 * (nn & 1) + ((nn >> 1) & 1)
                A(f"s_add_u32 m0, {s(sM0)}, {buf*40960 + n*1024}\ns_add_u32 {s(sT0)}, {s(sW2)}, {rows*1280}")
                VMW.issue(f"buffer_load_dwordx4 {v(vSrcO)}, {s(SO,4)}, {s(sT0)} offen nt lds", i)
    def w_read(i):
        m, h = order[i]; buf = i % 4
        VMW.wait(i)
        if i + DEPTH < len(order): w_issue(i + DEPTH)
        if m != "o":
            A("s_barrier")
            for ks in range(10): panel_read_frag(A, CH[m][1] + 4 * (h * 10 + ks), CH[m][2] + buf, ks * 4096)
            A("s_waitcnt lgkmcnt(0)\ns_barrier")
        else:
            for ct in range(4):
                A(f"v_add_u32 {v(t0)}, {buf*40960}, {v(vRo+ct)}")
                for k2 in range(2): panel_read_frag(A, WOf(ct, 2 * h + k2), t0, k2 * 4096)
            A("s_waitcnt lgkmcnt(0)")
    for i in range(DEPTH): w_issue(i)
    A(f"s_lshl_b32 {s(sT0)}, {s(S_W)}, 1")
    panel_rd_addr(A, vRdv, t0, t1, L, s(sT0))
    A(f"""
    s_lshr_b32 {s(sT0)}, {s(S_W)}, 1
    s_lshl_b32 {s(sT0)}, {s(sT0)}, 2
    s_and_b32 {s(sT1)}, {s(S_W)}, 1
    s_add_u32 {s(sT0)}, {s(sT0)}, {s(sT1)}
    v_and_b32 {v(t0)}, 1, {v(L)}
    v_lshl_add_u32 {v(t0)}, {v(t0)}, 1, {s(sT0)}
    v_bfe_u32 {v(t1)}, {v(L)}, 3, 2
    v_lshlrev_b32 {v(t1)}, 1, {v(t1)}
    v_xor_b32 {v(t0)}, {v(t0)}, {v(t1)}
    v_lshlrev_b32 {v(t0)}, 4, {v(t0)}
    v_lshrrev_b32 {v(t1)}, 2, {v(L)}
    v_lshl_add_u32 {v(t0)}, {v(t1)}, 7, {v(t0)}
    v_bfe_u32 {v(t1)}, {v(L)}, 1, 1
    v_lshl_add_u32 {v(vRdq)}, {v(t1)}, 3, {v(t0)}
    """)
    for b in range(1, 4):
        A(f"v_add_u32 {v(vRdq+b)}, {40960*b}, {v(vRdq)}\nv_add_u32 {v(vRdv+b)}, {40960*b}, {v(vRdv)}")
    panel_src_off(A, vSrcO, t0, L, 0)
    A(f"""
    v_bfe_u32 {v(t0)}, {v(L)}, 3, 2
    v_lshlrev_b32 {v(t0)}, 2, {v(t0)}
    v_bfe_u32 {v(t1)}, {v(L)}, 5, 1
    v_lshl_add_u32 {v(t0)}, {v(t1)}, 1, {v(t0)}
    v_mul_u32_u24 {v(t0)}, 1280, {v(t0)}
    v_add_u32 {v(vSrcO)}, {v(vSrcO)}, {v(t0)}
    """)
    for ct in range(4):
        panel_rd_addr(A, vRo + ct, t0, t1, L, ct)
        A(f"v_add_u32 {v(vRo+ct)}, {s(sM0)}, {v(vRo+ct)}")
    for i in range(4):
        A(f"v_mov_b32 {v(SENT+i)}, -1\nv_mov_b32 {v(ONES+i)}, 0x3f803f80")
    g_, q_ = KX, KX + 1
    A(f"""
    v_lshlrev_b32 {v(vL16)}, 4, {v(L)}
    v_lshlrev_b32 {v(vXw)}, 2, {v(L)}
    s_mul_i32 {s(sT0)}, {s(S_W)}, 2560
    v_add_u32 {v(vMemG)}, {s(sT0)}, {v(vL16)}
    s_add_u32 {s(sT0)}, {s(sT0)}, 2048
    v_lshl_add_u32 {v(vMemG8)}, {v(L)}, 3, {s(sT0)}
    v_lshrrev_b32 {v(g_)}, 4, {v(L)}
    v_and_b32 {v(q_)}, 7, {v(L)}
    v_bfe_u32 {v(t0)}, {v(L)}, 1, 1
    v_mul_u32_u24 {v(t0)}, 0xaaaa, {v(t0)}
    v_add_u32 {v(vIdx)}, 0x4444, {v(t0)}
    v_mov_b32 {v(t2)}, 0x05040100
    v_mov_b32 {v(t1)}, 0x03020706
    v_bfe_u32 {v(t0)}, {v(L)}, 2, 1
    v_cmp_eq_u32 vcc, 1, {v(t0)}
    v_cndmask_b32 {v(vSel)}, {v(t2)}, {v(t1)}, vcc
    v_and_b32 {v(t0)}, 1, {v(L)}
    v_cmp_eq_u32 vcc, 1, {v(t0)}
    v_cndmask_b32 {v(vSel2)}, {v(t2)}, {v(t1)}, vcc
    v_lshlrev_b32 {v(t0)}, 4, {v(t0)}
    v_bfe_u32 {v(t1)}, {v(L)}, 1, 2
    v_lshl_add_u32 {v(t0)}, {v(t1)}, 2, {v(t0)}
    v_bfe_u32 {v(t1)}, {v(L)}, 3, 1
    v_lshl_add_u32 {v(t0)}, {v(t1)}, 8, {v(t0)}
    s_and_b32 {s(sT0)}, {s(S_W)}, 1
    s_lshl_b32 {s(sT0)}, {s(sT0)}, 9
    s_lshr_b32 {s(sT1)}, {s(S_W)}, 1
    s_lshl_b32 {s(sT2)}, {s(sT1)}, 7
    s_add_u32 {s(sT2)}, {s(sT2)}, {s(sT0)}
    v_lshl_add_u32 {v(vQst)}, {v(g_)}, 5, {v(t0)}
    v_add_u32 {v(vQst)}, {s(sT2)}, {v(vQst)}
    s_lshl_b32 {s(sT2)}, {s(sT1)}, 5
    s_add_u32 {s(sT2)}, {s(sT2)}, {s(sT0)}
    v_lshl_add_u32 {v(vKst)}, {v(g_)}, 6, {v(t0)}
    v_add_u32 {v(vKst)}, {s(sT2)}, {v(vKst)}
    s_lshl_b32 {s(sT0)}, {s(S_W)}, 8
    v_add_u32 {v(vVst)}, {s(sT0)}, {v(vXw)}
    s_lshl_b32 {s(sT0)}, {s(sC)}, 10
    v_add_u32 {v(vMemW)}, {s(sT0)}, {v(vVst)}
    s_min_u32 {s(sRoff)}, {s(S_W)}, 2
    s_lshl_b32 {s(sRoff)}, {s(sRoff)}, 10
    ; (g*8+q)*16
    v_lshl_add_u32 {v(t2)}, {v(g_)}, 3, {v(q_)}
    v_lshlrev_b32 {v(t2)}, 4, {v(t2)}
    s_lshl_b32 {s(sT0)}, {s(S_W)}, 11
    s_add_u32 {s(sT0)}, {s(sT0)}, {LDS_RED}
    v_add_u32 {v(vRedW)}, {s(sT0)}, {v(t2)}
    s_lshr_b32 {s(sT0)}, {s(S_W)}, 1
    s_lshl_b32 {s(sT0)}, {s(sT0)}, 10
    s_and_b32 {s(sT1)}, {s(S_W)}, 1
    s_lshl_b32 {s(sT1)}, {s(sT1)}, 8
    s_add_u32 {s(sT0)}, {s(sT0)}, {s(sT1)}
    s_add_u32 {s(sT0)}, {s(sT0)}, {LDS_RED}
    v_and_b32 {v(t0)}, 3, {v(L)}
    v_lshlrev_b32 {v(t0)}, 5, {v(t0)}
    v_bfe_u32 {v(t1)}, {v(L)}, 4, 1
    v_lshl_add_u32 {v(t0)}, {v(t1)}, 4, {v(t0)}
    v_bfe_u32 {v(t1)}, {v(L)}, 5, 1
    v_lshl_add_u32 {v(t0)}, {v(t1)}, 3, {v(t0)}
    v_bfe_u32 {v(t1)}, {v(L)}, 2, 1
    v_lshl_add_u32 {v(t0)}, {v(t1)}, 9, {v(t0)}
    v_bfe_u32 {v(t1)}, {v(L)}, 3, 1
    v_lshl_add_u32 {v(t0)}, {v(t1)}, 7, {v(t0)}
    v_add_u32 {v(vRedR)}, {s(sT0)}, {v(t0)}
    s_mov_b32 {s(sMlo)}, 0x00ff00ff
    s_mov_b32 {s(sMlo+1)}, 0x00ff00ff
    s_lshl_b32 {s(sLu)}, {s(S_W)}, 14
    s_add_u32 {s(sLu)}, {s(sLu)}, {LDS_U}
    s_add_u32 {s(sLk)}, {s(sLu)}, 4096
    v_add_u32 {v(vLk)}, {s(sLu)}, {v(vL16)}
    s_mul_i32 {s(sMemCur)}, {s(S_X)}, 10240
    s_add_u32 {s(sMemCur)}, {s(sMemCur)}, {OFF_MEM}
    s_add_u32 {s(sMemNxt)}, {s(sMemCur)}, {MEM_SLOT}
    s_mul_i32 {s(sT0)}, {s(S_X)}, {SV_X}
    s_add_u32 {s(sT0)}, {s(sT0)}, {OFF_SV2}
    s_mul_i32 {s(sSVb)}, {s(sC)}, 3072
    s_add_u32 {s(sSVb)}, {s(sSVb)}, {s(sT0)}
    s_mul_i32 {s(sSVgb)}, {s(S_W)}, 9216
    s_add_u32 {s(sSVgb)}, {s(sSVgb)}, {s(sT0)}
    s_lshl_b32 {s(sT2)}, {s(S_X)}, 22
    s_add_u32 {s(sT2)}, {s(sT2)}, {OFF_RING}
    s_lshl_b32 {s(sKmb)}, {s(sC)}, 10
    s_add_u32 {s(sKmb)}, {s(sKmb)}, {s(sT2)}
    s_add_u32 {s(sKmb)}, {s(sKmb)}, {R_KM}
    s_mul_i32 {s(sKxb)}, {s(S_W)}, 12288
    s_add_u32 {s(sKxb)}, {s(sKxb)}, {s(sT2)}
    s_add_u32 {s(sKxb)}, {s(sKxb)}, {QKV_MAT}
    s_mul_i32 {s(sUb)}, {s(S_W)}, 40960
    s_add_u32 {s(sUb)}, {s(sUb)}, {s(sT2)}
    s_add_u32 {s(sUb)}, {s(sUb)}, {R_U}
    s_lshl_b32 {s(sT1)}, {s(sC)}, 12
    s_add_u32 {s(sUb)}, {s(sUb)}, {s(sT1)}
    s_mul_i32 {s(sWmb)}, {s(S_W)}, 10240
    s_add_u32 {s(sWmb)}, {s(sWmb)}, {s(sT2)}
    s_add_u32 {s(sWmb)}, {s(sWmb)}, {R_WM}
    s_lshl_b32 {s(sT1)}, {s(sC)}, 10
    s_add_u32 {s(sWmb)}, {s(sWmb)}, {s(sT1)}
    s_lshl_b32 {s(sXPb)}, {s(sC)}, 14
    s_lshl_b32 {s(sT0)}, {s(S_W)}, 11
    s_add_u32 {s(sXPb)}, {s(sXPb)}, {s(sT0)}
    s_add_u32 {s(sXPb)}, {s(sXPb)}, {OFF_XP}
    s_lshl_b32 {s(sT0)}, {s(S_X)}, 8
    v_add_u32 {v(vPf)}, {s(sT0)}, {v(vXw)}
    s_lshl_b32 {s(sT1)}, {s(sC)}, 4
    s_add_u32 {s(sT0)}, {s(sT0)}, {s(sT1)}
    s_lshl_b32 {s(sT1)}, {s(S_W)}, 2
    s_add_u32 {s(sT0)}, {s(sT0)}, {s(sT1)}
    s_add_u32 {s(sT0)}, {s(sT0)}, {CPROG}
    v_mov_b32 {v(vCp)}, {s(sT0)}
    v_mov_b32 {v(vProg)}, 0
    s_mov_b32 {s(sSeg)}, 0
    v_and_b32 {v(t0)}, 15, {v(L)}
    v_and_b32 {v(t1)}, 3, {v(L)}
    v_mov_b32 {v(t2)}, 0
    v_mov_b32 {v(t3)}, 0x3f80
    v_cmp_eq_u32 vcc, 0, {v(t1)}
    v_cndmask_b32 {v(t2)}, {v(t2)}, {v(t3)}, vcc
    v_mov_b32 {v(t3)}, 0x3f800000
    v_cmp_eq_u32 vcc, 1, {v(t1)}
    v_cndmask_b32 {v(t2)}, {v(t2)}, {v(t3)}, vcc
    v_lshrrev_b32 {v(t0)}, 2, {v(t0)}
    v_mov_b32 {v(t3)}, 0
    v_mov_b32 {v(HALF)}, 0x3f803f80
    v_mov_b32 {v(HALF+1)}, 0
    """)
    for d in range(4):
        A(f"v_cmp_eq_u32 vcc, {d}, {v(t0)}\nv_cndmask_b32 {v(SELA+d)}, {v(t3)}, {v(t2)}, vcc")
    for i in range(len(order)): w_read(i)
    A("s_barrier")
    ev(A, 1, t0)
    if "wonly" in opt: A("s_endpgm")
    g0_wait(A, t0, sCnt, abort='chain_abort')

    def ensure_prog(need, lo=PMASK_LO, hi=PMASK_HI):
        lp, ok = A.label("cpw"), A.label("cpo")
        A(f"""
        s_mov_b32 {s(sCnt)}, 0
        {lp}:
        v_cmp_gt_u32 vcc, {need}, {v(vProg)}
        s_and_b32 vcc_lo, vcc_lo, {lo:#x}
        s_and_b32 vcc_hi, vcc_hi, {hi:#x}
        s_cmp_eq_u64 vcc, 0
        s_cbranch_scc1 {ok}
        s_sleep 1
        buffer_load_dword {v(vProg)}, {v(vPf)}, {WSR}, 0 offen sc1
        s_add_u32 {s(sCnt)}, {s(sCnt)}, 1
        s_cmp_gt_u32 {s(sCnt)}, {SPIN_LIMIT}
        s_cbranch_scc1 chain_abort
        s_waitcnt vmcnt(0)
        s_branch {lp}
        {ok}:
        """)

    def dma_list():
        A(f"""
        s_and_b32 {s(sT0)}, {s(sSeg)}, 7
        s_mul_i32 {s(sT0)}, {s(sT0)}, {QS}
        s_add_u32 {s(sD0)}, {s(sT0)}, {s(sKxb)}
        s_add_u32 {s(sD1)}, {s(sD0)}, 4096
        s_add_u32 {s(sD2)}, {s(sD0)}, 8192
        s_and_b32 {s(sT0)}, {s(sSeg)}, 3
        s_mul_i32 {s(sT0)}, {s(sT0)}, {S4}
        s_add_u32 {s(sD3)}, {s(sT0)}, {s(sUb)}
        """)
        D = []
        for i in range(16):
            pre = ""
            if i % 4 == 0: pre = (f"s_add_u32 m0, {s(sLk)}, {i*1024}\n" if i < 12 else f"s_mov_b32 m0, {s(sLu)}\n")
            D.append(pre + f"buffer_load_dwordx4 {v(vL16)}, {WSR}, {s([sD0, sD1, sD2, sD3][i // 4])} offen offset:{(i % 4)*1024} sc1 lds")
        return D

    def step_setup(isW):
        A(f"""
        s_add_u32 {s(sSVz)}, {s(sSVp)}, {s(sRoff)}
        s_and_b32 {s(sT0)}, {s(sSeg)}, 3
        s_mul_i32 {s(sT1)}, {s(sT0)}, {SV_SLOT}
        s_add_u32 {s(sSVp)}, {s(sSVb)}, {s(sT1)}
        s_mul_i32 {s(sT2)}, {s(sT0)}, {S4}
        s_add_u32 {s(sKm)}, {s(sKmb)}, {s(sT2)}
        """)
        if isW:
            A(f"""
            s_add_u32 {s(sWm)}, {s(sWmb)}, {s(sT2)}
            s_add_u32 {s(sG0)}, {s(sSVgb)}, {s(sT1)}
            s_add_u32 {s(sG1)}, {s(sG0)}, 3072
            s_add_u32 {s(sG2)}, {s(sG0)}, 6144
            s_mul_i32 {s(sXPr)}, {s(sT0)}, {XP_SLOT}
            s_add_u32 {s(sXPr)}, {s(sXPr)}, {s(sXPb)}
            s_lshl_b32 {s(sT1)}, {s(S_X)}, 8
            s_add_u32 {s(sXPw)}, {s(sXPr)}, {s(sT1)}
            s_xor_b32 {s(sXPz)}, {s(sXPw)}, 8192
            """)
            for i in range(16): A(f"v_mov_b32 {v(WMD+i)}, 0")
        for i in range(12): A(f"v_mov_b32 {v(accq+i)}, 0")

    km_st = f"buffer_store_dword {v(vKd)}, {v(vKst)}, {WSR}, {s(sKm)} offen"
    wm_st = f"buffer_store_dwordx4 {v(ZD,4)}, {v(vL16)}, {WSR}, {s(sWm)} offen"
    sv_rst = f"buffer_store_dwordx4 {v(SENT,4)}, {v(vL16)}, {WSR}, {s(sSVz)} offen"
    def flag(reg):
        A(f"buffer_store_dword {v(reg)}, {v(vCp)}, {WSR}, 0 offen")
    def spin():
        A(f"s_add_u32 {s(sCnt)}, {s(sCnt)}, 1\ns_cmp_gt_u32 {s(sCnt)}, {SPIN_LIMIT}\ns_cbranch_scc1 chain_abort")
    def mem_loads(P):
        A(f"""
        buffer_load_dwordx4 {v(P[0],4)}, {v(vMemG)}, {WSR}, {s(sMemCur)} offen sc1
        buffer_load_dwordx4 {v(P[1],4)}, {v(vMemG)}, {WSR}, {s(sMemCur)} offen offset:1024 sc1
        buffer_load_dwordx2 {v(P[2],2)}, {v(vMemG8)}, {WSR}, {s(sMemCur)} offen sc1
        """)
    def masked_reload(lb, pieces, tmp):
        for i, (R, ld) in enumerate(pieces):
            A(f"v_max3_u32 {v(tmp)}, {v(R)}, {v(R+1)}, {v(R+2)}\nv_max_u32 {v(tmp)}, {v(tmp)}, {v(R+3)}")
            A(f"v_cmp_eq_u32 vcc, -1, {v(tmp)}\ns_cbranch_vccz {lb}_s{i}\ns_mov_b64 exec, vcc\n{ld}\ns_mov_b64 exec, -1\n{lb}_s{i}:")
    def mem_poll2(PA, PB):
        lb = A.label("mq")
        def chk(P):
            a_, b_, c_ = P
            A(f"""
            s_waitcnt vmcnt(3)
            v_max3_u32 {v(t0)}, {v(a_)}, {v(a_+1)}, {v(a_+2)}
            v_max3_u32 {v(t1)}, {v(a_+3)}, {v(b_)}, {v(b_+1)}
            v_max3_u32 {v(t0)}, {v(t0)}, {v(b_+2)}, {v(b_+3)}
            v_max3_u32 {v(t1)}, {v(t1)}, {v(c_)}, {v(c_+1)}
            v_max_u32 {v(t0)}, {v(t0)}, {v(t1)}
            v_cmp_eq_u32 vcc, -1, {v(t0)}
            """)
        def wr(P):
            a_, b_, c_ = P
            A(f"""
            ds_write_b128 {v(vMemG)}, {v(a_,4)}
            ds_write_b128 {v(vMemG)}, {v(b_,4)} offset:1024
            ds_write_b64 {v(vMemG8)}, {v(c_,2)}
            """)
        A(f"s_mov_b32 {s(sCnt)}, 0")
        mem_loads(PA)
        A(f"s_sleep {optv.get('n2s', 2)}\n{lb}:")
        mem_loads(PB)
        chk(PA)
        A(f"s_cbranch_vccz {lb}_a")
        mem_loads(PA)
        spin()
        chk(PB)
        A(f"s_cbranch_vccnz {lb}")
        wr(PB)
        A(f"s_branch {lb}_ok\n{lb}_a:")
        wr(PA)
        A(f"{lb}_ok:\ns_waitcnt lgkmcnt(0)\ns_barrier")

    def prof_dump():
        if prof:
            A(f"""
            s_memrealtime {s(stamps[9],2)}
            s_waitcnt lgkmcnt(0)
            s_mul_i32 {s(sT0)}, {s(S_X)}, 12
            s_add_u32 {s(sT0)}, {s(sT0)}, {s(sC)}
            s_lshl_b32 {s(sT0)}, {s(sT0)}, 2
            s_add_u32 {s(sT0)}, {s(sT0)}, {s(S_W)}
            s_lshl_b32 {s(sT0)}, {s(sT0)}, 12
            s_lshl_b32 {s(sT1)}, {s(sSeg)}, 6
            s_add_u32 {s(sT0)}, {s(sT0)}, {s(sT1)}
            s_add_u32 {s(sT0)}, {s(sT0)}, {OFF_DBG}
            """)
            for i in range(NST):
                A(f"v_writelane_b32 {v(t0)}, {s(stamps[i])}, {i}")
            for i, c_ in enumerate(cnts[:2] + [sCnt]):
                A(f"v_writelane_b32 {v(t0)}, {s(c_)}, {10+i}")
            A(f"s_mov_b64 exec, 0x1fff\nbuffer_store_dword {v(t0)}, {v(vXw)}, {WSR}, {s(sT0)} offen\ns_mov_b64 exec, -1")

    swap_mem = f"""
    s_mov_b32 {s(sT0)}, {s(sMemCur)}
    s_mov_b32 {s(sMemCur)}, {s(sMemNxt)}
    s_mov_b32 {s(sMemNxt)}, {s(sT0)}
    """
    def nap(gd):
        if gd >= 16: A(f"s_sleep {gd // 16}")
        for _ in range(gd % 16 // 4): A("s_nop 3")

    def emit_loop(isW):
        tag = 'w' if isW else 'n'
        lp = f"chain_loop_{tag}"
        cold = []
        A(f"chain_pro_{tag}:")
        ev(A, 2, t0)
        if isW:
            ensure_prog(1, hi=PMASK_HI | 1 << 28)
            A(f"""
            v_readlane_b32 {s(sT0)}, {v(vProg)}, 60
            s_sub_u32 {s(sT0)}, {s(sT0)}, 1
            s_lshl_b32 {s(sT0)}, {s(sT0)}, 13
            s_add_u32 {s(sXPb)}, {s(sXPb)}, {s(sT0)}
            """)
            for x in dma_list(): A(x)
        else:
            ensure_prog(1, lo=0, hi=1 << 28)
            A(f"""
            s_sub_u32 {s(sT0)}, {s(sC)}, 10
            s_lshl_b32 {s(sT0)}, {s(sT0)}, 2
            s_add_u32 {s(sT0)}, {s(sT0)}, {s(S_W)}
            s_cmp_lt_u32 {s(sT0)}, 4
            s_cselect_b32 {s(sXPz)}, 16, 8
            s_lshl_b32 {s(sXPz)}, {s(sXPz)}, 13
            s_lshl_b32 {s(sXPb)}, {s(sT0)}, 13
            s_lshl_b32 {s(sT0)}, {s(S_X)}, 8
            s_add_u32 {s(sXPb)}, {s(sXPb)}, {s(sT0)}
            s_add_u32 {s(sXPb)}, {s(sXPb)}, {OFF_XP}
            v_lshrrev_b32 {v(t0)}, 4, {v(L)}
            v_lshlrev_b32 {v(t0)}, 11, {v(t0)}
            v_and_b32 {v(t1)}, 15, {v(L)}
            v_lshl_add_u32 {v(vRedW)}, {v(t1)}, 4, {v(t0)}
            """)
        ev(A, 3, t0)
        A(f"s_add_u32 {s(sSVp)}, {s(sSVb)}, {3*SV_SLOT}"); step_setup(isW)
        A(f"{lp}:")
        stamp(0)
        PA, PB = (KX + 28, KX + 32, KX + 36), (KX + 38, KX + 42, KX + 46)
        mem_poll2(PA, PB)
        stamp(1)
        if prof: A(f"s_mov_b32 {s(cnts[0])}, {s(sCnt)}")
        LG = Cnt(A, "lgkmcnt", 15)
        if prof: A("s_waitcnt lgkmcnt(0)")
        for b in range(10):
            LG.issue(f"ds_read_b128 {v(MF+4*b,4)}, {v(vL16)} offset:{LDS_MEM+b*1024}", b)
        def kfrag(i):
            j, r_ = i // 4, i % 4
            return (r_ >> 1) * 6 + 2 * j + (1 if r_ in (1, 2) else 0)
        KR = [f"ds_read_b128 {v(KX+4*i,4)}, {v(vLk)} offset:{4096 + kfrag(i)*1024}" for i in range(12)] if isW else []
        def pub(acc, tmp, dst, vaddr, off, isv):
            P = [f"v_pk_add_f32 {v(acc,2)}, {v(acc,2)}, {v(acc+2,2)}",
                 f"v_cvt_pk_bf16_f32 {v(dst)}, {v(acc)}, {v(acc+1)}"]
            if isv:
                P += [f"v_mov_b32_dpp {v(tmp)}, {v(dst)} row_ror:4 row_mask:0xf bank_mask:0xa",
                      f"v_mov_b32_dpp {v(tmp)}, {v(dst)} row_ror:12 row_mask:0xf bank_mask:0x5",
                      f"v_perm_b32 {v(dst)}, {v(tmp)}, {v(dst)}, {v(vSel)}"]
            else:
                P += [f"v_mov_b32_dpp {v(tmp)}, {v(dst)} quad_perm:[1,0,3,2] row_mask:0xf bank_mask:0xf",
                      f"v_perm_b32 {v(dst)}, {v(tmp)}, {v(dst)}, {v(vSel2)}"]
            P += [f"buffer_store_dword {v(dst)}, {v(vaddr)}, {WSR}, {s(sSVp)} offen offset:{off}"]
            return P
        GLq = [(GQ + 4*j, f"buffer_load_dwordx4 {v(GQ+4*j,4)}, {v(vL16)}, {WSR}, {s([sG0, sG1, sG2][j])} offen sc1") for j in range(3)]
        GLk = [(GK + 4*j, f"buffer_load_dwordx4 {v(GK+4*j,4)}, {v(vL16)}, {WSR}, {s([sG0, sG1, sG2][j])} offen offset:1024 sc1") for j in range(3)]
        GLv = [(GV + 4*j, f"buffer_load_dwordx4 {v(GV+4*j,4)}, {v(vL16)}, {WSR}, {s([sG0, sG1, sG2][j])} offen offset:2048 sc1") for j in range(3)]
        VM = Cnt(A, "vmcnt", 63)
        side = []
        qpos = int(optv.get("qpos", 99))
        for m, (acc, W) in enumerate(((accq, WQ), (acck, WK), (accv, WV))):
            for b in range(10):
                if m == 0: LG.wait(b)
                A(f"v_smfmac_f32_16x16x64_bf16 {v(acc,4)}, {v(MF+4*b,4)}, {r(W+8*b,8)}, {v(vIdx)}")
                if b >= 1 and side:
                    x = side.pop(0); A(x)
                    if x.startswith("buffer"): VM.note("st")
                elif m >= 1 and KR:
                    if len(KR) == 5: A(f"s_waitcnt vmcnt({len(VM.q)})")
                    A(KR.pop(0))
                    if KR and len(KR) != 5: A(KR.pop(0))
                if isW and m == 2 and b >= qpos and b - qpos < 3: VM.issue(GLq[b - qpos][1], ("q", b - qpos))
            if m == 0: side = pub(accq, t1, t0, vQst, 0, False); stamp(2)
            if m == 1: side = pub(acck, t1, vKd, vKst, 1024, False)
        assert not side and not KR
        for x in pub(accv, t1, t0, vVst, 2048, True): A(x)
        stamp(3)
        if not isW:
            A(f"""
            {km_st}
            {sv_rst}
            s_and_b32 {s(sT0)}, {s(sSeg)}, 3
            s_xor_b32 {s(sT0)}, {s(sT0)}, 2
            s_mul_i32 {s(sT0)}, {s(sT0)}, {XP_SLOT}
            s_add_u32 {s(sT0)}, {s(sT0)}, {s(sXPb)}
            s_add_u32 {s(sT1)}, {s(sT0)}, {8*8192}
            s_add_u32 {s(sT2)}, {s(sT0)}, {s(sXPz)}
            s_add_u32 {s(sSeg)}, {s(sSeg)}, 1
            v_mov_b32 {v(t3)}, {s(sSeg)}
            s_waitcnt vmcnt(0)
            """)
            flag(t3)
            A(f"""
            s_cmp_eq_u32 {s(sSeg)}, {NSEG}
            s_cbranch_scc1 chain_end
            s_barrier
            buffer_store_dwordx4 {v(SENT,4)}, {v(vRedW)}, {WSR}, {s(sT0)} offen sc1
            buffer_store_dwordx4 {v(SENT,4)}, {v(vRedW)}, {WSR}, {s(sT1)} offen sc1
            buffer_store_dwordx4 {v(SENT,4)}, {v(vRedW)}, {WSR}, {s(sT2)} offen sc1
            """)
            A(swap_mem)
            step_setup(isW)
            A("s_waitcnt vmcnt(0)")
            stamp(4)
            prof_dump()
            A(f"s_sleep {optv.get('nsl', 16)}\ns_branch {lp}")
            return
        nap(int(optv.get("gq", 0)))
        if qpos > 9:
            for j in range(3): VM.issue(GLq[j][1], ("q", j))
        nap(int(optv.get("gk", 0)))
        for j in range(3): VM.issue(GLk[j][1], ("k", j))
        nap(int(optv.get("gv", 40)))
        for j in range(3): VM.issue(GLv[j][1], ("v", j))
        gq, gk, gv = A.label("gq"), A.label("gk"), A.label("gv")
        def retry(lb, GL):
            def f():
                A(f"{lb}_r:")
                masked_reload(lb, GL, t2)
                spin()
                A(f"s_waitcnt vmcnt(0)\ns_branch {lb}")
            cold.append(f)
        retry(gq, GLq); retry(gk, GLk); retry(gv, GLv)
        def chk(R):
            return [f"v_max3_u32 {v(t2)}, {v(R)}, {v(R+1)}, {v(R+2)}",
                    f"v_max3_u32 {v(t3)}, {v(R+3)}, {v(R+4)}, {v(R+5)}",
                    f"v_max3_u32 {v(t2)}, {v(t2)}, {v(R+6)}, {v(R+7)}",
                    f"v_max3_u32 {v(t3)}, {v(t3)}, {v(R+8)}, {v(R+9)}",
                    f"v_max3_u32 {v(t2)}, {v(t2)}, {v(R+10)}, {v(R+11)}",
                    f"v_max_u32 {v(t2)}, {v(t2)}, {v(t3)}",
                    f"v_cmp_eq_u32 vcc, -1, {v(t2)}"]
        A(f"s_mov_b32 {s(sCnt)}, 0\ns_waitcnt lgkmcnt(0)")
        VM.wait(("q", 2))
        stamp(4)
        A(f"{gq}:")
        C = chk(GQ)
        for j in range(3):
            for i, acc in enumerate((X_, X1, Y_, Y1)):
                cc = "0" if j == 0 else v(acc, 4)
                A(f"v_mfma_f32_16x16x32_bf16 {v(acc,4)}, {v(KX+16*j+4*i,4)}, {v(GQ+4*j,4)}, {cc}")
                for _ in range(2):
                    if C: A(C.pop(0))
                if j == 0 and i == 3: A(f"s_cbranch_vccnz {gq}_r")
                if j >= 1 and i % 2 == 1:
                    ct = (j - 1) * 2 + i // 2
                    A(f"ds_read_b128 {v(U+4*ct,4)}, {v(vLk)} offset:{ct*1024}")
        VM.wait(("k", 2))
        A(f"{gk}:")
        C = chk(GK)
        for j in range(3):
            cc = "0" if j == 0 else v(DM, 4)
            A(f"v_mfma_f32_16x16x32_bf16 {v(DM,4)}, {v(GK+4*j,4)}, {v(GQ+4*j,4)}, {cc}")
            for _ in range(3 if j == 2 else 2): A(C.pop(0))
        A(f"s_cbranch_vccnz {gk}_r")
        S0 = X_; S4_ = DM; S5_ = DM + 1
        for i in range(4):
            A(f"v_add_f32_dpp {v(S0+i)}, {v(X1+i)}, {v(X_+i)} row_ror:8 row_mask:0xf bank_mask:0x3")
            A(f"v_add_f32_dpp {v(S0+i)}, {v(Y1+i)}, {v(Y_+i)} row_ror:8 row_mask:0xf bank_mask:0xc")
        A(f"""
        v_add_f32_dpp {v(S4_)}, {v(DM+2)}, {v(DM)} row_ror:8 row_mask:0xf bank_mask:0x3
        v_add_f32_dpp {v(S4_)}, {v(DM+1)}, {v(DM+3)} row_ror:8 row_mask:0xf bank_mask:0xc
        v_max3_f32 {v(t0)}, {v(S0)}, {v(S0+1)}, {v(S0+2)}
        v_max3_f32 {v(t0)}, {v(t0)}, {v(S0+3)}, {v(S4_)}
        """)
        SS = [S4_, S0, S0 + 1, S0 + 2, S0 + 3]
        cL = f32bits(SCALE * 1.4426950408889634)
        sm = [f"v_max_f32_dpp {v(t0)}, {v(t0)}, {v(t0)} row_ror:8 row_mask:0xf bank_mask:0xf",
              f"v_mov_b32 {v(t1)}, {v(t0)}",
              f"v_mul_f32 {v(S0)}, {cL}, {v(S0)}",
              f"v_mul_f32 {v(S0+1)}, {cL}, {v(S0+1)}",
              f"v_permlane16_swap_b32 {v(t0)}, {v(t1)}",
              f"v_max_f32 {v(t0)}, {v(t0)}, {v(t1)}",
              f"v_mov_b32 {v(t1)}, {v(t0)}",
              f"v_mul_f32 {v(S0+2)}, {cL}, {v(S0+2)}",
              f"v_mul_f32 {v(S0+3)}, {cL}, {v(S0+3)}",
              f"v_permlane32_swap_b32 {v(t0)}, {v(t1)}",
              f"v_max_f32 {v(t0)}, {v(t0)}, {v(t1)}",
              f"v_mul_f32 {v(S4_)}, {cL}, {v(S4_)}",
              f"v_mul_f32 {v(t0)}, {cL}, {v(t0)}"]
        sm += [f"v_sub_f32 {v(x)}, {v(x)}, {v(t0)}" for x in SS]
        sm += [f"v_exp_f32 {v(x)}, {v(x)}" for x in SS]
        sm += [f"v_mov_b32_dpp {v(S5_)}, {v(S4_)} row_ror:8 row_mask:0xf bank_mask:0xf",
               f"v_cvt_pk_bf16_f32 {v(PX)}, {v(S0)}, {v(S0+1)}",
               f"v_cvt_pk_bf16_f32 {v(PX+1)}, {v(S0+2)}, {v(S0+3)}",
               f"v_cvt_pk_bf16_f32 {v(PM)}, {v(S4_)}, {v(S5_)}",
               f"v_mov_b32_dpp {v(PX+2)}, {v(PX)} row_ror:8 row_mask:0xf bank_mask:0xf",
               f"v_mov_b32_dpp {v(PX+3)}, {v(PX+1)} row_ror:8 row_mask:0xf bank_mask:0xf",
               f"v_mov_b32 {v(PM+1)}, {v(PM)}"]
        A(f"s_waitcnt vmcnt(0)\n{gv}:")
        for x in chk(GV): A(x)
        A(f"s_cbranch_vccnz {gv}_r")
        stamp(5)
        if prof: A(f"s_mov_b32 {s(cnts[1])}, {s(sCnt)}")
        wm = []
        for b in range(3):
            for ct in range(4):
                wm.append(f"v_smfmac_f32_16x16x64_bf16 {v(WMD+4*ct,4)}, {v(GV+4*b,4)}, {r(WOf(ct,2*b),8)}, {v(vIdx)}")
        while wm or sm:
            if wm: A(wm.pop(0))
            for _ in range(2):
                if sm: A(sm.pop(0))
        A(f"s_waitcnt lgkmcnt(0)\nv_mfma_f32_16x16x32_bf16 {v(ZD,4)}, {v(ONES,4)}, {v(PX,4)}, 0")
        for ct in range(4):
            A(f"v_cvt_pk_bf16_f32 {v(WMP+2*ct)}, {v(WMD+4*ct)}, {v(WMD+4*ct+1)}")
            A(f"v_cvt_pk_bf16_f32 {v(WMP+2*ct+1)}, {v(WMD+4*ct+2)}, {v(WMD+4*ct+3)}")
            A(f"v_mfma_f32_16x16x32_bf16 {v(FD+4*ct,4)}, {v(U+4*ct,4)}, {v(PX,4)}, 0")
            if ct == 1: A(f"v_mfma_f32_16x16x16_bf16 {v(ZD,4)}, {v(HALF,2)}, {v(PM,2)}, {v(ZD,4)}")
        A(f"s_add_u32 {s(sSeg)}, {s(sSeg)}, 1")
        for ct in range(4):
            A(f"v_mfma_f32_16x16x16_bf16 {v(FD+4*ct,4)}, {v(WMP+2*ct,2)}, {v(PM,2)}, {v(FD+4*ct,4)}")
            if ct == 1: A(f"v_rcp_f32 {v(QK)}, {v(ZD)}")
        A(f"""
        v_mov_b32 {v(QK+1)}, {v(QK)}
        s_cmp_eq_u32 {s(sSeg)}, {NSEG}
        s_cbranch_scc1 chain_last
        s_mov_b64 exec, {s(sMlo,2)}
        """)
        for ct in range(4):
            A(f"v_pk_mul_f32 {v(FD+4*ct,2)}, {v(QK,2)}, {v(FD+4*ct,2)}")
            A(f"v_pk_mul_f32 {v(FD+4*ct+2,2)}, {v(QK,2)}, {v(FD+4*ct+2,2)}")
            A(f"ds_write_b128 {v(vRedW)}, {v(FD+4*ct,4)} offset:{ct*512}")
        A(f"""
        s_mov_b64 exec, -1
        s_waitcnt lgkmcnt(0)
        s_barrier
        """)
        for w in range(4):
            A(f"ds_read_b64 {v(RR+2*w,2)}, {v(vRedR)} offset:{w*2048}")
        XD = MF + 32
        A(f"""
        s_mov_b32 {s(sXPl)}, {s(sXPr)}
        s_waitcnt lgkmcnt(2)
        v_pk_add_f32 {v(RR,2)}, {v(RR,2)}, {v(RR+2,2)}
        s_waitcnt lgkmcnt(0)
        v_pk_add_f32 {v(RR+4,2)}, {v(RR+4,2)}, {v(RR+6,2)}
        v_pk_add_f32 {v(QK,2)}, {v(RR,2)}, {v(RR+4,2)}
        v_cvt_pk_bf16_f32 {v(QK)}, {v(QK)}, {v(QK+1)}
        buffer_store_dword {v(QK)}, {v(vXw)}, {WSR}, {s(sXPz)} offen sc1
        buffer_store_dword {v(QK)}, {v(vXw)}, {WSR}, {s(sXPw)} offen sc1
        """)
        stamp(6)
        def wm_pack():
            for ct in range(4):
                A(f"v_pk_add_f32 {v(WMD+4*ct,2)}, {v(WMD+4*ct,2)}, {v(WMD+4*ct+2,2)}")
                A(f"v_cvt_pk_bf16_f32 {v(ZD+ct)}, {v(WMD+4*ct)}, {v(WMD+4*ct+1)}")
        A(f"""
        s_add_u32 {s(sT2)}, {s(sSeg)}, 1
        v_mov_b32 {v(t3)}, {s(sSeg)}
        buffer_store_dword {v(SENT)}, {v(vMemW)}, {WSR}, {s(sMemCur)} offen
        {km_st}
        """)
        wm_pack()
        A(wm_st); A(sv_rst)
        ensure_prog(s(sT2))
        D = dma_list()
        n1 = int(optv.get("n1", 6))
        for x in D[:n1]: A(x)
        A(swap_mem)
        step_setup(isW)
        nap(int(optv.get("xsl", 0)))
        XL = [(MF + 4*i, f"buffer_load_dwordx4 {v(MF+4*i,4)}, {v(vL16)}, {WSR}, {s(sXPl)} offen offset:{i*1024} sc1") for i in range(2)]
        for x in XL: A(x[1])
        stamp(7)
        for x in D[n1:]: A(x)
        A(f"buffer_load_dword {v(vProg)}, {v(vPf)}, {WSR}, 0 offen sc1")
        xp = A.label("xp")
        retry(xp, XL)
        A(f"""
        s_mov_b32 {s(sCnt)}, 0
        s_waitcnt vmcnt({17 - n1})
        {xp}:
        v_mfma_f32_16x16x32_bf16 {v(XD,4)}, {v(SELA,4)}, {v(MF,4)}, 0
        v_mfma_f32_16x16x32_bf16 {v(XD,4)}, {v(SELA,4)}, {v(MF+4,4)}, {v(XD,4)}
        v_cmp_u_f32 vcc, {v(XD)}, {v(XD+1)}
        v_cvt_pk_bf16_f32 {v(t1)}, {v(XD)}, {v(XD+1)}
        s_cbranch_vccnz {xp}_r
        buffer_store_dword {v(t1)}, {v(vMemW)}, {WSR}, {s(sMemCur)} offen
        """)
        flag(t3)
        stamp(8)
        prof_dump()
        A(f"s_branch {lp}")
        for f in cold: f()
        A("chain_last:")
        wm_pack()
        A(km_st); A(wm_st)
        A(f"v_mov_b32 {v(t3)}, {s(sSeg)}\ns_waitcnt vmcnt(0)")
        flag(t3)
        A("s_branch chain_end")

    A(f"s_cmp_lt_u32 {s(sC)}, 10\ns_cbranch_scc0 chain_pro_n")
    emit_loop(True); emit_loop(False)
    A("chain_end:")
    ev(A, 4, t0)
    A(f"""
    s_endpgm
    chain_abort:
    v_mov_b32 {v(t0)}, 128
    v_mov_b32 {v(t1)}, 1
    s_mov_b64 exec, 1
    buffer_atomic_add {v(t1)}, {v(t0)}, {s(S_DBG,4)}, 0 offen
    s_endpgm
    """)
```

```python
from common import *
from k_boot import *

LDS_MEM, LDS_T, LDS_T2, LDS_RED, LDS_RZ = 0, 10240, 12288, 14336, 22528
SCALE = 192 ** -0.5
PMASK_LO, PMASK_HI = 0x00fff000, 0x00fffff0
ZLO, ZHI = (127 - 60) << 23, (127 + 100) << 23

def gen_chain(A, prof=False, opt=()):
    optv = dict(o.split("=") for o in opt if "=" in o)
    NSEG = 64
    sa = Alloc(20, 100)
    SQ, SK, SV_, SO = sa(4, 4), sa(4, 4), sa(4, 4), sa(4, 4)
    sC, sLH, sP, sSeg, sCnt = [sa() for _ in range(5)]
    sT0, sT1, sT2, sM0 = [sa() for _ in range(4)]
    sMemB, sMemCur = sa(), sa()
    sSVb, sSVgb = sa(), sa()
    sSVs, sSVv, sSVg, sSVgv = [sa() for _ in range(4)]
    sSoff, sVoff = sa(), sa()
    sKm, sWm, sKx, sKmb, sWmb, sUb = [sa() for _ in range(6)]
    sXPw, sXPr, sXPz, sXPb, sXPl = [sa() for _ in range(5)]
    NP = XPN[0]
    sXPw_, sXPz_, sXPl_ = [[b] + [sa() for _ in range(NP - 1)] for b in (sXPw, sXPz, sXPl)]
    BYP = "byp" in opt; HB = "hb" in opt
    sKo, sUo = sa(), sa()
    sXPo_ = [sa() for _ in range(NP)]; sXm = sa(2, 2); sXh = sa()
    sMlo, sMhi, sMS, sPend, sCL = sa(2, 2), sa(2, 2), sa(2, 2), sa(2, 2), sa(2, 2)
    NST = 10
    stamps = [SK + 2 * i for i in range(6)] + [sa(2, 2) for _ in range(NST - 6)] if prof else []
    cnts = [SQ, SQ + 1] if prof else []

    va = Alloc(2, 176)
    def WOf(ct, kk):
        f = ct * 6 + kk
        return 176 + 4 * f if f < 20 else 256 + 240 + 4 * (f - 20)
    WQ, WK, WV = 256, 256 + 80, 256 + 160
    MF = va(40, 4)
    U = va(16, 4)
    KX = va(8, 4)
    accq, acck, accv, accS = va(4, 4), va(4, 4), va(4, 4), va(4, 4)
    SELA, ONES = va(4, 4), va(4, 4)
    SENT = SELA
    WMD = va(16, 4)
    WMP = va(8, 4)
    PXL, PXH, PML, PMH = va(4, 4), va(4, 4), va(2, 2), va(2, 2)
    QK, HALF = va(2, 2), va(2, 2)
    QF = va(8, 4)
    FD = va(8, 4)
    CX, CY = va(2, 2), va(2, 2)
    (vL16, vL8, vMemG, vMemG8, vTw, vTw2, vVst, vRedW, vRedR, vMemW, vPf, vCp, vIdx, vSel, vKm,
     vProg, vXw, vRzW, vRzR, t0, t1, t2, t3, vPi) = [va() for _ in range(24)]
    G_SX, G_SM, G_V = MF, MF + 12, MF + 16
    ZD = accS
    L = V_LANE
    WSR = s(S_WS, 4)

    PMODE = optv.get("pm", "0 1 2 3 4 5 6 7 8".replace(" ", ",")).split(",")
    def stamp(i):
        if prof and str(i) in PMODE: A(f"s_memtime {s(stamps[PMODE.index(str(i))],2)}")

    srd(A, SQ, "wq"); srd(A, SK, "wk"); srd(A, SV_, "wv"); srd(A, SO, "wo")
    A(f"""
    s_mov_b32 {s(sC)}, {s(S_T)}
    s_mul_i32 {s(sLH)}, {s(sC)}, 43
    s_lshr_b32 {s(sLH)}, {s(sLH)}, 7
    s_mul_i32 {s(sT0)}, {s(sLH)}, 3
    s_sub_u32 {s(sP)}, {s(sC)}, {s(sT0)}
    """)
    vSrc, vSrcO = MF, MF + 1
    vRdq, vRo = MF + 2, MF + 6
    sW1, sW2 = sXPw, sXPr
    panel_src_off(A, vSrc, t0, L, 12288)
    A(f"""
    s_lshl_b32 {s(sT0)}, {s(S_X)}, 2
    s_add_u32 {s(sT0)}, {s(sT0)}, {s(sLH)}
    s_mul_i32 {s(sW1)}, {s(sT0)}, 384
    s_lshl_b32 {s(sT0)}, {s(sP)}, 7
    s_add_u32 {s(sW1)}, {s(sW1)}, {s(sT0)}
    s_mul_i32 {s(sT0)}, {s(S_W)}, {80*12288}
    s_add_u32 {s(sW1)}, {s(sW1)}, {s(sT0)}
    s_lshl_b32 {s(sT0)}, {s(S_X)}, 2
    s_add_u32 {s(sT0)}, {s(sT0)}, {s(S_W)}
    s_mul_i32 {s(sW2)}, {s(sT0)}, {192*1280}
    s_min_u32 {s(sT0)}, {s(sC)}, 9
    s_lshl_b32 {s(sT0)}, {s(sT0)}, 7
    s_add_u32 {s(sW2)}, {s(sW2)}, {s(sT0)}
    s_mul_i32 {s(sM0)}, {s(S_W)}, 10240
    s_waitcnt lgkmcnt(0)
    """)
    CH = {"v": (SV_, WV), "k": (SK, WK), "q": (SQ, WQ)}
    order = optv.get("word", "v1k1q1v0k0q0o2o1o0")
    order = [(order[i], int(order[i+1])) for i in range(0, len(order), 2)]
    DEPTH = int(optv.get("wdep", 2))
    assert DEPTH <= 3 and all(m != "o" for m, _ in order[:DEPTH])
    VMW = Cnt(A, "vmcnt", 63)
    def w_issue(i):
        m, h = order[i]; buf = i % 4
        for n in range(10 if m != "o" else 8):
            if m != "o":
                A(f"s_add_u32 m0, {s(sM0)}, {buf*40960 + n*1024}\ns_add_u32 {s(sT0)}, {s(sW1)}, {(h*320 + n*8)*12288}")
                VMW.issue(f"buffer_load_dwordx4 {v(vSrc)}, {s(CH[m][0],4)}, {s(sT0)} offen nt lds", i)
            else:
                nn = h * 8 + n
                rows = 64 * (nn >> 3) + 32 * ((nn >> 2) & 1) + 16 * (nn & 1) + ((nn >> 1) & 1)
                A(f"s_add_u32 m0, {s(sM0)}, {buf*40960 + n*1024}\ns_add_u32 {s(sT0)}, {s(sW2)}, {rows*1280}")
                VMW.issue(f"buffer_load_dwordx4 {v(vSrcO)}, {s(SO,4)}, {s(sT0)} offen nt lds", i)
    def w_read(i):
        m, h = order[i]; buf = i % 4
        VMW.wait(i)
        if i + DEPTH < len(order): w_issue(i + DEPTH)
        if m != "o":
            A("s_barrier")
            for ks in range(10): panel_read_frag(A, CH[m][1] + 4 * (h * 10 + ks), vRdq + buf, ks * 4096)
            A("s_waitcnt lgkmcnt(0)\ns_barrier")
        else:
            for ct in range(4):
                A(f"v_add_u32 {v(t0)}, {buf*40960}, {v(vRo+ct)}")
                for k2 in range(2): panel_read_frag(A, WOf(ct, 2 * h + k2), t0, k2 * 4096)
            A("s_waitcnt lgkmcnt(0)")
    for i in range(DEPTH): w_issue(i)
    A(f"s_lshl_b32 {s(sT0)}, {s(S_W)}, 1")
    panel_rd_addr(A, vRdq, t0, t1, L, s(sT0))
    for b in range(1, 4): A(f"v_add_u32 {v(vRdq+b)}, {40960*b}, {v(vRdq)}")
    panel_src_off(A, vSrcO, t0, L, 0)
    A(f"""
    v_bfe_u32 {v(t0)}, {v(L)}, 3, 2
    v_lshlrev_b32 {v(t0)}, 2, {v(t0)}
    v_bfe_u32 {v(t1)}, {v(L)}, 5, 1
    v_lshl_add_u32 {v(t0)}, {v(t1)}, 1, {v(t0)}
    v_mul_u32_u24 {v(t0)}, 1280, {v(t0)}
    v_add_u32 {v(vSrcO)}, {v(vSrcO)}, {v(t0)}
    """)
    for ct in range(4):
        panel_rd_addr(A, vRo + ct, t0, t1, L, ct)
        A(f"v_add_u32 {v(vRo+ct)}, {s(sM0)}, {v(vRo+ct)}")
    for i in range(4): A(f"v_mov_b32 {v(ONES+i)}, 0x3f803f80")
    for i in range(12): A(f"v_mov_b32 {v(PXL+i)}, 0")
    g_, q_, fl_ = U, U + 1, U + 2
    A(f"""
    v_lshlrev_b32 {v(vL16)}, 4, {v(L)}
    v_lshlrev_b32 {v(vL8)}, 3, {v(L)}
    v_lshlrev_b32 {v(vXw)}, 2, {v(L)}
    s_mul_i32 {s(sT0)}, {s(S_W)}, 2560
    v_add_u32 {v(vMemG)}, {s(sT0)}, {v(vL16)}
    s_add_u32 {s(sT0)}, {s(sT0)}, 2048
    v_add_u32 {v(vMemG8)}, {s(sT0)}, {v(vL8)}
    v_lshrrev_b32 {v(g_)}, 4, {v(L)}
    v_and_b32 {v(q_)}, 7, {v(L)}
    v_and_b32 {v(fl_)}, 15, {v(L)}
    v_bfe_u32 {v(t0)}, {v(L)}, 1, 1
    v_mul_u32_u24 {v(t0)}, 0xaaaa, {v(t0)}
    v_add_u32 {v(vIdx)}, 0x4444, {v(t0)}
    v_bfe_u32 {v(t0)}, {v(L)}, 2, 1
    v_mov_b32 {v(vSel)}, 0x05040100
    v_mov_b32 {v(t1)}, 0x03020706
    v_cmp_eq_u32 vcc, 1, {v(t0)}
    v_cndmask_b32 {v(vSel)}, {v(vSel)}, {v(t1)}, vcc
    s_lshl_b32 {s(sT0)}, {s(S_W)}, 9
    s_add_u32 {s(sT0)}, {s(sT0)}, {LDS_T}
    v_lshlrev_b32 {v(t0)}, 5, {v(fl_)}
    v_lshl_add_u32 {v(t0)}, {v(g_)}, 2, {v(t0)}
    v_add_u32 {v(vTw)}, {s(sT0)}, {v(t0)}
    v_lshl_add_u32 {v(vTw2)}, {v(g_)}, 2, {v(vTw)}
    v_add_u32 {v(vTw2)}, {LDS_T2-LDS_T}, {v(vTw2)}
    s_lshl_b32 {s(sT0)}, {s(S_W)}, 8
    v_add_u32 {v(vVst)}, {s(sT0)}, {v(vXw)}
    s_lshl_b32 {s(sT0)}, {s(sC)}, 10
    v_add_u32 {v(vMemW)}, {s(sT0)}, {v(vVst)}
    s_lshl_b32 {s(sT0)}, {s(sP)}, 10
    s_lshl_b32 {s(sT1)}, {s(sP)}, 2
    s_add_u32 {s(sT1)}, {s(sT1)}, 3072
    s_cmp_lt_u32 {s(S_W)}, 2
    s_cselect_b32 {s(sSoff)}, {s(sT0)}, {s(sT1)}
    s_add_u32 {s(sVoff)}, {s(sT0)}, 4096
    v_bfe_u32 {v(t0)}, {v(L)}, 2, 2
    v_lshlrev_b32 {v(t0)}, 1, {v(t0)}
    v_and_b32 {v(t1)}, 1, {v(L)}
    v_add_u32 {v(t0)}, {v(t0)}, {v(t1)}
    v_lshl_add_u32 {v(t0)}, {v(g_)}, 3, {v(t0)}
    v_lshlrev_b32 {v(t0)}, 4, {v(t0)}
    v_add_u32 {v(vKm)}, {s(sT0)}, {v(t0)}
    s_lshl_b32 {s(sT0)}, {s(S_W)}, 11
    s_add_u32 {s(sT0)}, {s(sT0)}, {LDS_RED}
    v_add_u32 {v(vRedW)}, {s(sT0)}, {v(vL16)}
    s_lshl_b32 {s(sT0)}, {s(S_W)}, 2
    s_add_u32 {s(sT0)}, {s(sT0)}, {LDS_RZ}
    v_lshl_add_u32 {v(vRzW)}, {v(fl_)}, 4, {s(sT0)}
    s_lshl_b32 {s(sT0)}, {s(S_W)}, 9
    s_add_u32 {s(sT0)}, {s(sT0)}, {LDS_RED}
    v_and_b32 {v(t0)}, 3, {v(L)}
    v_lshlrev_b32 {v(t0)}, 5, {v(t0)}
    v_bfe_u32 {v(t1)}, {v(L)}, 4, 1
    v_lshl_add_u32 {v(t0)}, {v(t1)}, 4, {v(t0)}
    v_add_u32 {v(vRzR)}, {LDS_RZ}, {v(t0)}
    v_bfe_u32 {v(t1)}, {v(L)}, 5, 1
    v_lshl_add_u32 {v(t0)}, {v(t1)}, 3, {v(t0)}
    v_bfe_u32 {v(t1)}, {v(L)}, 2, 2
    v_lshl_add_u32 {v(t0)}, {v(t1)}, 7, {v(t0)}
    v_add_u32 {v(vRedR)}, {s(sT0)}, {v(t0)}
    ; masks
    s_mov_b32 {s(sMlo)}, 0x00ff00ff
    s_mov_b32 {s(sMlo+1)}, 0x00ff00ff
    s_mov_b32 {s(sMhi)}, 0xff00ff00
    s_mov_b32 {s(sMhi+1)}, 0xff00ff00
    s_cmp_eq_u32 {s(S_W)}, 0
    s_cselect_b64 {s(sMS,2)}, {s(sMlo,2)}, {s(sMhi,2)}
    s_mov_b32 {s(sCL)}, {f32bits(SCALE * 1.4426950408889634)}
    s_mov_b32 {s(sCL+1)}, {s(sCL)}
    s_mov_b64 {s(sPend,2)}, 0
    s_mul_i32 {s(sMemB)}, {s(S_X)}, 10240
    s_add_u32 {s(sMemB)}, {s(sMemB)}, {OFF_MEM}
    s_lshl_b32 {s(sT0)}, {s(S_X)}, 17
    s_add_u32 {s(sT0)}, {s(sT0)}, {OFF_SV2}
    s_lshl_b32 {s(sT1)}, {s(sLH)}, 13
    s_add_u32 {s(sSVb)}, {s(sT0)}, {s(sT1)}
    s_lshl_b32 {s(sT1)}, {s(S_W)}, 13
    s_add_u32 {s(sSVgb)}, {s(sT0)}, {s(sT1)}
    s_lshl_b32 {s(sT2)}, {s(S_X)}, 22
    s_add_u32 {s(sT2)}, {s(sT2)}, {OFF_RING}
    s_mul_i32 {s(sKmb)}, {s(sLH)}, 3072
    s_add_u32 {s(sKmb)}, {s(sKmb)}, {s(sT2)}
    s_add_u32 {s(sKmb)}, {s(sKmb)}, {R_KM}
    s_mul_i32 {s(sKx)}, {s(sLH)}, 12288
    s_add_u32 {s(sKx)}, {s(sKx)}, {s(sT2)}
    s_add_u32 {s(sKx)}, {s(sKx)}, {QKV_MAT}
    s_and_b32 {s(sT0)}, {s(S_W)}, 1
    s_mul_i32 {s(sT0)}, {s(sT0)}, 6144
    s_add_u32 {s(sKx)}, {s(sKx)}, {s(sT0)}
    s_lshl_b32 {s(sT0)}, {s(sP)}, 11
    s_add_u32 {s(sKx)}, {s(sKx)}, {s(sT0)}
    s_mul_i32 {s(sUb)}, {s(S_W)}, 40960
    s_add_u32 {s(sUb)}, {s(sUb)}, {s(sT2)}
    s_add_u32 {s(sUb)}, {s(sUb)}, {R_U}
    s_lshl_b32 {s(sT1)}, {s(sC)}, 12
    s_add_u32 {s(sUb)}, {s(sUb)}, {s(sT1)}
    s_mul_i32 {s(sWmb)}, {s(S_W)}, 10240
    s_add_u32 {s(sWmb)}, {s(sWmb)}, {s(sT2)}
    s_add_u32 {s(sWmb)}, {s(sWmb)}, {R_WM}
    s_lshl_b32 {s(sT1)}, {s(sC)}, 10
    s_add_u32 {s(sWmb)}, {s(sWmb)}, {s(sT1)}
    s_mul_i32 {s(sXPb)}, {s(sC)}, {NP*16384}
    s_lshl_b32 {s(sT0)}, {s(S_W)}, 11
    s_add_u32 {s(sXPb)}, {s(sXPb)}, {s(sT0)}
    s_add_u32 {s(sXPb)}, {s(sXPb)}, {OFF_XP}
    v_lshlrev_b32 {v(vPi)}, 2, {v(g_)}
    v_lshl_add_u32 {v(vPi)}, {v(fl_)}, 4, {v(vPi)}
    s_lshr_b32 {s(sXh)}, {s(S_X)}, 2
    s_lshl_b32 {s(sXh)}, {s(sXh)}, 10
    s_and_b32 {s(sT0)}, {s(S_X)}, 3
    s_lshl_b32 {s(sT0)}, {s(sT0)}, 4
    s_mov_b64 {s(sXm,2)}, 0xffff
    s_lshl_b64 {s(sXm,2)}, {s(sXm,2)}, {s(sT0)}
    s_not_b64 {s(sXm,2)}, {s(sXm,2)}
    s_lshl_b32 {s(sT0)}, {s(S_X)}, 8
    v_add_u32 {v(vPf)}, {s(sT0)}, {v(vXw)}
    s_lshl_b32 {s(sT1)}, {s(sC)}, 4
    s_add_u32 {s(sT0)}, {s(sT0)}, {s(sT1)}
    s_lshl_b32 {s(sT1)}, {s(S_W)}, 2
    s_add_u32 {s(sT0)}, {s(sT0)}, {s(sT1)}
    s_add_u32 {s(sT0)}, {s(sT0)}, {CPROG}
    v_mov_b32 {v(vCp)}, {s(sT0)}
    v_mov_b32 {v(vProg)}, 0
    s_mov_b32 {s(sSeg)}, 0
    v_and_b32 {v(t1)}, 3, {v(L)}
    v_mov_b32 {v(t2)}, 0
    v_mov_b32 {v(t3)}, 0x3f80
    v_cmp_eq_u32 vcc, 0, {v(t1)}
    v_cndmask_b32 {v(t2)}, {v(t2)}, {v(t3)}, vcc
    v_mov_b32 {v(t3)}, 0x3f800000
    v_cmp_eq_u32 vcc, 1, {v(t1)}
    v_cndmask_b32 {v(t2)}, {v(t2)}, {v(t3)}, vcc
    v_lshrrev_b32 {v(t0)}, 2, {v(fl_)}
    v_mov_b32 {v(t3)}, 0
    v_mov_b32 {v(HALF)}, 0x3f803f80
    v_mov_b32 {v(HALF+1)}, 0
    """)
    for d in range(4):
        A(f"v_cmp_eq_u32 vcc, {d}, {v(t0)}\nv_cndmask_b32 {v(SELA+d)}, {v(t3)}, {v(t2)}, vcc")
    for i in range(len(order)): w_read(i)
    A("s_barrier")
    ev(A, 1, t0)
    if "wonly" in opt: A("s_endpgm")
    g0_wait(A, t0, sCnt, abort='chain_abort')

    def ensure_prog(need, lo=PMASK_LO, hi=PMASK_HI):
        lp, ok = A.label("cpw"), A.label("cpo")
        A(f"""
        s_mov_b32 {s(sCnt)}, 0
        {lp}:
        v_cmp_gt_u32 vcc, {need}, {v(vProg)}
        s_and_b32 vcc_lo, vcc_lo, {lo:#x}
        s_and_b32 vcc_hi, vcc_hi, {hi:#x}
        s_cmp_eq_u64 vcc, 0
        s_cbranch_scc1 {ok}
        s_sleep 1
        buffer_load_dword {v(vProg)}, {v(vPf)}, {WSR}, 0 offen sc1
        s_add_u32 {s(sCnt)}, {s(sCnt)}, 1
        s_cmp_gt_u32 {s(sCnt)}, {SPIN_LIMIT}
        s_cbranch_scc1 chain_abort
        s_waitcnt vmcnt(0)
        s_branch {lp}
        {ok}:
        """)

    def prefetch(cls, isW, addr=True):
        H = []
        if cls == 0:
            if addr: A(f"""
            s_and_b32 {s(sKo)}, {s(sSeg)}, 7
            s_mul_i32 {s(sKo)}, {s(sKo)}, {QS}
            s_add_u32 {s(sKo)}, {s(sKo)}, {s(sKx)}
            """)
            H += [f"buffer_load_dwordx4 {v(KX+4*i,4)}, {v(vL16)}, {WSR}, {s(sKo)} offen offset:{i*1024} sc1" for i in range(2)]
        if isW:
            if addr: A(f"""
            s_and_b32 {s(sUo)}, {s(sSeg)}, 3
            s_mul_i32 {s(sUo)}, {s(sUo)}, {S4}
            s_add_u32 {s(sUo)}, {s(sUo)}, {s(sUb)}
            """)
            H += [f"buffer_load_dwordx4 {v(U+4*i,4)}, {v(vL16)}, {WSR}, {s(sUo)} offen offset:{i*1024} sc1" for i in range(4)]
        H += [f"buffer_load_dword {v(vProg)}, {v(vPf)}, {WSR}, 0 offen sc1"]
        return [] if addr and HB and isW else H

    def step_setup(isW):
        A(f"""
        s_and_b32 {s(sT0)}, {s(sSeg)}, 3
        s_mul_i32 {s(sMemCur)}, {s(sT0)}, {MEM_SLOT}
        s_add_u32 {s(sMemCur)}, {s(sMemCur)}, {s(sMemB)}
        s_lshl_b32 {s(sT1)}, {s(sT0)}, 15
        s_add_u32 {s(sT2)}, {s(sSVb)}, {s(sT1)}
        s_add_u32 {s(sSVs)}, {s(sT2)}, {s(sSoff)}
        s_add_u32 {s(sSVv)}, {s(sT2)}, {s(sVoff)}
        s_mul_i32 {s(sT2)}, {s(sT0)}, {S4}
        s_add_u32 {s(sKm)}, {s(sKmb)}, {s(sT2)}
        """)
        if isW:
            A(f"""
            s_add_u32 {s(sWm)}, {s(sWmb)}, {s(sT2)}
            s_add_u32 {s(sSVg)}, {s(sSVgb)}, {s(sT1)}
            s_add_u32 {s(sSVgv)}, {s(sSVg)}, 4096
            s_mul_i32 {s(sXPr)}, {s(sT0)}, {XP_SLOT*NP}
            s_add_u32 {s(sXPr)}, {s(sXPr)}, {s(sXPb)}
            s_lshl_b32 {s(sT1)}, {s(S_X)}, 8
            s_add_u32 {s(sXPw)}, {s(sXPr)}, {s(sT1)}
            s_xor_b32 {s(sXPz)}, {s(sXPw)}, 8192
            """)
            for k in range(1, NP): A(f"s_add_u32 {s(sXPw_[k])}, {s(sXPw)}, {k*16384}\ns_add_u32 {s(sXPz_[k])}, {s(sXPz)}, {k*16384}")
            for i in range(16): A(f"v_mov_b32 {v(WMD+i)}, 0")
        for acc in (accq, acck, accv):
            for i in range(4): A(f"v_mov_b32 {v(acc+i)}, 0")

    def km_st(cls):
        if cls != 2: return []
        return [f"buffer_store_dwordx4 {v(KX,4)}, {v(vKm)}, {WSR}, {s(sKm)} offen",
                f"buffer_store_dwordx4 {v(KX+4,4)}, {v(vKm)}, {WSR}, {s(sKm)} offen offset:512"]
    wm_st = f"buffer_store_dwordx4 {v(ZD,4)}, {v(vL16)}, {WSR}, {s(sWm)} offen"
    def flag(reg):
        A(f"buffer_store_dword {v(reg)}, {v(vCp)}, {WSR}, 0 offen")
    def spin():
        A(f"s_add_u32 {s(sCnt)}, {s(sCnt)}, 1\ns_cmp_gt_u32 {s(sCnt)}, {SPIN_LIMIT}\ns_cbranch_scc1 chain_abort")
    def nap(gd):
        while gd > 0:
            A(f"s_nop {min(gd, 16) - 1}"); gd -= 16
    def masked_reload(lb, pieces, tmp):
        for i, (R, n, ld) in enumerate(pieces):
            A(f"v_max3_u32 {v(tmp)}, {v(R)}, {v(R+1)}, {v(R+2)}")
            if n == 4: A(f"v_max_u32 {v(tmp)}, {v(tmp)}, {v(R+3)}")
            A(f"v_cmp_eq_u32 vcc, -1, {v(tmp)}\ns_cbranch_vccz {lb}_s{i}\ns_mov_b64 exec, vcc\n{ld}\ns_mov_b64 exec, -1\n{lb}_s{i}:")

    def poll_fill(): pass
    def mem_poll(cold):
        lb = A.label("mq")
        SETS = [(FD, FD + 4, CX), (WMP, WMP + 4, CY)]
        def ld(P):
            A(f"""
            buffer_load_dwordx4 {v(P[0],4)}, {v(vMemG)}, {WSR}, {s(sMemCur)} offen sc1
            buffer_load_dwordx4 {v(P[1],4)}, {v(vMemG)}, {WSR}, {s(sMemCur)} offen offset:1024 sc1
            buffer_load_dwordx2 {v(P[2],2)}, {v(vMemG8)}, {WSR}, {s(sMemCur)} offen sc1
            """)
        def chk(P):
            A(f"""
            s_waitcnt vmcnt(3)
            v_max3_u32 {v(t0)}, {v(P[0])}, {v(P[1])}, {v(P[2])}
            v_cmp_eq_u32 vcc, -1, {v(t0)}
            ds_write_b128 {v(vMemG)}, {v(P[0],4)}
            ds_write_b128 {v(vMemG)}, {v(P[1],4)} offset:1024
            ds_write_b64 {v(vMemG8)}, {v(P[2],2)}
            """)
        A(f"s_mov_b32 {s(sCnt)}, 0")
        ld(SETS[0]); nap(int(optv.get("n2s", 24)))
        A(f"{lb}:")
        ld(SETS[1])
        if prof: spin()
        chk(SETS[0])
        A(f"s_cbranch_vccz {lb}_ok\ns_waitcnt lgkmcnt(0)")
        ld(SETS[0]); spin()
        chk(SETS[1])
        A(f"s_cbranch_vccz {lb}_ok\ns_waitcnt lgkmcnt(0)\ns_branch {lb}")
        A(f"{lb}_ok:\ns_waitcnt lgkmcnt(0)\ns_barrier")

    def prof_dump():
        if prof:
            A(f"""
            s_memrealtime {s(stamps[9],2)}
            s_lshl_b32 {s(sT0)}, {s(S_W)}, 12
            s_lshl_b32 {s(sT1)}, {s(sSeg)}, 6
            s_add_u32 {s(sT0)}, {s(sT0)}, {s(sT1)}
            v_add_u32 {v(t1)}, {s(sT0)}, {v(vXw)}
            s_waitcnt lgkmcnt(0)
            """)
            for i in range(NST):
                A(f"v_writelane_b32 {v(t0)}, {s(stamps[i])}, {i}")
            for i, c_ in enumerate(cnts[:2] + [sCnt]):
                A(f"v_writelane_b32 {v(t0)}, {s(c_)}, {10+i}")
            A(f"s_mov_b64 exec, 0x1fff\nds_write_b32 {v(t1)}, {v(t0)} offset:32768\ns_mov_b64 exec, -1")
    def prof_out():
        if prof:
            A(f"""
            s_mul_i32 {s(sT0)}, {s(S_X)}, 12
            s_add_u32 {s(sT0)}, {s(sT0)}, {s(sC)}
            s_lshl_b32 {s(sT0)}, {s(sT0)}, 2
            s_add_u32 {s(sT0)}, {s(sT0)}, {s(S_W)}
            s_lshl_b32 {s(sT0)}, {s(sT0)}, 12
            s_add_u32 {s(sT0)}, {s(sT0)}, {OFF_DBG}
            s_lshl_b32 {s(sT1)}, {s(S_W)}, 12
            v_add_u32 {v(t1)}, {s(sT1)}, {v(vL16)}
            s_waitcnt vmcnt(0) lgkmcnt(0)
            """)
            for i in range(4): A(f"ds_read_b128 {v(MF+4*i,4)}, {v(t1)} offset:{32768+1024*i}")
            A("s_waitcnt lgkmcnt(0)")
            for i in range(4): A(f"buffer_store_dwordx4 {v(MF+4*i,4)}, {v(vL16)}, {WSR}, {s(sT0)} offen offset:{1024*i}")

    def t_reset(cls, rd=False):
        if cls == 0: return
        if cls == 2 and rd:
            for i in range(4): A(f"ds_read_b64_tr_b16 {v(KX+2*i,2)}, {v(vL8)} offset:{LDS_T2+512*i}")
        for i in range(4): A(f"v_mov_b32 {v(MF+12+i)}, -1")
        for i in range(2): A(f"ds_write_b128 {v(vL16)}, {v(MF+12,4)} offset:{(LDS_T if cls == 1 else LDS_T2) + 1024*i}")
        if cls == 2 and rd: A(f"s_waitcnt lgkmcnt({0 if prof else 2})")

    def emit_loop(cls, isW):
        tag = f"c{cls}{'w' if isW else 'n'}"
        lp = f"chain_loop_{tag}"
        cold = []
        A(f"chain_pro_{tag}:")
        ev(A, 2, t0)
        if isW:
            ensure_prog(1, hi=PMASK_HI | 1 << 28)
            A(f"""
            v_readlane_b32 {s(sT0)}, {v(vProg)}, 60
            s_sub_u32 {s(sT0)}, {s(sT0)}, 1
            s_lshl_b32 {s(sT0)}, {s(sT0)}, 13
            s_add_u32 {s(sXPb)}, {s(sXPb)}, {s(sT0)}
            """)
        else:
            ensure_prog(1, hi=1 << 28)
            A(f"""
            s_sub_u32 {s(sT0)}, {s(sC)}, 10
            s_lshl_b32 {s(sT0)}, {s(sT0)}, 2
            s_add_u32 {s(sT0)}, {s(sT0)}, {s(S_W)}
            s_cmp_lt_u32 {s(sT0)}, 4
            s_cselect_b32 {s(sXPz)}, {20*NP//8*8}, 0
            s_lshl_b32 {s(sXPz)}, {s(sXPz)}, 13
            s_lshl_b32 {s(sXPb)}, {s(sT0)}, 13
            s_mul_i32 {s(sT1)}, {s(sT0)}, 1280
            v_add_u32 {v(vRedR)}, {s(sT1)}, {v(vL16)}
            v_add_u32 {v(vMemW)}, {s(sT1)}, {v(vXw)}
            s_lshl_b32 {s(sSVgb)}, {s(sT0)}, 12
            s_lshl_b32 {s(sT0)}, {s(S_X)}, 17
            s_add_u32 {s(sSVgb)}, {s(sSVgb)}, {s(sT0)}
            s_add_u32 {s(sSVgb)}, {s(sSVgb)}, {OFF_SV2}
            s_lshl_b32 {s(sT0)}, {s(S_X)}, 8
            s_add_u32 {s(sXPb)}, {s(sXPb)}, {s(sT0)}
            s_add_u32 {s(sXPb)}, {s(sXPb)}, {OFF_XP}
            v_lshrrev_b32 {v(t0)}, 4, {v(L)}
            v_lshlrev_b32 {v(t0)}, 11, {v(t0)}
            v_and_b32 {v(t1)}, 15, {v(L)}
            v_lshl_add_u32 {v(vRedW)}, {v(t1)}, 4, {v(t0)}
            """)
            for i in range(4): A(f"v_mov_b32 {v(SENT+i)}, -1")
        ev(A, 3, t0)
        for x in prefetch(cls, isW): A(x)
        step_setup(isW)
        t_reset(cls)
        poll_fill()
        A(f"{lp}:")
        stamp(0)
        mem_poll(cold)
        stamp(1)
        if prof: A(f"s_mov_b32 {s(cnts[0])}, {s(sCnt)}\ns_waitcnt lgkmcnt(0)")
        for b in range(10):
            A(f"ds_read_b128 {v(MF+4*b,4)}, {v(vL16)} offset:{LDS_MEM+b*1024}")
        seq = [(accq, WQ, b) for b in range(10)] + [(acck, WK, b) for b in range(10)] + [(accv, WV, b) for b in range(10)]
        def sm(n=1):
            for _ in range(n):
                acc, W, b = seq.pop(0)
                if acc == accq: A(f"s_waitcnt lgkmcnt({9-b})")
                A(f"v_smfmac_f32_16x16x64_bf16 {v(acc,4)}, {v(MF+4*b,4)}, {r(W+8*b,8)}, {v(vIdx)}")
        tq, tr_ = int(optv.get("tq", 4)), int(optv.get("tr", 5))
        sx = A.label("sx")
        def trq(): return [f"ds_read_b64_tr_b16 {v(QF+2*i,2)}, {v(vL8)} offset:{LDS_T+512*i}" for i in range(4)]
        def trk(): return [f"ds_read_b64_tr_b16 {v(KX+2*i,2)}, {v(vL8)} offset:{LDS_T2+512*i}" for i in range(4)]
        smf = [f"v_mfma_f32_16x16x32_bf16 {v(accS,4)}, {v(KX,4)}, {v(QF,4)}, 0",
               f"v_mfma_f32_16x16x32_bf16 {v(accS,4)}, {v(KX+4,4)}, {v(QF+4,4)}, {v(accS,4)}"]
        chk_s = f"v_cmp_u_f32 vcc, {v(accS)}, {v(accS+1)}"
        side = {i: [] for i in range(30)}
        for base, acc, R, va_, o1 in ((9, accq, QK, vTw, 4), (19, acck, QK + 1, vTw2, 1)):
            side[base + 3] += [f"v_add_f32 {v(acc)}, {v(acc)}, {v(acc+2)}", f"v_add_f32 {v(acc+1)}, {v(acc+1)}, {v(acc+3)}"]
            side[base + 4] += [f"v_cvt_pk_bf16_f32 {v(R)}, {v(acc)}, {v(acc+1)}", f"ds_write2_b32 {v(va_)}, {v(R)}, {v(R)} offset0:0 offset1:{o1}"]
        if HB and isW:
            hp = [int(x) for x in optv.get("hbp" if cls == 0 else "hbq", "0,3,7,11,15,19,22" if cls == 0 else "1,5,9,14,20").split(",")]
            assert max(hp) < 14 + tq + tr_
            for i, x in enumerate(prefetch(cls, isW, False)): side[hp[i]] += [x]
        if cls < 2:
            side[13 + tq] += trq()[:2]; side[14 + tq] += trq()[2:]
        if cls == 0:
            p0 = 14 + tq + tr_
            nw = 1 if p0 >= 23 else 0
            side[p0] += [f"s_waitcnt {'vmcnt(5) ' if HB and isW else ''}lgkmcnt({0 if '2' in PMODE and prof else nw})"] + smf
            side[p0 + 2] += ["s_nop 1", chk_s]
            side[p0 + 3] += [f"s_mov_b64 exec, {s(sMS,2)}", f"s_cbranch_vccnz {sx}_r", f"{sx}:",
                             f"buffer_store_dwordx4 {v(accS,4)}, {v(vL16)}, {WSR}, {s(sSVs)} offen", "s_mov_b64 exec, -1"]
            for q in (p0, p0 + 1):
                if not side[q] or q == p0: side[q] += ["s_nop 1"]
        if cls == 1:
            side[min(28, 23 + tq)] += trk()[:2]; side[min(29, 24 + tq)] += trk()[2:]
        for base in (9, 19):
            for q, n in ((base, 1), (base + 1, 1), (base + 2, 0)):
                if not side[q]: side[q] += [f"s_nop {n}"]
        for i in range(30):
            sm(1)
            for x in side[i]: A(x)
            if i == 9: stamp("b1")
            if i == 19: stamp(2)
        def s_cold():
            A(f"{sx}_r:\ns_mov_b64 exec, -1")
            for x in trq() + (trk() if cls == 1 else []): A(x)
            spin()
            A("s_waitcnt lgkmcnt(0)")
            for x in smf + [chk_s]: A(x)
            if cls == 0: A(f"s_mov_b64 exec, {s(sMS,2)}")
            A(f"s_cbranch_vccnz {sx}_r\ns_branch {sx}")
        if cls < 2: cold.append(s_cold)
        vst = f"""
        v_add_f32 {v(accv)}, {v(accv)}, {v(accv+2)}
        v_add_f32 {v(accv+1)}, {v(accv+1)}, {v(accv+3)}
        v_cvt_pk_bf16_f32 {v(t0)}, {v(accv)}, {v(accv+1)}
        v_mov_b32_dpp {v(t1)}, {v(t0)} row_ror:4 row_mask:0xf bank_mask:0xa
        v_mov_b32_dpp {v(t1)}, {v(t0)} row_ror:12 row_mask:0xf bank_mask:0x5
        v_perm_b32 {v(t0)}, {v(t1)}, {v(t0)}, {v(vSel)}
        buffer_store_dword {v(t0)}, {v(vVst)}, {WSR}, {s(sSVv)} offen
        """
        if cls == 1:
            V_ = vst.strip().split("\n")
            A(f"s_waitcnt lgkmcnt({0 if prof else 2})\n{smf[0]}\ns_waitcnt lgkmcnt(0)\n{smf[1]}")
            for x in V_[:4]: A(x)
            A(chk_s)
            for x in V_[4:]: A(x)
            A(f"""
            s_cbranch_vccnz {sx}_r
            {sx}:
            v_cndmask_b32 {v(accS)}, {v(accS)}, {v(accS+1)}, {s(sMhi,2)}
            buffer_store_dword {v(accS)}, {v(vL16)}, {WSR}, {s(sSVs)} offen
            """)
        else: A(vst)
        stamp(3)
        if not isW:
            A(f"""
            s_sub_u32 {s(sT0)}, {s(sSeg)}, 1
            s_and_b32 {s(sT0)}, {s(sT0)}, 3
            s_lshl_b32 {s(sT1)}, {s(sT0)}, 15
            s_add_u32 {s(sT1)}, {s(sT1)}, {s(sSVgb)}
            s_mul_i32 {s(sT0)}, {s(sT0)}, {MEM_SLOT}
            s_add_u32 {s(sT0)}, {s(sT0)}, {s(sMemB)}
            s_add_u32 {s(sSeg)}, {s(sSeg)}, 1
            v_mov_b32 {v(t3)}, {s(sSeg)}
            s_waitcnt vmcnt(0) lgkmcnt(0)
            s_barrier
            """)
            t_reset(cls, True)
            for x in km_st(cls): A(x)
            A("s_waitcnt vmcnt(0)")
            flag(t3)
            A(f"""
            s_cmp_eq_u32 {s(sSeg)}, {NSEG}
            s_cbranch_scc1 chain_end
            s_barrier
            """)
            for i in range(4): A(f"buffer_store_dwordx4 {v(SENT,4)}, {v(vL16)}, {WSR}, {s(sT1)} offen offset:{i*1024}")
            A(f"""
            buffer_store_dwordx4 {v(SENT,4)}, {v(vRedR)}, {WSR}, {s(sT0)} offen
            buffer_store_dword {v(SENT)}, {v(vMemW)}, {WSR}, {s(sT0)} offen offset:1024
            s_add_u32 {s(sT0)}, {s(sSeg)}, 1
            s_and_b32 {s(sT0)}, {s(sT0)}, 3
            s_mul_i32 {s(sT0)}, {s(sT0)}, {XP_SLOT*NP}
            s_add_u32 {s(sT0)}, {s(sT0)}, {s(sXPb)}
            s_add_u32 {s(sT2)}, {s(sT0)}, {s(sXPz)}
            """)
            for i in range(20 * NP // 8):
                A(f"buffer_store_dwordx4 {v(SENT,4)}, {v(vRedW)}, {WSR}, {s(sT0)} offen sc1\ns_add_u32 {s(sT0)}, {s(sT0)}, {8*8192}")
            if NP % 2: A(f"buffer_store_dwordx4 {v(SENT,4)}, {v(vRedW)}, {WSR}, {s(sT2)} offen sc1")
            A(f"s_add_u32 {s(sT2)}, {s(sSeg)}, 1")
            if cls == 0:
                ensure_prog(s(sT2), hi=0)
                for x in prefetch(cls, isW): A(x)
            step_setup(isW)
            poll_fill()
            A("s_waitcnt vmcnt(0)")
            stamp(4)
            prof_dump()
            A(f"s_sleep {optv.get('nsl', 8)}\ns_branch {lp}")
            for f in cold: f()
            return
        LX = [(G_SX + 4*p, 4, f"buffer_load_dwordx4 {v(G_SX+4*p,4)}, {v(vL16)}, {WSR}, {s(sSVg)} offen offset:{p*1024} sc1") for p in range(3)]
        LM = (G_SM, 3, f"buffer_load_dwordx3 {v(G_SM,3)}, {v(vL16)}, {WSR}, {s(sSVg)} offen offset:3072 sc1")
        LV = [(G_V + 4*b, 4, f"buffer_load_dwordx4 {v(G_V+4*b,4)}, {v(vL16)}, {WSR}, {s(sSVgv)} offen offset:{b*1024} sc1") for b in range(3)]
        gp = int(optv.get("gp", 0))
        nap(int(optv.get(f"gx{cls}", optv.get("gx", 0))))
        for x in LX: A(x[2]); nap(int(optv.get("gpx", 0)))
        nap(int(optv.get(f"gv{cls}", optv.get("gv", 0))))
        for x in LV: A(x[2]); nap(gp)
        A(LM[2])
        gx, gm, gz = A.label("gx"), A.label("gm"), A.label("gz")
        gv = [A.label("gv") for _ in range(3)]
        S0, S4_, S5_ = accq, acck, acck + 1
        def blocking(lb, pieces, also=()):
            def f():
                A(f"{lb}_r:")
                masked_reload(lb, pieces, t2)
                for x in also: A(x[2])
                spin()
                A(f"s_waitcnt vmcnt(0)\ns_branch {lb}")
            cold.append(f)
        blocking(gx, LX, LV + [LM]); blocking(gm, [LM])
        sum_x = f"""
        v_pk_add_f32 {v(S0,2)}, {v(G_SX,2)}, {v(G_SX+4,2)}
        v_pk_add_f32 {v(S0+2,2)}, {v(G_SX+2,2)}, {v(G_SX+6,2)}
        v_pk_add_f32 {v(S0,2)}, {v(S0,2)}, {v(G_SX+8,2)}
        v_pk_add_f32 {v(S0+2,2)}, {v(S0+2,2)}, {v(G_SX+10,2)}
        """
        A(f"""
        s_mov_b32 {s(sCnt)}, 0
        s_waitcnt vmcnt(4)
        """)
        stamp(4)
        A(f"{gx}:")
        A(sum_x)
        A(f"""
        v_cmp_u_f32 vcc, {v(S0)}, {v(S0)}
        v_pk_mul_f32 {v(S0,2)}, {v(S0,2)}, {s(sCL,2)}
        v_pk_mul_f32 {v(S0+2,2)}, {v(S0+2,2)}, {s(sCL,2)}
        s_cbranch_vccnz {gx}_r
        """)
        ID, RO = "quad_perm:[0,1,2,3] row_mask:0xf", "row_ror:8 row_mask:0xf"
        ex = [f"v_exp_f32 {v(S0+i)}, {v(S0+i)}" for i in range(4)]
        pk = [f"v_cvt_pk_bf16_f32 {v(CX)}, {v(S0)}, {v(S0+1)}\nv_cvt_pk_bf16_f32 {v(CX+1)}, {v(S0+2)}, {v(S0+3)}"]
        for D_, m0_, m1_, bm in ((PXL, ID, RO, 3), (PXH, RO, ID, 12)):
            pk += [f"v_mov_b32_dpp {v(D_)}, {v(CX)} {m0_} bank_mask:{bm:#x}\nv_mov_b32_dpp {v(D_+1)}, {v(CX+1)} {m0_} bank_mask:{bm:#x}",
                   f"v_mov_b32_dpp {v(D_+2)}, {v(CX)} {m1_} bank_mask:{bm:#x}\nv_mov_b32_dpp {v(D_+3)}, {v(CX+1)} {m1_} bank_mask:{bm:#x}"]
        def wm(b): return [f"v_smfmac_f32_16x16x64_bf16 {v(WMD+4*ct,4)}, {v(G_V+4*b,4)}, {r(WOf(ct,2*b),8)}, {v(vIdx)}" for ct in range(4)]
        pre = int(optv.get("pre", 1))
        fill = ex + pk
        def vchk(b): return f"s_waitcnt vmcnt({3-b})\nv_cmp_eq_u32 vcc, -1, {v(G_V+4*b)}" + (f"\ns_or_b64 vcc, vcc, {s(sPend,2)}" if b == 2 else "")
        for x in fill[:pre - 1]: A(x)
        A(vchk(0)); A(fill[pre - 1]); A(f"s_cbranch_vccnz {gv[0]}_r")
        fill = fill[pre:]
        fl = []
        for b in range(3):
            G = [fill.pop(0) if fill else None for _ in range(3 if b < 2 else 4)]
            fl.append(G)
            W_ = wm(b)
            if b == 2: A(f"{gv[b]}:"); stamp(5)
            for i in range(4):
                A(W_[i])
                if b < 2 and i == 2: A(f"{gv[b]}:"); A(vchk(b + 1))
                else:
                    x = G[i if i < 2 or b == 2 else 2]
                    if x: A(x)
            if b < 2: A(f"{gv[b]}_e:\ns_cbranch_vccnz {gv[b+1]}_r")
        assert not fill
        def v_cold():
            for b in range(2):
                A(f"{gv[b]}_r:\n{LV[b][2]}\ns_bitset1_b32 {s(sPend)}, {b}")
                for x in fl[b]:
                    if x: A(x)
                A(vchk(b + 1))
                A(f"s_branch {gv[b]}_e")
            A(f"""
            {gv[2]}_r:
            v_cmp_eq_u32 vcc, -1, {v(G_V+8)}
            s_cbranch_vccz {gv[2]}_l
            {LV[2][2]}
            {gv[2]}_l:
            {LM[2]}
            s_waitcnt vmcnt(1)
            """)
            for b in range(2):
                A(f"""
                s_bitcmp1_b32 {s(sPend)}, {b}
                s_cbranch_scc0 {gv[2]}_n{b}
                v_cmp_eq_u32 vcc, -1, {v(G_V+4*b)}
                s_cbranch_vccz {gv[2]}_y{b}
                {LV[b][2]}
                s_branch {gv[2]}_n{b}
                {gv[2]}_y{b}:
                s_bitset0_b32 {s(sPend)}, {b}
                """)
                for x in wm(b): A(x)
                A(f"{gv[2]}_n{b}:")
            A(f"""
            v_cmp_eq_u32 vcc, -1, {v(G_V+8)}
            s_cbranch_vccz {gv[2]}_y2
            {LV[2][2]}
            {gv[2]}_y2:
            s_or_b64 vcc, vcc, {s(sPend,2)}
            s_cbranch_vccz {gv[2]}
            """)
            spin()
            A(f"s_branch {gv[2]}_l")
        cold.append(v_cold)
        def pxu(ct):
            D_ = FD + 4 * (ct >> 1)
            return f"v_mfma_f32_16x16x32_bf16 {v(D_,4)}, {v(U+4*ct,4)}, {v(PXH if ct & 1 else PXL,4)}, {v(D_,4) if ct & 1 else 0}"
        def pmw(ct): return f"v_mfma_f32_16x16x16_bf16 {v(FD+4*(ct>>1),4)}, {v(WMP+2*ct,2)}, {v(PMH if ct & 1 else PML,2)}, {v(FD+4*(ct>>1),4)}"
        zx = f"v_mfma_f32_16x16x32_bf16 {v(ZD,4)}, {v(ONES,4)}, {v(PXL,4)}, 0"
        zm = f"v_mfma_f32_16x16x16_bf16 {v(ZD,4)}, {v(HALF,2)}, {v(PML,2)}, {v(ZD,4)}"
        def wcv(ct): return f"v_cvt_pk_bf16_f32 {v(WMP+2*ct)}, {v(WMD+4*ct)}, {v(WMD+4*ct+1)}\nv_cvt_pk_bf16_f32 {v(WMP+2*ct+1)}, {v(WMD+4*ct+2)}, {v(WMD+4*ct+3)}"
        pm1 = f"v_mov_b32_dpp {v(S5_)}, {v(S4_)} {RO} bank_mask:0xf\nv_cvt_pk_bf16_f32 {v(CX)}, {v(S4_)}, {v(S5_)}"
        pm2 = f"v_mov_b32_dpp {v(PML)}, {v(CX)} {ID} bank_mask:0x3\nv_mov_b32_dpp {v(PML+1)}, {v(CX)} {ID} bank_mask:0x3"
        pm3 = f"v_mov_b32_dpp {v(PMH)}, {v(CX)} {RO} bank_mask:0xc\nv_mov_b32_dpp {v(PMH+1)}, {v(CX)} {RO} bank_mask:0xc"
        A(f"""
        s_waitcnt vmcnt(0)
        {gm}:
        v_add_f32 {v(S4_)}, {v(G_SM)}, {v(G_SM+1)}
        {zx}
        v_add_f32 {v(S4_)}, {v(S4_)}, {v(G_SM+2)}
        v_cmp_u_f32 vcc, {v(S4_)}, {v(S4_)}
        {pxu(0)}
        v_mul_f32 {v(S4_)}, {s(sCL)}, {v(S4_)}
        s_cbranch_vccnz {gm}_r
        """); stamp("e1")
        if prof: A(f"s_mov_b32 {s(cnts[1])}, {s(sCnt)}")
        A(f"""
        {pxu(2)}
        v_exp_f32 {v(S4_)}, {v(S4_)}
        {pxu(1)}
        {wcv(0)}
        {pxu(3)}
        {pm1}
        {wcv(2)}
        {pm2}
        {pm3}
        {zm}
        {wcv(1)}
        {pmw(0)}
        {wcv(3)}
        {pmw(2)}
        s_add_u32 {s(sSeg)}, {s(sSeg)}, 1
        s_add_u32 {s(sXPl)}, {s(sXPr)}, {s(sXh)}
        {pmw(1)}
        v_subrev_u32 {v(t0)}, {ZLO:#x}, {v(ZD)}
        v_rcp_f32 {v(QK)}, {v(ZD)}
        {pmw(3)}
        v_cmp_lt_u32 vcc, {ZHI - ZLO:#x}, {v(t0)}
        ds_write_b32 {v(vRzW)}, {v(QK)}
        s_and_b64 vcc, vcc, {s(sMlo,2)}
        s_cbranch_vccnz {gz}_r
        {gz}:
        s_cmp_eq_u32 {s(sSeg)}, {NSEG}
        s_cbranch_scc1 chain_last_{tag}
        """); stamp("e2")
        for cp in range(2): A(f"ds_write_b128 {v(vRedW)}, {v(FD+4*cp,4)} offset:{cp*1024}")
        def z_cold():
            A(f"{gz}_r:")
            A(sum_x)
            A(f"""
            v_add_f32 {v(S4_)}, {v(G_SM)}, {v(G_SM+1)}
            v_add_f32 {v(S4_)}, {v(S4_)}, {v(G_SM+2)}
            v_max3_f32 {v(t0)}, {v(S0)}, {v(S0+1)}, {v(S0+2)}
            v_max3_f32 {v(t0)}, {v(t0)}, {v(S0+3)}, {v(S4_)}
            v_max_f32_dpp {v(t0)}, {v(t0)}, {v(t0)} row_ror:8 row_mask:0xf bank_mask:0xf
            v_mov_b32 {v(t1)}, {v(t0)}
            v_permlane16_swap_b32 {v(t0)}, {v(t1)}
            v_max_f32 {v(t0)}, {v(t0)}, {v(t1)}
            v_mov_b32 {v(t1)}, {v(t0)}
            v_permlane32_swap_b32 {v(t0)}, {v(t1)}
            v_max_f32 {v(t0)}, {v(t0)}, {v(t1)}
            """)
            for x in (S0, S0 + 1, S0 + 2, S0 + 3, S4_):
                A(f"v_sub_f32 {v(x)}, {v(x)}, {v(t0)}\nv_mul_f32 {v(x)}, {s(sCL)}, {v(x)}\nv_exp_f32 {v(x)}, {v(x)}")
            for x in pk + [pm1, pm2, pm3, zx]: A(x)
            for ct in (0, 2, 1, 3): A(pxu(ct))
            A(zm)
            for ct in (0, 2, 1, 3): A(pmw(ct))
            A(f"v_rcp_f32 {v(QK)}, {v(ZD)}\nds_write_b32 {v(vRzW)}, {v(QK)}\ns_branch {gz}")
        cold.append(z_cold)
        RR, RZ = QF, WMP
        stamp("e3"); A("s_waitcnt lgkmcnt(0)"); stamp("e4"); A("s_barrier"); stamp("e5")
        if prof: A("s_waitcnt lgkmcnt(0)")
        A(f"""
        ds_read_b128 {v(RZ,4)}, {v(vRzR)}
        """)
        for w in range(4):
            A(f"ds_read_b64 {v(RR+2*w,2)}, {v(vRedR)} offset:{w*2048}")
        XD = MF + 32
        A(f"""
        s_waitcnt lgkmcnt(3)
        v_pk_mul_f32 {v(QK,2)}, {v(RR,2)}, {v(RZ,2)} op_sel_hi:[1,0]
        s_waitcnt lgkmcnt(2)
        v_pk_fma_f32 {v(QK,2)}, {v(RR+2,2)}, {v(RZ,2)}, {v(QK,2)} op_sel:[0,1,0]
        s_waitcnt lgkmcnt(1)
        v_pk_fma_f32 {v(QK,2)}, {v(RR+4,2)}, {v(RZ+2,2)}, {v(QK,2)} op_sel_hi:[1,0,1]
        s_waitcnt lgkmcnt(0)
        v_pk_fma_f32 {v(QK,2)}, {v(RR+6,2)}, {v(RZ+2,2)}, {v(QK,2)} op_sel:[0,1,0]
        v_cvt_pk_bf16_f32 {v(QK)}, {v(QK)}, {v(QK+1)}
        """)
        po = [sXPz_[0], sXPw_[0]] + [x for k in range(1, NP) for x in (sXPz_[k], sXPw_[k])]
        if "porev" in opt: po = po[2:] + po[:2]
        for x in po: A(f"buffer_store_dword {v(QK)}, {v(vXw)}, {WSR}, {s(x)} offen sc1")
        for k in range(1, NP): A(f"s_add_u32 {s(sXPl_[k])}, {s(sXPl)}, {k*16384}")
        for k in range(NP): A(f"s_xor_b32 {s(sXPo_[k])}, {s(sXPl_[k])}, 1024")
        XR = [MF, MF + 16, MF + 24]; XC = MF + 36
        if BYP:
            A(f"ds_bpermute_b32 {v(XC+2)}, {v(vPi)}, {v(QK)}")
            for k in range(NP):
                for i in range(4): A(f"v_mov_b32 {v(XR[k]+i)}, 0")
        stamp(6)
        def wm_pack():
            for ct in range(4):
                A(f"v_pk_add_f32 {v(WMD+4*ct,2)}, {v(WMD+4*ct,2)}, {v(WMD+4*ct+2,2)}")
                A(f"v_cvt_pk_bf16_f32 {v(ZD+ct)}, {v(WMD+4*ct)}, {v(WMD+4*ct+1)}")
        wm_pack()
        A(wm_st)
        t_reset(cls, True)
        for x in km_st(cls): A(x)
        A(f"s_add_u32 {s(sT2)}, {s(sSeg)}, 1\nv_mov_b32 {v(t3)}, {s(sSeg)}")
        ensure_prog(s(sT2))
        m0_, m1_ = (f"s_mov_b64 exec, {s(sXm,2)}\n", "\ns_mov_b64 exec, -1") if BYP else ("", "")
        XLs = [[(XR[k], 4, f"{m0_}buffer_load_dwordx4 {v(XR[k],4)}, {v(vL16)}, {WSR}, {s(sXPl_[k])} offen sc1{m1_}"),
                (XR[k] + 4, 4, f"buffer_load_dwordx4 {v(XR[k]+4,4)}, {v(vL16)}, {WSR}, {s(sXPo_[k])} offen sc1")] for k in range(NP)]
        late = "xearly" not in opt
        if late: step_setup(isW)
        nap(int(optv.get(f"xsl{cls}", optv.get("xsl", 0))))
        for x in XLs[0]: A(x[2])
        stamp(7)
        if not late: step_setup(isW)
        for k in range(1, NP):
            nap(int(optv.get("xsb" if k == 1 else "xsc", 0)))
            for x in XLs[k]: A(x[2])
        if BYP: A(f"s_waitcnt lgkmcnt(0)\nv_lshlrev_b32 {v(XC)}, 16, {v(XC+2)}\nv_and_b32 {v(XC+1)}, 0xffff0000, {v(XC+2)}")
        nap(int(optv.get("xpo", 0)))
        H = prefetch(cls, isW)
        for x in H: A(x)
        xp = A.label("xp")
        def xred(k): return f"""
        v_mfma_f32_16x16x32_bf16 {v(XD,4)}, {v(SELA,4)}, {v(XR[k],4)}, {v(XC,4) if BYP else 0}
        v_mfma_f32_16x16x32_bf16 {v(XD,4)}, {v(SELA,4)}, {v(XR[k]+4,4)}, {v(XD,4)}
        v_cmp_u_f32 vcc, {v(XD)}, {v(XD+1)}
        v_cvt_pk_bf16_f32 {v(t1)}, {v(XD)}, {v(XD+1)}
        """
        if NP == 1: blocking(xp, [(R, n, ld.replace(m0_, "")) for R, n, ld in XLs[0]])
        else:
            def x_cold():
                A(f"{xp}_r:")
                for k in range(1, NP):
                    A(f"s_add_u32 {s(sCnt)}, {s(sCnt)}, 1\ns_waitcnt vmcnt({len(H) + 2 * (NP - 1 - k)})\n{xred(k)}\ns_cbranch_vccz {xp}_ok")
                A(f"{xp}_l:")
                masked_reload(xp, [(R, n, ld.replace(m0_, "")) for R, n, ld in XLs[NP - 1]], t2)
                spin()
                A(f"s_waitcnt vmcnt(0)\n{xred(NP - 1)}\ns_cbranch_vccz {xp}_ok\ns_branch {xp}_l")
            cold.append(x_cold)
        A(f"""
        s_mov_b32 {s(sCnt)}, 0
        s_waitcnt vmcnt({len(H) + 2 * (NP - 1)})
        {xp}:
        {xred(0)}
        s_cbranch_vccnz {xp}_r
        {xp}_ok:
        buffer_store_dword {v(t1)}, {v(vMemW)}, {WSR}, {s(sMemCur)} offen
        """)
        stamp(8)
        flag(t3)
        prof_dump()
        A(f"s_branch {lp}")
        for f in cold: f()
        A(f"chain_last_{tag}:")
        wm_pack()
        A(f"{wm_st}\ns_waitcnt lgkmcnt(0)\ns_barrier")
        t_reset(cls, True)
        for x in km_st(cls): A(x)
        A(f"v_mov_b32 {v(t3)}, {s(sSeg)}\ns_waitcnt vmcnt(0)")
        flag(t3)
        A("s_branch chain_end")

    A(f"""
    s_cmp_lt_u32 {s(sC)}, 10
    s_cbranch_scc0 chain_nw
    s_cmp_lt_u32 {s(S_W)}, 2
    s_cbranch_scc1 chain_pro_c0w
    s_cmp_eq_u32 {s(S_W)}, 2
    s_cbranch_scc1 chain_pro_c1w
    s_branch chain_pro_c2w
    chain_nw:
    s_cmp_lt_u32 {s(S_W)}, 2
    s_cbranch_scc1 chain_pro_c0n
    s_cmp_eq_u32 {s(S_W)}, 2
    s_cbranch_scc1 chain_pro_c1n
    s_branch chain_pro_c2n
    """)
    for isW in (True, False):
        for cls in range(3):
            emit_loop(cls, isW)
    A("chain_end:")
    prof_out()
    ev(A, 4, t0)
    A(f"""
    s_endpgm
    chain_abort:
    v_mov_b32 {v(t0)}, 128
    v_mov_b32 {v(t1)}, 1
    s_mov_b64 exec, 1
    buffer_atomic_add {v(t1)}, {v(t0)}, {s(S_DBG,4)}, 0 offen
    s_endpgm
    """)
```

```python
from common import *
from k_boot import *

LDS_MEM, LDS_T, LDS_T2, LDS_RED, LDS_RZ = 0, 10240, 12288, 14336, 22528
SCALE = 192 ** -0.5
PMASK_LO, PMASK_HI = 0x00fff000, 0x00fffff0
ZLO, ZHI = (127 - 60) << 23, (127 + 100) << 23

def gen_chain(A, prof=False, opt=()):
    optv = dict(o.split("=") for o in opt if "=" in o)
    NSEG = 64
    sa = Alloc(20, 100)
    SQ, SK, SV_, SO = sa(4, 4), sa(4, 4), sa(4, 4), sa(4, 4)
    sC, sLH, sP, sSeg, sCnt = [sa() for _ in range(5)]
    sT0, sT1, sT2, sM0 = [sa() for _ in range(4)]
    sMemB, sMemCur = sa(), sa()
    sSVb, sSVgb = sa(), sa()
    sSVs, sSVv, sSVg, sSVgv = [sa() for _ in range(4)]
    sSoff, sVoff = sa(), sa()
    sKm, sWm, sKx, sKmb, sWmb, sUb = [sa() for _ in range(6)]
    sXPw, sXPr, sXPz, sXPb, sXPl = [sa() for _ in range(5)]
    NP = XPN[0]
    sXPw_, sXPz_, sXPl_ = [[b] + [sa() for _ in range(NP - 1)] for b in (sXPw, sXPz, sXPl)]
    BYP = "byp" in opt; HB = True; X8 = "x8" in opt
    sKo, sUo = sa(), sa()
    sXPo_ = [sa() for _ in range(NP)]; sXm = sa(2, 2); sXh = sa()
    sMlo, sMhi, sMS, sPend, sCL = sa(2, 2), sa(2, 2), sa(2, 2), sa(2, 2), sa(2, 2)
    NST = 10
    stamps = [SK + 2 * i for i in range(6)] + [sa(2, 2) for _ in range(NST - 6)] if prof else []
    cnts = [SQ, SQ + 1] if prof else []

    va = Alloc(2, 176)
    def WOf(ct, kk):
        f = ct * 6 + kk
        return 176 + 4 * f if f < 20 else 256 + 240 + 4 * (f - 20)
    WQ, WK, WV = 256, 256 + 80, 256 + 160
    MF = va(40, 4)
    U = va(16, 4)
    KX = va(8, 4)
    accq, acck, accv, accS = va(4, 4), va(4, 4), va(4, 4), va(4, 4)
    SELA, ONES = va(4, 4), va(4, 4)
    SENT = SELA
    WMD = va(16, 4)
    WMP = va(8, 4)
    PXL, PXH, PML, PMH = va(4, 4), va(4, 4), va(2, 2), va(2, 2)
    QK, HALF = va(2, 2), va(2, 2)
    QF = va(8, 4)
    FD = va(8, 4)
    CX, CY = va(2, 2), va(2, 2)
    (vL16, vL8, vMemG, vMemG8, vTw, vTw2, vVst, vRedW, vRedR, vMemW, vPf, vCp, vIdx, vSel, vKm,
     vProg, vXw, vRzW, vRzR, t0, t1, t2, t3, vPi) = [va() for _ in range(24)]
    G_V, G_SM, G_SX = MF, MF + 12, MF + 16
    ZD = accS
    L = V_LANE
    WSR = s(S_WS, 4)

    PMODE = optv.get("pm", "0 1 2 3 4 5 6 7 8".replace(" ", ",")).split(",")
    def stamp(i):
        if prof and str(i) in PMODE: A(f"s_memtime {s(stamps[PMODE.index(str(i))],2)}")

    srd(A, SQ, "wq"); srd(A, SK, "wk"); srd(A, SV_, "wv"); srd(A, SO, "wo")
    A(f"""
    s_mov_b32 {s(sC)}, {s(S_T)}
    s_mul_i32 {s(sLH)}, {s(sC)}, 43
    s_lshr_b32 {s(sLH)}, {s(sLH)}, 7
    s_mul_i32 {s(sT0)}, {s(sLH)}, 3
    s_sub_u32 {s(sP)}, {s(sC)}, {s(sT0)}
    """)
    vSrc, vSrcO = MF, MF + 1
    vRdq, vRo = MF + 2, MF + 6
    sW1, sW2 = sXPw, sXPr
    panel_src_off(A, vSrc, t0, L, 12288)
    A(f"""
    s_lshl_b32 {s(sT0)}, {s(S_X)}, 2
    s_add_u32 {s(sT0)}, {s(sT0)}, {s(sLH)}
    s_mul_i32 {s(sW1)}, {s(sT0)}, 384
    s_lshl_b32 {s(sT0)}, {s(sP)}, 7
    s_add_u32 {s(sW1)}, {s(sW1)}, {s(sT0)}
    s_mul_i32 {s(sT0)}, {s(S_W)}, {80*12288}
    s_add_u32 {s(sW1)}, {s(sW1)}, {s(sT0)}
    s_lshl_b32 {s(sT0)}, {s(S_X)}, 2
    s_add_u32 {s(sT0)}, {s(sT0)}, {s(S_W)}
    s_mul_i32 {s(sW2)}, {s(sT0)}, {192*1280}
    s_min_u32 {s(sT0)}, {s(sC)}, 9
    s_lshl_b32 {s(sT0)}, {s(sT0)}, 7
    s_add_u32 {s(sW2)}, {s(sW2)}, {s(sT0)}
    s_mul_i32 {s(sM0)}, {s(S_W)}, 10240
    s_waitcnt lgkmcnt(0)
    """)
    CH = {"v": (SV_, WV), "k": (SK, WK), "q": (SQ, WQ)}
    order = optv.get("word", "v1k1q1v0k0q0o2o1o0")
    order = [(order[i], int(order[i+1])) for i in range(0, len(order), 2)]
    DEPTH = int(optv.get("wdep", 2))
    assert DEPTH <= 3 and all(m != "o" for m, _ in order[:DEPTH])
    VMW = Cnt(A, "vmcnt", 63)
    def w_issue(i):
        m, h = order[i]; buf = i % 4
        for n in range(10 if m != "o" else 8):
            if m != "o":
                A(f"s_add_u32 m0, {s(sM0)}, {buf*40960 + n*1024}\ns_add_u32 {s(sT0)}, {s(sW1)}, {(h*320 + n*8)*12288}")
                VMW.issue(f"buffer_load_dwordx4 {v(vSrc)}, {s(CH[m][0],4)}, {s(sT0)} offen nt lds", i)
            else:
                nn = h * 8 + n
                rows = 64 * (nn >> 3) + 32 * ((nn >> 2) & 1) + 16 * (nn & 1) + ((nn >> 1) & 1)
                A(f"s_add_u32 m0, {s(sM0)}, {buf*40960 + n*1024}\ns_add_u32 {s(sT0)}, {s(sW2)}, {rows*1280}")
                VMW.issue(f"buffer_load_dwordx4 {v(vSrcO)}, {s(SO,4)}, {s(sT0)} offen nt lds", i)
    def w_read(i):
        m, h = order[i]; buf = i % 4
        VMW.wait(i)
        if i + DEPTH < len(order): w_issue(i + DEPTH)
        if m != "o":
            A("s_barrier")
            for ks in range(10): panel_read_frag(A, CH[m][1] + 4 * (h * 10 + ks), vRdq + buf, ks * 4096)
            A("s_waitcnt lgkmcnt(0)\ns_barrier")
        else:
            for ct in range(4):
                A(f"v_add_u32 {v(t0)}, {buf*40960}, {v(vRo+ct)}")
                for k2 in range(2): panel_read_frag(A, WOf(ct, 2 * h + k2), t0, k2 * 4096)
            A("s_waitcnt lgkmcnt(0)")
    for i in range(DEPTH): w_issue(i)
    A(f"s_lshl_b32 {s(sT0)}, {s(S_W)}, 1")
    panel_rd_addr(A, vRdq, t0, t1, L, s(sT0))
    for b in range(1, 4): A(f"v_add_u32 {v(vRdq+b)}, {40960*b}, {v(vRdq)}")
    panel_src_off(A, vSrcO, t0, L, 0)
    A(f"""
    v_bfe_u32 {v(t0)}, {v(L)}, 3, 2
    v_lshlrev_b32 {v(t0)}, 2, {v(t0)}
    v_bfe_u32 {v(t1)}, {v(L)}, 5, 1
    v_lshl_add_u32 {v(t0)}, {v(t1)}, 1, {v(t0)}
    v_mul_u32_u24 {v(t0)}, 1280, {v(t0)}
    v_add_u32 {v(vSrcO)}, {v(vSrcO)}, {v(t0)}
    """)
    for ct in range(4):
        panel_rd_addr(A, vRo + ct, t0, t1, L, ct)
        A(f"v_add_u32 {v(vRo+ct)}, {s(sM0)}, {v(vRo+ct)}")
    for i in range(4): A(f"v_mov_b32 {v(ONES+i)}, 0x3f803f80")
    for i in range(12): A(f"v_mov_b32 {v(PXL+i)}, 0")
    g_, q_, fl_ = U, U + 1, U + 2
    A(f"""
    v_lshlrev_b32 {v(vL16)}, 4, {v(L)}
    v_lshlrev_b32 {v(vL8)}, 3, {v(L)}
    v_lshlrev_b32 {v(vXw)}, 2, {v(L)}
    s_mul_i32 {s(sT0)}, {s(S_W)}, 2560
    v_add_u32 {v(vMemG)}, {s(sT0)}, {v(vL16)}
    s_add_u32 {s(sT0)}, {s(sT0)}, 2048
    v_add_u32 {v(vMemG8)}, {s(sT0)}, {v(vXw if "mx1" in opt else vL8)}
    v_lshrrev_b32 {v(g_)}, 4, {v(L)}
    v_and_b32 {v(q_)}, 7, {v(L)}
    v_and_b32 {v(fl_)}, 15, {v(L)}
    v_bfe_u32 {v(t0)}, {v(L)}, 1, 1
    v_mul_u32_u24 {v(t0)}, 0xaaaa, {v(t0)}
    v_add_u32 {v(vIdx)}, 0x4444, {v(t0)}
    v_bfe_u32 {v(t0)}, {v(L)}, 2, 1
    v_mov_b32 {v(vSel)}, 0x05040100
    v_mov_b32 {v(t1)}, 0x03020706
    v_cmp_eq_u32 vcc, 1, {v(t0)}
    v_cndmask_b32 {v(vSel)}, {v(vSel)}, {v(t1)}, vcc
    s_lshl_b32 {s(sT0)}, {s(S_W)}, 9
    s_add_u32 {s(sT0)}, {s(sT0)}, {LDS_T}
    v_lshlrev_b32 {v(t0)}, 5, {v(fl_)}
    v_lshl_add_u32 {v(t0)}, {v(g_)}, 2, {v(t0)}
    v_add_u32 {v(vTw)}, {s(sT0)}, {v(t0)}
    v_lshl_add_u32 {v(vTw2)}, {v(g_)}, 2, {v(vTw)}
    v_add_u32 {v(vTw2)}, {LDS_T2-LDS_T}, {v(vTw2)}
    s_lshl_b32 {s(sT0)}, {s(S_W)}, 8
    v_add_u32 {v(vVst)}, {s(sT0)}, {v(vXw)}
    s_lshl_b32 {s(sT0)}, {s(sC)}, 10
    v_add_u32 {v(vMemW)}, {s(sT0)}, {v(vVst)}
    s_lshl_b32 {s(sT0)}, {s(sP)}, 10
    s_lshl_b32 {s(sT1)}, {s(sP)}, 2
    s_add_u32 {s(sT1)}, {s(sT1)}, 3072
    s_cmp_lt_u32 {s(S_W)}, 2
    s_cselect_b32 {s(sSoff)}, {s(sT0)}, {s(sT1)}
    s_add_u32 {s(sVoff)}, {s(sT0)}, 4096
    v_bfe_u32 {v(t0)}, {v(L)}, 2, 2
    v_lshlrev_b32 {v(t0)}, 1, {v(t0)}
    v_and_b32 {v(t1)}, 1, {v(L)}
    v_add_u32 {v(t0)}, {v(t0)}, {v(t1)}
    v_lshl_add_u32 {v(t0)}, {v(g_)}, 3, {v(t0)}
    v_lshlrev_b32 {v(t0)}, 4, {v(t0)}
    v_add_u32 {v(vKm)}, {s(sT0)}, {v(t0)}
    s_lshl_b32 {s(sT0)}, {s(S_W)}, 11
    s_add_u32 {s(sT0)}, {s(sT0)}, {LDS_RED}
    v_add_u32 {v(vRedW)}, {s(sT0)}, {v(vL16)}
    s_lshl_b32 {s(sT0)}, {s(S_W)}, 2
    s_add_u32 {s(sT0)}, {s(sT0)}, {LDS_RZ}
    v_lshl_add_u32 {v(vRzW)}, {v(fl_)}, 4, {s(sT0)}
    s_lshl_b32 {s(sT0)}, {s(S_W)}, 9
    s_add_u32 {s(sT0)}, {s(sT0)}, {LDS_RED}
    v_and_b32 {v(t0)}, 3, {v(L)}
    v_lshlrev_b32 {v(t0)}, 5, {v(t0)}
    v_bfe_u32 {v(t1)}, {v(L)}, 4, 1
    v_lshl_add_u32 {v(t0)}, {v(t1)}, 4, {v(t0)}
    v_add_u32 {v(vRzR)}, {LDS_RZ}, {v(t0)}
    v_bfe_u32 {v(t1)}, {v(L)}, 5, 1
    v_lshl_add_u32 {v(t0)}, {v(t1)}, 3, {v(t0)}
    v_bfe_u32 {v(t1)}, {v(L)}, 2, 2
    v_lshl_add_u32 {v(t0)}, {v(t1)}, 7, {v(t0)}
    v_add_u32 {v(vRedR)}, {s(sT0)}, {v(t0)}
    ; masks
    s_mov_b32 {s(sMlo)}, 0x00ff00ff
    s_mov_b32 {s(sMlo+1)}, 0x00ff00ff
    s_mov_b32 {s(sMhi)}, 0xff00ff00
    s_mov_b32 {s(sMhi+1)}, 0xff00ff00
    s_cmp_eq_u32 {s(S_W)}, 0
    s_cselect_b64 {s(sMS,2)}, {s(sMlo,2)}, {s(sMhi,2)}
    s_mov_b32 {s(sCL)}, {f32bits(SCALE * 1.4426950408889634)}
    s_mov_b32 {s(sCL+1)}, {s(sCL)}
    s_mov_b64 {s(sPend,2)}, 0
    s_mul_i32 {s(sMemB)}, {s(S_X)}, 10240
    s_add_u32 {s(sMemB)}, {s(sMemB)}, {OFF_MEM}
    s_lshl_b32 {s(sT0)}, {s(S_X)}, 17
    s_add_u32 {s(sT0)}, {s(sT0)}, {OFF_SV2}
    s_lshl_b32 {s(sT1)}, {s(sLH)}, 13
    s_add_u32 {s(sSVb)}, {s(sT0)}, {s(sT1)}
    s_lshl_b32 {s(sT1)}, {s(S_W)}, 13
    s_add_u32 {s(sSVgb)}, {s(sT0)}, {s(sT1)}
    s_lshl_b32 {s(sT2)}, {s(S_X)}, 22
    s_add_u32 {s(sT2)}, {s(sT2)}, {OFF_RING}
    s_mul_i32 {s(sKmb)}, {s(sLH)}, 3072
    s_add_u32 {s(sKmb)}, {s(sKmb)}, {s(sT2)}
    s_add_u32 {s(sKmb)}, {s(sKmb)}, {R_KM}
    s_mul_i32 {s(sKx)}, {s(sLH)}, 12288
    s_add_u32 {s(sKx)}, {s(sKx)}, {s(sT2)}
    s_add_u32 {s(sKx)}, {s(sKx)}, {QKV_MAT}
    s_and_b32 {s(sT0)}, {s(S_W)}, 1
    s_mul_i32 {s(sT0)}, {s(sT0)}, 6144
    s_add_u32 {s(sKx)}, {s(sKx)}, {s(sT0)}
    s_lshl_b32 {s(sT0)}, {s(sP)}, 11
    s_add_u32 {s(sKx)}, {s(sKx)}, {s(sT0)}
    s_mul_i32 {s(sUb)}, {s(S_W)}, 40960
    s_add_u32 {s(sUb)}, {s(sUb)}, {s(sT2)}
    s_add_u32 {s(sUb)}, {s(sUb)}, {R_U}
    s_lshl_b32 {s(sT1)}, {s(sC)}, 12
    s_add_u32 {s(sUb)}, {s(sUb)}, {s(sT1)}
    s_mul_i32 {s(sWmb)}, {s(S_W)}, 10240
    s_add_u32 {s(sWmb)}, {s(sWmb)}, {s(sT2)}
    s_add_u32 {s(sWmb)}, {s(sWmb)}, {R_WM}
    s_lshl_b32 {s(sT1)}, {s(sC)}, 10
    s_add_u32 {s(sWmb)}, {s(sWmb)}, {s(sT1)}
    s_mul_i32 {s(sXPb)}, {s(sC)}, {NP*16384}
    s_lshl_b32 {s(sT0)}, {s(S_W)}, 11
    s_add_u32 {s(sXPb)}, {s(sXPb)}, {s(sT0)}
    s_add_u32 {s(sXPb)}, {s(sXPb)}, {OFF_XP}
    v_lshlrev_b32 {v(vPi)}, 2, {v(g_)}
    v_lshl_add_u32 {v(vPi)}, {v(fl_)}, 4, {v(vPi)}
    s_lshr_b32 {s(sXh)}, {s(S_X)}, 2
    s_lshl_b32 {s(sXh)}, {s(sXh)}, 10
    s_and_b32 {s(sT0)}, {s(S_X)}, 3
    s_lshl_b32 {s(sT0)}, {s(sT0)}, 4
    s_mov_b64 {s(sXm,2)}, 0xffff
    s_lshl_b64 {s(sXm,2)}, {s(sXm,2)}, {s(sT0)}
    s_not_b64 {s(sXm,2)}, {s(sXm,2)}
    s_lshl_b32 {s(sT0)}, {s(S_X)}, 8
    v_add_u32 {v(vPf)}, {s(sT0)}, {v(vXw)}
    s_lshl_b32 {s(sT1)}, {s(sC)}, 4
    s_add_u32 {s(sT0)}, {s(sT0)}, {s(sT1)}
    s_lshl_b32 {s(sT1)}, {s(S_W)}, 2
    s_add_u32 {s(sT0)}, {s(sT0)}, {s(sT1)}
    s_add_u32 {s(sT0)}, {s(sT0)}, {CPROG}
    v_mov_b32 {v(vCp)}, {s(sT0)}
    v_mov_b32 {v(vProg)}, 0
    s_mov_b32 {s(sSeg)}, 0
    v_and_b32 {v(t1)}, 3, {v(L)}
    v_mov_b32 {v(t2)}, 0
    v_mov_b32 {v(t3)}, 0x3f80
    v_cmp_eq_u32 vcc, 0, {v(t1)}
    v_cndmask_b32 {v(t2)}, {v(t2)}, {v(t3)}, vcc
    v_mov_b32 {v(t3)}, 0x3f800000
    v_cmp_eq_u32 vcc, 1, {v(t1)}
    v_cndmask_b32 {v(t2)}, {v(t2)}, {v(t3)}, vcc
    v_lshrrev_b32 {v(t0)}, 2, {v(fl_)}
    v_mov_b32 {v(t3)}, 0
    v_mov_b32 {v(HALF)}, 0x3f803f80
    v_mov_b32 {v(HALF+1)}, 0
    """)
    for d in range(4):
        A(f"v_cmp_eq_u32 vcc, {d}, {v(t0)}\nv_cndmask_b32 {v(SELA+d)}, {v(t3)}, {v(t2)}, vcc")
    for i in range(len(order)): w_read(i)
    A("s_barrier")
    ev(A, 1, t0)
    if "wonly" in opt: A("s_endpgm")
    g0_wait(A, t0, sCnt, abort='chain_abort')

    def ensure_prog(need, lo=PMASK_LO, hi=PMASK_HI):
        lp, ok = A.label("cpw"), A.label("cpo")
        A(f"""
        s_mov_b32 {s(sCnt)}, 0
        {lp}:
        v_cmp_gt_u32 vcc, {need}, {v(vProg)}
        s_and_b32 vcc_lo, vcc_lo, {lo:#x}
        s_and_b32 vcc_hi, vcc_hi, {hi:#x}
        s_cmp_eq_u64 vcc, 0
        s_cbranch_scc1 {ok}
        s_sleep 1
        buffer_load_dword {v(vProg)}, {v(vPf)}, {WSR}, 0 offen sc1
        s_add_u32 {s(sCnt)}, {s(sCnt)}, 1
        s_cmp_gt_u32 {s(sCnt)}, {SPIN_LIMIT}
        s_cbranch_scc1 chain_abort
        s_waitcnt vmcnt(0)
        s_branch {lp}
        {ok}:
        """)

    def prefetch(cls, isW, addr=True):
        H = []
        if cls == 0:
            if addr: A(f"""
            s_and_b32 {s(sKo)}, {s(sSeg)}, 7
            s_mul_i32 {s(sKo)}, {s(sKo)}, {QS}
            s_add_u32 {s(sKo)}, {s(sKo)}, {s(sKx)}
            """)
            H += [f"buffer_load_dwordx4 {v(KX+4*i,4)}, {v(vL16)}, {WSR}, {s(sKo)} offen offset:{i*1024} sc1" for i in range(2)]
        if isW:
            if addr: A(f"""
            s_and_b32 {s(sUo)}, {s(sSeg)}, 3
            s_mul_i32 {s(sUo)}, {s(sUo)}, {S4}
            s_add_u32 {s(sUo)}, {s(sUo)}, {s(sUb)}
            """)
            H += [f"buffer_load_dwordx4 {v(U+4*i,4)}, {v(vL16)}, {WSR}, {s(sUo)} offen offset:{i*1024} sc1" for i in range(4)]
        H += [f"buffer_load_dword {v(vProg)}, {v(vPf)}, {WSR}, 0 offen sc1"]
        return [] if addr and HB and isW else H

    def step_setup(isW):
        A(f"""
        s_and_b32 {s(sT0)}, {s(sSeg)}, 3
        s_mul_i32 {s(sMemCur)}, {s(sT0)}, {MEM_SLOT}
        s_add_u32 {s(sMemCur)}, {s(sMemCur)}, {s(sMemB)}
        s_lshl_b32 {s(sT1)}, {s(sT0)}, 15
        s_add_u32 {s(sT2)}, {s(sSVb)}, {s(sT1)}
        s_add_u32 {s(sSVs)}, {s(sT2)}, {s(sSoff)}
        s_add_u32 {s(sSVv)}, {s(sT2)}, {s(sVoff)}
        s_mul_i32 {s(sT2)}, {s(sT0)}, {S4}
        s_add_u32 {s(sKm)}, {s(sKmb)}, {s(sT2)}
        """)
        if isW:
            A(f"""
            s_add_u32 {s(sWm)}, {s(sWmb)}, {s(sT2)}
            s_add_u32 {s(sSVg)}, {s(sSVgb)}, {s(sT1)}
            s_add_u32 {s(sSVgv)}, {s(sSVg)}, 4096
            s_mul_i32 {s(sXPr)}, {s(sT0)}, {XP_SLOT*NP}
            s_and_b32 {s(sT2)}, {s(sSeg)}, {4 if X8 else 0}
            s_lshl_b32 {s(sT2)}, {s(sT2)}, 20
            s_add_u32 {s(sXPr)}, {s(sXPr)}, {s(sT2)}
            s_add_u32 {s(sXPr)}, {s(sXPr)}, {s(sXPb)}
            s_lshl_b32 {s(sT1)}, {s(S_X)}, 8
            s_add_u32 {s(sXPw)}, {s(sXPr)}, {s(sT1)}
            s_xor_b32 {s(sXPz)}, {s(sXPw)}, 8192
            """)
            for k in range(1, NP): A(f"s_add_u32 {s(sXPw_[k])}, {s(sXPw)}, {k*16384}\ns_add_u32 {s(sXPz_[k])}, {s(sXPz)}, {k*16384}")
            for i in range(16): A(f"v_mov_b32 {v(WMD+i)}, 0")
        for acc in (accq, acck, accv):
            for i in range(4): A(f"v_mov_b32 {v(acc+i)}, 0")

    def km_st(cls):
        if cls != 2: return []
        return [f"buffer_store_dwordx4 {v(KX,4)}, {v(vKm)}, {WSR}, {s(sKm)} offen",
                f"buffer_store_dwordx4 {v(KX+4,4)}, {v(vKm)}, {WSR}, {s(sKm)} offen offset:512"]
    wm_st = f"buffer_store_dwordx4 {v(ZD,4)}, {v(vL16)}, {WSR}, {s(sWm)} offen"
    def flag(reg):
        A(f"buffer_store_dword {v(reg)}, {v(vCp)}, {WSR}, 0 offen")
    def spin():
        A(f"s_add_u32 {s(sCnt)}, {s(sCnt)}, 1\ns_cmp_gt_u32 {s(sCnt)}, {SPIN_LIMIT}\ns_cbranch_scc1 chain_abort")
    def nap(gd):
        while gd > 0:
            A(f"s_nop {min(gd, 16) - 1}"); gd -= 16
    def masked_reload(lb, pieces, tmp):
        for i, (R, n, ld) in enumerate(pieces):
            A(f"v_max3_u32 {v(tmp)}, {v(R)}, {v(R+1)}, {v(R+2)}")
            if n == 4: A(f"v_max_u32 {v(tmp)}, {v(tmp)}, {v(R+3)}")
            A(f"v_cmp_eq_u32 vcc, -1, {v(tmp)}\ns_cbranch_vccz {lb}_s{i}\ns_mov_b64 exec, vcc\n{ld}\ns_mov_b64 exec, -1\n{lb}_s{i}:")

    def poll_fill(): pass
    def mem_poll(cold):
        lb = A.label("mq")
        NS = int(optv.get("ns", 2))
        SETS = [(FD, FD + 4, CX), (WMP, WMP + 4, CY), (U, U + 4, QF), (U + 8, U + 12, QF + 2)][:NS]
        X1 = "mx1" in opt
        NL = 4 if X1 else 3
        def ld(P):
            A(f"""
            buffer_load_dwordx4 {v(P[0],4)}, {v(vMemG)}, {WSR}, {s(sMemCur)} offen sc1
            buffer_load_dwordx4 {v(P[1],4)}, {v(vMemG)}, {WSR}, {s(sMemCur)} offen offset:1024 sc1
            """)
            if X1: A(f"buffer_load_dword {v(P[2])}, {v(vMemG8)}, {WSR}, {s(sMemCur)} offen sc1\nbuffer_load_dword {v(P[2]+1)}, {v(vMemG8)}, {WSR}, {s(sMemCur)} offen offset:256 sc1")
            else: A(f"buffer_load_dwordx2 {v(P[2],2)}, {v(vMemG8)}, {WSR}, {s(sMemCur)} offen sc1")
        def chk(P):
            A(f"""
            s_waitcnt vmcnt({NL * (NS - 1)})
            v_max3_u32 {v(t0)}, {v(P[0])}, {v(P[1])}, {v(P[2])}
            """)
            if X1: A(f"v_max_u32 {v(t0)}, {v(t0)}, {v(P[2]+1)}")
            A(f"""
            v_cmp_eq_u32 vcc, -1, {v(t0)}
            ds_write_b128 {v(vMemG)}, {v(P[0],4)}
            ds_write_b128 {v(vMemG)}, {v(P[1],4)} offset:1024
            """)
            if X1: A(f"ds_write2st64_b32 {v(vMemG8)}, {v(P[2])}, {v(P[2]+1)} offset0:0 offset1:1")
            else: A(f"ds_write_b64 {v(vMemG8)}, {v(P[2],2)}")
        A(f"s_mov_b32 {s(sCnt)}, 0")
        for k in range(NS - 1): ld(SETS[k]); nap(int(optv.get("n2s", 24)))
        A(f"{lb}:")
        for k in range(NS):
            ld(SETS[(k - 1) % NS])
            if prof or k == 0: spin()
            chk(SETS[k])
            A(f"s_cbranch_vccz {lb}_ok")
            if "mlw" in opt: A("s_waitcnt lgkmcnt(0)")
        A(f"s_branch {lb}")
        A(f"{lb}_ok:\ns_waitcnt lgkmcnt(0)\ns_barrier")

    def prof_dump():
        if prof:
            A(f"""
            s_memrealtime {s(stamps[9],2)}
            s_lshl_b32 {s(sT0)}, {s(S_W)}, 12
            s_lshl_b32 {s(sT1)}, {s(sSeg)}, 6
            s_add_u32 {s(sT0)}, {s(sT0)}, {s(sT1)}
            v_add_u32 {v(t1)}, {s(sT0)}, {v(vXw)}
            s_waitcnt lgkmcnt(0)
            """)
            for i in range(NST):
                A(f"v_writelane_b32 {v(t0)}, {s(stamps[i])}, {i}")
            for i, c_ in enumerate(cnts[:2] + [sCnt]):
                A(f"v_writelane_b32 {v(t0)}, {s(c_)}, {10+i}")
            A(f"s_mov_b64 exec, 0x1fff\nds_write_b32 {v(t1)}, {v(t0)} offset:32768\ns_mov_b64 exec, -1")
    def prof_out():
        if prof:
            A(f"""
            s_mul_i32 {s(sT0)}, {s(S_X)}, 12
            s_add_u32 {s(sT0)}, {s(sT0)}, {s(sC)}
            s_lshl_b32 {s(sT0)}, {s(sT0)}, 2
            s_add_u32 {s(sT0)}, {s(sT0)}, {s(S_W)}
            s_lshl_b32 {s(sT0)}, {s(sT0)}, 12
            s_add_u32 {s(sT0)}, {s(sT0)}, {OFF_DBG}
            s_lshl_b32 {s(sT1)}, {s(S_W)}, 12
            v_add_u32 {v(t1)}, {s(sT1)}, {v(vL16)}
            s_waitcnt vmcnt(0) lgkmcnt(0)
            """)
            for i in range(4): A(f"ds_read_b128 {v(MF+4*i,4)}, {v(t1)} offset:{32768+1024*i}")
            A("s_waitcnt lgkmcnt(0)")
            for i in range(4): A(f"buffer_store_dwordx4 {v(MF+4*i,4)}, {v(vL16)}, {WSR}, {s(sT0)} offen offset:{1024*i}")

    def t_reset(cls, rd=False):
        if cls == 0: return
        if cls == 2 and rd:
            for i in range(4): A(f"ds_read_b64_tr_b16 {v(KX+2*i,2)}, {v(vL8)} offset:{LDS_T2+512*i}")
        for i in range(4): A(f"v_mov_b32 {v(MF+12+i)}, -1")
        for i in range(2): A(f"ds_write_b128 {v(vL16)}, {v(MF+12,4)} offset:{(LDS_T if cls == 1 else LDS_T2) + 1024*i}")
        if cls == 2 and rd: A(f"s_waitcnt lgkmcnt({0 if prof else 2})")

    def emit_loop(cls, isW):
        tag = f"c{cls}{'w' if isW else 'n'}"
        lp = f"chain_loop_{tag}"
        cold = []
        A(f"chain_pro_{tag}:")
        ev(A, 2, t0)
        if isW:
            ensure_prog(1, hi=PMASK_HI | 1 << 28)
            A(f"""
            v_readlane_b32 {s(sT0)}, {v(vProg)}, 60
            s_sub_u32 {s(sT0)}, {s(sT0)}, 1
            s_lshl_b32 {s(sT0)}, {s(sT0)}, 13
            s_add_u32 {s(sXPb)}, {s(sXPb)}, {s(sT0)}
            """)
        else:
            ensure_prog(1, hi=1 << 28)
            A(f"""
            s_sub_u32 {s(sT0)}, {s(sC)}, 10
            s_lshl_b32 {s(sT0)}, {s(sT0)}, 2
            s_add_u32 {s(sT0)}, {s(sT0)}, {s(S_W)}
            s_cmp_lt_u32 {s(sT0)}, 4
            s_cselect_b32 {s(sXPz)}, {20*NP//8*8}, 0
            s_lshl_b32 {s(sXPz)}, {s(sXPz)}, 13
            s_lshl_b32 {s(sXPb)}, {s(sT0)}, 13
            s_mul_i32 {s(sT1)}, {s(sT0)}, 1280
            v_add_u32 {v(vRedR)}, {s(sT1)}, {v(vL16)}
            v_add_u32 {v(vMemW)}, {s(sT1)}, {v(vXw)}
            s_lshl_b32 {s(sSVgb)}, {s(sT0)}, 12
            s_lshl_b32 {s(sT0)}, {s(S_X)}, 17
            s_add_u32 {s(sSVgb)}, {s(sSVgb)}, {s(sT0)}
            s_add_u32 {s(sSVgb)}, {s(sSVgb)}, {OFF_SV2}
            s_lshl_b32 {s(sT0)}, {s(S_X)}, 8
            s_add_u32 {s(sXPb)}, {s(sXPb)}, {s(sT0)}
            s_add_u32 {s(sXPb)}, {s(sXPb)}, {OFF_XP}
            v_lshrrev_b32 {v(t0)}, 4, {v(L)}
            v_lshlrev_b32 {v(t0)}, 11, {v(t0)}
            v_and_b32 {v(t1)}, 15, {v(L)}
            v_lshl_add_u32 {v(vRedW)}, {v(t1)}, 4, {v(t0)}
            """)
            for i in range(4): A(f"v_mov_b32 {v(SENT+i)}, -1")
        ev(A, 3, t0)
        for x in prefetch(cls, isW): A(x)
        step_setup(isW)
        t_reset(cls)
        poll_fill()
        A(f"{lp}:")
        stamp(0)
        mem_poll(cold)
        stamp(1)
        if prof: A(f"s_mov_b32 {s(cnts[0])}, {s(sCnt)}\ns_waitcnt lgkmcnt(0)")
        for b in range(10):
            A(f"ds_read_b128 {v(MF+4*b,4)}, {v(vL16)} offset:{LDS_MEM+b*1024}")
        od = optv.get("ord", "v" * 10 + "q" * 10) + "k" * 10
        assert all(od.count(c) == 10 for c in "qkv")
        seq = [({"q": accq, "k": acck, "v": accv}[c], {"q": WQ, "k": WK, "v": WV}[c], od[:i].count(c)) for i, c in enumerate(od)]
        qe, ve = od.rindex("q"), od.rindex("v")
        seen = [-1]
        def sm(n=1):
            for _ in range(n):
                acc, W, b = seq.pop(0)
                if b > seen[0]: A(f"s_waitcnt lgkmcnt({9-b})"); seen[0] = b
                A(f"v_smfmac_f32_16x16x64_bf16 {v(acc,4)}, {v(MF+4*b,4)}, {r(W+8*b,8)}, {v(vIdx)}")
        tq, tk = int(optv.get("tq", 4)), int(optv.get("tk", 12))
        sx = A.label("sx")
        def trq(): return [f"ds_read_b64_tr_b16 {v(QF+2*i,2)}, {v(vL8)} offset:{LDS_T+512*i}" for i in range(4)]
        def trk(): return [f"ds_read_b64_tr_b16 {v(KX+2*i,2)}, {v(vL8)} offset:{LDS_T2+512*i}" for i in range(4)]
        smf = [f"v_mfma_f32_16x16x32_bf16 {v(accS,4)}, {v(KX,4)}, {v(QF,4)}, 0",
               f"v_mfma_f32_16x16x32_bf16 {v(accS,4)}, {v(KX+4,4)}, {v(QF+4,4)}, {v(accS,4)}"]
        chk_s = f"v_cmp_u_f32 vcc, {v(accS)}, {v(accS+1)}"
        LX = [(G_SX + 4*p, 4, f"buffer_load_dwordx4 {v(G_SX+4*p,4)}, {v(vL16)}, {WSR}, {s(sSVg)} offen offset:{p*1024} sc1") for p in range(3)]
        LM = (G_SM, 3, f"buffer_load_dwordx3 {v(G_SM,3)}, {v(vL16)}, {WSR}, {s(sSVg)} offen offset:3072 sc1")
        LV = [(G_V + 4*b, 4, f"buffer_load_dwordx4 {v(G_V+4*b,4)}, {v(vL16)}, {WSR}, {s(sSVgv)} offen offset:{b*1024} sc1") for b in range(3)]
        def add2(acc): return [f"v_add_f32 {v(acc)}, {v(acc)}, {v(acc+2)}", f"v_add_f32 {v(acc+1)}, {v(acc+1)}, {v(acc+3)}"]
        def tw(acc, R, va_, o1): return [f"v_cvt_pk_bf16_f32 {v(R)}, {v(acc)}, {v(acc+1)}", f"ds_write2_b32 {v(va_)}, {v(R)}, {v(R)} offset0:0 offset1:{o1}"]
        side = {i: [] for i in range(30)}
        side[qe + 2] += add2(accq); side[qe + 3] += tw(accq, QK, vTw, 4)
        v0 = ve + 2 if abs(ve - qe) > 1 else qe + 4
        side[v0] += add2(accv)
        side[v0 + 1] += [f"v_cvt_pk_bf16_f32 {v(t0)}, {v(accv)}, {v(accv+1)}", "s_nop 0"]
        side[v0 + 2] += [f"v_mov_b32_dpp {v(t1)}, {v(t0)} row_ror:4 row_mask:0xf bank_mask:0xa", "s_nop 0"]
        side[v0 + 3] += [f"v_mov_b32_dpp {v(t1)}, {v(t0)} row_ror:12 row_mask:0xf bank_mask:0x5", "s_nop 0"]
        side[v0 + 4] += [f"v_perm_b32 {v(t0)}, {v(t1)}, {v(t0)}, {v(vSel)}", f"buffer_store_dword {v(t0)}, {v(vVst)}, {WSR}, {s(sSVv)} offen"]
        VM = Cnt(A, "vmcnt", 63)
        if isW:
            hp = [int(x) for x in optv.get("hbp" if cls == 0 else "hbq", "0,2,4,7,16,18,23" if cls == 0 else "1,3,6,17,24").split(",")]
            for i, x in enumerate(prefetch(cls, isW, False)): side[hp[i]] += [x]
            vp = [int(x) for x in optv.get(f"vp{cls}", optv.get("vp", "27,28,29")).split(",")]
            for i, x in enumerate(LV):
                if vp[i] < 30: side[vp[i]] += [x[2]]
        if cls < 2:
            side[qe + 3 + tq] += ["QW"] + trq()[:2]; side[qe + 4 + tq] += trq()[2:]
        SIN = cls == 0 and "tr" in optv
        sst = f"buffer_store_dwordx4 {v(accS,4)}, {v(vL16)}, {WSR}, {s(sSVs)} offen"
        if SIN:
            p0 = qe + 4 + tq + int(optv["tr"])
            side[p0] += ["KW", "s_waitcnt lgkmcnt(0)"] + smf + ["s_nop 1"]
            side[p0 + 2] += [chk_s]
            side[p0 + 3] += [f"s_mov_b64 exec, {s(sMS,2)}", f"s_cbranch_vccnz {sx}_r", f"{sx}:", sst, "s_mov_b64 exec, -1"]
            if not side[p0 + 1]: side[p0 + 1] += ["s_nop 2"]
        for q, n in ((qe, 2), (qe + 1, 2), (v0 - 2, 2), (v0 - 1, 2)):
            if len(side[q]) <= n: side[q] += [f"s_nop {n - len(side[q])}"]
        for i in range(30):
            sm(1)
            for x in side[i]:
                if x.startswith("buffer"): VM.issue(x, "K" if f"{v(KX+4,4)}," in x else "V" if s(sSVgv) + " " in x else None)
                elif x == "QW":
                    if int(optv.get("ns", 2)) > 2: A(f"s_waitcnt vmcnt({len(VM.q)})")
                elif x == "KW": VM.wait("K")
                else: A(x)
            if i == 9: stamp("b1")
            if i == 19: stamp(2)
        def s_cold():
            A(f"{sx}_r:\ns_mov_b64 exec, -1")
            for x in trq() + (trk() if cls == 1 else []): A(x)
            spin()
            A("s_waitcnt lgkmcnt(0)")
            for x in smf + [chk_s]: A(x)
            if cls == 0: A(f"s_mov_b64 exec, {s(sMS,2)}")
            A(f"s_cbranch_vccnz {sx}_r\ns_branch {sx}")
        if cls < 2: cold.append(s_cold)
        def lv_late():
            if isW:
                for i, x in enumerate(LV):
                    if vp[i] == 30: VM.issue(x[2], "V")
        kepi = add2(acck) + tw(acck, QK + 1, vTw2, 1)
        if cls == 0 and not SIN:
            VM.wait("K")
            if "sfirst" in opt:
                A("s_waitcnt lgkmcnt(0)")
                for x in smf + kepi: A(x)
                lv_late()
            else:
                for x in kepi: A(x)
                A(f"s_waitcnt lgkmcnt(1)")
                for x in smf: A(x)
                if "vlast" not in opt: lv_late()
            A(f"""
            {chk_s}
            s_mov_b64 exec, {s(sMS,2)}
            s_cbranch_vccnz {sx}_r
            {sx}:
            """)
            VM.issue(f"buffer_store_dwordx4 {v(accS,4)}, {v(vL16)}, {WSR}, {s(sSVs)} offen")
            A("s_mov_b64 exec, -1")
            if "vlast" in opt: lv_late()
        else:
            for x in kepi: A(x)
            if cls != 1: lv_late()
        if cls == 1:
            nap(tk)
            for x in trk(): A(x)
            lv_late()
            A(f"""
            s_waitcnt lgkmcnt(2)
            {smf[0]}
            s_waitcnt lgkmcnt(0)
            {smf[1]}
            {chk_s}
            v_cndmask_b32 {v(t0)}, {v(accS)}, {v(accS+1)}, {s(sMhi,2)}
            s_cbranch_vccnz {sx}_r
            {sx}2:
            """)
            VM.issue(f"buffer_store_dword {v(t0)}, {v(vL16)}, {WSR}, {s(sSVs)} offen")
            cold.append(lambda: A(f"{sx}:\nv_cndmask_b32 {v(t0)}, {v(accS)}, {v(accS+1)}, {s(sMhi,2)}\ns_branch {sx}2"))
        stamp(3)
        if not isW:
            A(f"""
            s_sub_u32 {s(sT0)}, {s(sSeg)}, 1
            s_and_b32 {s(sT0)}, {s(sT0)}, 3
            s_lshl_b32 {s(sT1)}, {s(sT0)}, 15
            s_add_u32 {s(sT1)}, {s(sT1)}, {s(sSVgb)}
            s_mul_i32 {s(sT0)}, {s(sT0)}, {MEM_SLOT}
            s_add_u32 {s(sT0)}, {s(sT0)}, {s(sMemB)}
            s_add_u32 {s(sSeg)}, {s(sSeg)}, 1
            v_mov_b32 {v(t3)}, {s(sSeg)}
            s_waitcnt vmcnt(0) lgkmcnt(0)
            s_barrier
            """)
            t_reset(cls, True)
            for x in km_st(cls): A(x)
            A("s_waitcnt vmcnt(0)")
            flag(t3)
            A(f"""
            s_cmp_eq_u32 {s(sSeg)}, {NSEG}
            s_cbranch_scc1 chain_end
            s_barrier
            """)
            for i in range(4): A(f"buffer_store_dwordx4 {v(SENT,4)}, {v(vL16)}, {WSR}, {s(sT1)} offen offset:{i*1024}")
            A(f"""
            buffer_store_dwordx4 {v(SENT,4)}, {v(vRedR)}, {WSR}, {s(sT0)} offen
            buffer_store_dword {v(SENT)}, {v(vMemW)}, {WSR}, {s(sT0)} offen offset:1024
            s_add_u32 {s(sT0)}, {s(sSeg)}, 1
            s_and_b32 {s(sT0)}, {s(sT0)}, 3
            s_mul_i32 {s(sT0)}, {s(sT0)}, {XP_SLOT*NP}
            s_add_u32 {s(sT0)}, {s(sT0)}, {s(sXPb)}
            s_add_u32 {s(sT2)}, {s(sT0)}, {s(sXPz)}
            """)
            for i in range(0 if X8 else 20 * NP // 8):
                A(f"buffer_store_dwordx4 {v(SENT,4)}, {v(vRedW)}, {WSR}, {s(sT0)} offen sc1\ns_add_u32 {s(sT0)}, {s(sT0)}, {8*8192}")
            if NP % 2 and not X8: A(f"buffer_store_dwordx4 {v(SENT,4)}, {v(vRedW)}, {WSR}, {s(sT2)} offen sc1")
            A(f"s_add_u32 {s(sT2)}, {s(sSeg)}, 1")
            if cls == 0:
                ensure_prog(s(sT2), hi=0)
                for x in prefetch(cls, isW): A(x)
            step_setup(isW)
            poll_fill()
            A("s_waitcnt vmcnt(0)")
            stamp(4)
            prof_dump()
            A(f"s_sleep {optv.get('nsl', 8)}\ns_branch {lp}")
            for f in cold: f()
            return
        gx, gm, gz, gv = A.label("gx"), A.label("gm"), A.label("gz"), A.label("gv")
        S0, S4_, S5_ = accq, acck, acck + 1
        def blocking(lb, pieces, also=(), pre=()):
            def f():
                A(f"{lb}_r:")
                masked_reload(lb, pieces, t2)
                for x in also: A(x[2])
                for x in pre: A(x)
                spin()
                A(f"s_waitcnt vmcnt(0)\ns_branch {lb}")
            cold.append(f)
        blocking(gx, LX, [LM]); blocking(gm, [LM]); blocking(gv, LV, LX if int(optv.get(f'gx{cls}', optv.get('gx', 6))) < 0 else [])
        def wm(b): return [f"v_smfmac_f32_16x16x64_bf16 {v(WMD+4*ct,4)}, {v(G_V+4*b,4)}, {r(WOf(ct,2*b),8)}, {v(vIdx)}" for ct in range(4)]
        def wcv(ct): return f"v_cvt_pk_bf16_f32 {v(WMP+2*ct)}, {v(WMD+4*ct)}, {v(WMD+4*ct+1)}\nv_cvt_pk_bf16_f32 {v(WMP+2*ct+1)}, {v(WMD+4*ct+2)}, {v(WMD+4*ct+3)}"
        gxp, gmp = int(optv.get(f"gx{cls}", optv.get("gx", 6))), int(optv.get(f"gm{cls}", optv.get("gm", 12)))
        assert gmp >= gxp
        def lx():
            for x in LX: VM.issue(x[2], "X")
        A(f"s_mov_b32 {s(sCnt)}, 0")
        if vp[0] == 31:
            nap(int(optv.get(f"gv{cls}", 0)))
            for x in LV: VM.issue(x[2], "V")
        if gxp < 0: nap(-gxp - 1); lx()
        else: nap(int(optv.get(f"gw{cls}", 0)))
        VM.wait("V")
        A(f"""
        {gv}:
        v_max3_u32 {v(t0)}, {v(G_V)}, {v(G_V+4)}, {v(G_V+8)}
        v_cmp_eq_u32 vcc, -1, {v(t0)}
        s_cbranch_vccnz {gv}_r
        """)
        stamp("d1")
        for i, x in enumerate(wm(0) + wm(1) + wm(2) + [None]):
            if gxp <= i < gxp + 3 and gxp <= 10 and gxp >= 0: A(LX[i - gxp][2])
            elif i == gxp: lx()
            if i == gmp: A(LM[2])
            if x: A(x)
        for ct in (0, 2, 1, 3): A(wcv(ct))
        if gxp > 12: nap(gxp - 13); lx()
        if gmp > 12: nap(gmp - max(gxp, 13)); A(LM[2])
        sum_x = f"""
        v_pk_add_f32 {v(S0,2)}, {v(G_SX,2)}, {v(G_SX+4,2)}
        v_pk_add_f32 {v(S0+2,2)}, {v(G_SX+2,2)}, {v(G_SX+6,2)}
        v_pk_add_f32 {v(S0,2)}, {v(S0,2)}, {v(G_SX+8,2)}
        v_pk_add_f32 {v(S0+2,2)}, {v(S0+2,2)}, {v(G_SX+10,2)}
        """
        A(f"""
        s_add_u32 {s(sSeg)}, {s(sSeg)}, 1
        s_add_u32 {s(sXPl)}, {s(sXPr)}, {s(sXh)}
        s_waitcnt vmcnt(1)
        """)
        stamp(4)
        A(f"{gx}:")
        A(sum_x)
        A(f"""
        v_cmp_u_f32 vcc, {v(S0)}, {v(S0)}
        v_pk_mul_f32 {v(S0,2)}, {v(S0,2)}, {s(sCL,2)}
        v_pk_mul_f32 {v(S0+2,2)}, {v(S0+2,2)}, {s(sCL,2)}
        v_exp_f32 {v(S0)}, {v(S0)}
        s_cbranch_vccnz {gx}_r
        """)
        ID, RO = "quad_perm:[0,1,2,3] row_mask:0xf", "row_ror:8 row_mask:0xf"
        ex = [f"v_exp_f32 {v(S0+i)}, {v(S0+i)}" for i in range(4)]
        pk = [f"v_cvt_pk_bf16_f32 {v(CX)}, {v(S0)}, {v(S0+1)}\nv_cvt_pk_bf16_f32 {v(CX+1)}, {v(S0+2)}, {v(S0+3)}"]
        for D_, m0_, m1_, bm in ((PXL, ID, RO, 3), (PXH, RO, ID, 12)):
            pk += [f"v_mov_b32_dpp {v(D_)}, {v(CX)} {m0_} bank_mask:{bm:#x}\nv_mov_b32_dpp {v(D_+1)}, {v(CX+1)} {m0_} bank_mask:{bm:#x}",
                   f"v_mov_b32_dpp {v(D_+2)}, {v(CX)} {m1_} bank_mask:{bm:#x}\nv_mov_b32_dpp {v(D_+3)}, {v(CX+1)} {m1_} bank_mask:{bm:#x}"]
        def pxu(ct):
            D_ = FD + 4 * (ct >> 1)
            return f"v_mfma_f32_16x16x32_bf16 {v(D_,4)}, {v(U+4*ct,4)}, {v(PXH if ct & 1 else PXL,4)}, {v(D_,4) if ct & 1 else 0}"
        def pmw(ct): return f"v_mfma_f32_16x16x16_bf16 {v(FD+4*(ct>>1),4)}, {v(WMP+2*ct,2)}, {v(PMH if ct & 1 else PML,2)}, {v(FD+4*(ct>>1),4)}"
        zx = f"v_mfma_f32_16x16x32_bf16 {v(ZD,4)}, {v(ONES,4)}, {v(PXL,4)}, 0"
        zm = f"v_mfma_f32_16x16x16_bf16 {v(ZD,4)}, {v(HALF,2)}, {v(PML,2)}, {v(ZD,4)}"
        pm1 = f"v_mov_b32_dpp {v(S5_)}, {v(S4_)} {RO} bank_mask:0xf\nv_cvt_pk_bf16_f32 {v(CY)}, {v(S4_)}, {v(S5_)}"
        pm2 = f"v_mov_b32_dpp {v(PML)}, {v(CY)} {ID} bank_mask:0x3\nv_mov_b32_dpp {v(PML+1)}, {v(CY)} {ID} bank_mask:0x3"
        pm3 = f"v_mov_b32_dpp {v(PMH)}, {v(CY)} {RO} bank_mask:0xc\nv_mov_b32_dpp {v(PMH+1)}, {v(CY)} {RO} bank_mask:0xc"
        if "mrg" in opt:
            A(f"""
            {ex[1]}
            {ex[2]}
            {ex[3]}
            s_waitcnt vmcnt(0)
            """)
            stamp(5)
            A(f"""
            {gm}:
            v_add_f32 {v(S4_)}, {v(G_SM)}, {v(G_SM+1)}
            {pk[0]}
            v_add_f32 {v(S4_)}, {v(S4_)}, {v(G_SM+2)}
            v_cmp_u_f32 vcc, {v(S4_)}, {v(S4_)}
            {pk[1]}
            v_mul_f32 {v(S4_)}, {s(sCL)}, {v(S4_)}
            {pk[2]}
            v_exp_f32 {v(S4_)}, {v(S4_)}
            s_cbranch_vccnz {gm}_r
            {zx}
            {pk[3]}
            {pk[4]}
            {pxu(0)}
            {pm1}
            {pxu(2)}
            """)
            if prof: A(f"s_mov_b32 {s(cnts[1])}, {s(sCnt)}")
            A(f"""
            {pm2}
            {pxu(1)}
            {pm3}
            {pxu(3)}
            """)
        else:
            for x in ex[1:] + pk[:3]: A(x)
            A(f"""
            {pk[3]}
            {zx}
            {pk[4]}
            {pxu(0)}
            {pxu(2)}
            {pxu(1) if "px4" in opt else ""}
            {pxu(3) if "px4" in opt else ""}
            s_waitcnt vmcnt(0)
            """)
            stamp(5)
            A(f"""
            {gm}:
            v_add_f32 {v(S4_)}, {v(G_SM)}, {v(G_SM+1)}
            v_add_f32 {v(S4_)}, {v(S4_)}, {v(G_SM+2)}
            v_cmp_u_f32 vcc, {v(S4_)}, {v(S4_)}
            v_mul_f32 {v(S4_)}, {s(sCL)}, {v(S4_)}
            v_exp_f32 {v(S4_)}, {v(S4_)}
            s_cbranch_vccnz {gm}_r
            """); stamp("e1")
            if prof: A(f"s_mov_b32 {s(cnts[1])}, {s(sCnt)}")
            A(f"""
            {pxu(1) if "px4" not in opt else ""}
            {pm1}
            {pxu(3) if "px4" not in opt else ""}
            {pm2}
            {pm3}
            """)
        A(f"""
        {zm}
        {pmw(0)}
        {pmw(2)}
        {pmw(1)}
        v_subrev_u32 {v(t0)}, {ZLO:#x}, {v(ZD)}
        v_rcp_f32 {v(QK)}, {v(ZD)}
        {pmw(3)}
        v_cmp_lt_u32 vcc, {ZHI - ZLO:#x}, {v(t0)}
        ds_write_b32 {v(vRzW)}, {v(QK)}
        s_and_b64 vcc, vcc, {s(sMlo,2)}
        s_cbranch_vccnz {gz}_r
        {gz}:
        s_cmp_eq_u32 {s(sSeg)}, {NSEG}
        s_cbranch_scc1 chain_last_{tag}
        """); stamp("e2")
        for cp in range(2): A(f"ds_write_b128 {v(vRedW)}, {v(FD+4*cp,4)} offset:{cp*1024}")
        def z_cold():
            A(f"{gz}_r:")
            A(sum_x)
            A(f"""
            v_add_f32 {v(S4_)}, {v(G_SM)}, {v(G_SM+1)}
            v_add_f32 {v(S4_)}, {v(S4_)}, {v(G_SM+2)}
            v_max3_f32 {v(t0)}, {v(S0)}, {v(S0+1)}, {v(S0+2)}
            v_max3_f32 {v(t0)}, {v(t0)}, {v(S0+3)}, {v(S4_)}
            v_max_f32_dpp {v(t0)}, {v(t0)}, {v(t0)} row_ror:8 row_mask:0xf bank_mask:0xf
            v_mov_b32 {v(t1)}, {v(t0)}
            v_permlane16_swap_b32 {v(t0)}, {v(t1)}
            v_max_f32 {v(t0)}, {v(t0)}, {v(t1)}
            v_mov_b32 {v(t1)}, {v(t0)}
            v_permlane32_swap_b32 {v(t0)}, {v(t1)}
            v_max_f32 {v(t0)}, {v(t0)}, {v(t1)}
            """)
            for x in (S0, S0 + 1, S0 + 2, S0 + 3, S4_):
                A(f"v_sub_f32 {v(x)}, {v(x)}, {v(t0)}\nv_mul_f32 {v(x)}, {s(sCL)}, {v(x)}\nv_exp_f32 {v(x)}, {v(x)}")
            for x in pk + [pm1, pm2, pm3, zx]: A(x)
            for ct in (0, 2, 1, 3): A(pxu(ct))
            A(zm)
            for ct in (0, 2, 1, 3): A(pmw(ct))
            A(f"v_rcp_f32 {v(QK)}, {v(ZD)}\nds_write_b32 {v(vRzW)}, {v(QK)}\ns_branch {gz}")
        cold.append(z_cold)
        RR, RZ = QF, WMP
        stamp("e3"); A("s_waitcnt lgkmcnt(0)"); stamp("e4"); A("s_barrier"); stamp("e5")
        if prof: A("s_waitcnt lgkmcnt(0)")
        A(f"""
        ds_read_b128 {v(RZ,4)}, {v(vRzR)}
        """)
        for w in range(4):
            A(f"ds_read_b64 {v(RR+2*w,2)}, {v(vRedR)} offset:{w*2048}")
        XD = MF + 32
        A(f"""
        s_waitcnt lgkmcnt(3)
        v_pk_mul_f32 {v(QK,2)}, {v(RR,2)}, {v(RZ,2)} op_sel_hi:[1,0]
        s_waitcnt lgkmcnt(2)
        v_pk_fma_f32 {v(QK,2)}, {v(RR+2,2)}, {v(RZ,2)}, {v(QK,2)} op_sel:[0,1,0]
        s_waitcnt lgkmcnt(1)
        v_pk_fma_f32 {v(QK,2)}, {v(RR+4,2)}, {v(RZ+2,2)}, {v(QK,2)} op_sel_hi:[1,0,1]
        s_waitcnt lgkmcnt(0)
        v_pk_fma_f32 {v(QK,2)}, {v(RR+6,2)}, {v(RZ+2,2)}, {v(QK,2)} op_sel:[0,1,0]
        v_cvt_pk_bf16_f32 {v(QK)}, {v(QK)}, {v(QK+1)}
        """)
        po = [sXPz_[0], sXPw_[0]] + [x for k in range(1, NP) for x in (sXPz_[k], sXPw_[k])]
        if "porev" in opt: po = po[2:] + po[:2]
        for x in po: A(f"buffer_store_dword {v(QK)}, {v(vXw)}, {WSR}, {s(x)} offen sc1")
        for k in range(1, NP): A(f"s_add_u32 {s(sXPl_[k])}, {s(sXPl)}, {k*16384}")
        for k in range(NP): A(f"s_xor_b32 {s(sXPo_[k])}, {s(sXPl_[k])}, 1024")
        XR = [MF, MF + 16, MF + 24]; XC = MF + 36
        if BYP:
            A(f"ds_bpermute_b32 {v(XC+2)}, {v(vPi)}, {v(QK)}")
            for k in range(NP):
                for i in range(4): A(f"v_mov_b32 {v(XR[k]+i)}, 0")
        stamp(6)
        def wm_pack():
            for ct in range(4):
                A(f"v_pk_add_f32 {v(WMD+4*ct,2)}, {v(WMD+4*ct,2)}, {v(WMD+4*ct+2,2)}")
                A(f"v_cvt_pk_bf16_f32 {v(ZD+ct)}, {v(WMD+4*ct)}, {v(WMD+4*ct+1)}")
        wm_pack()
        A(wm_st)
        t_reset(cls, True)
        for x in km_st(cls): A(x)
        A(f"s_add_u32 {s(sT2)}, {s(sSeg)}, 1\nv_mov_b32 {v(t3)}, {s(sSeg)}")
        ensure_prog(s(sT2))
        m0_, m1_ = (f"s_mov_b64 exec, {s(sXm,2)}\n", "\ns_mov_b64 exec, -1") if BYP else ("", "")
        XLs = [[(XR[k], 4, f"{m0_}buffer_load_dwordx4 {v(XR[k],4)}, {v(vL16)}, {WSR}, {s(sXPl_[k])} offen sc1{m1_}"),
                (XR[k] + 4, 4, f"buffer_load_dwordx4 {v(XR[k]+4,4)}, {v(vL16)}, {WSR}, {s(sXPo_[k])} offen sc1")] for k in range(NP)]
        late = "xearly" not in opt
        if late: step_setup(isW)
        nap(int(optv.get(f"xsl{cls}", optv.get("xsl", 0))))
        for x in XLs[0]: A(x[2])
        stamp(7)
        if not late: step_setup(isW)
        for k in range(1, NP):
            nap(int(optv.get("xsb" if k == 1 else "xsc", 0)))
            for x in XLs[k]: A(x[2])
        if BYP: A(f"s_waitcnt lgkmcnt(0)\nv_lshlrev_b32 {v(XC)}, 16, {v(XC+2)}\nv_and_b32 {v(XC+1)}, 0xffff0000, {v(XC+2)}")
        nap(int(optv.get("xpo", 0)))
        H = prefetch(cls, isW)
        for x in H: A(x)
        xp = A.label("xp")
        def xred(k): return f"""
        v_mfma_f32_16x16x32_bf16 {v(XD,4)}, {v(SELA,4)}, {v(XR[k],4)}, {v(XC,4) if BYP else 0}
        v_mfma_f32_16x16x32_bf16 {v(XD,4)}, {v(SELA,4)}, {v(XR[k]+4,4)}, {v(XD,4)}
        v_cmp_u_f32 vcc, {v(XD)}, {v(XD+1)}
        v_cvt_pk_bf16_f32 {v(t1)}, {v(XD)}, {v(XD+1)}
        """
        if NP == 1: blocking(xp, [(R, n, ld.replace(m0_, "")) for R, n, ld in XLs[0]])
        elif "xrot" in opt:
            assert not H
            def x_cold():
                A(f"{xp}_r:")
                for k in range(NP):
                    for x in XLs[k]: A(x[2])
                    spin()
                    A(f"s_waitcnt vmcnt({2 * (NP - 1)})\n{xred((k + 1) % NP)}\ns_cbranch_vccz {xp}_ok")
                A(f"s_branch {xp}_r")
            cold.append(x_cold)
        else:
            def x_cold():
                A(f"{xp}_r:")
                for k in range(1, NP):
                    A(f"s_add_u32 {s(sCnt)}, {s(sCnt)}, 1\ns_waitcnt vmcnt({len(H) + 2 * (NP - 1 - k)})\n{xred(k)}\ns_cbranch_vccz {xp}_ok")
                A(f"{xp}_l:")
                masked_reload(xp, [(R, n, ld.replace(m0_, "")) for R, n, ld in XLs[NP - 1]], t2)
                spin()
                A(f"s_waitcnt vmcnt(0)\n{xred(NP - 1)}\ns_cbranch_vccz {xp}_ok\ns_branch {xp}_l")
            cold.append(x_cold)
        A(f"""
        s_mov_b32 {s(sCnt)}, 0
        s_waitcnt vmcnt({len(H) + 2 * (NP - 1)})
        {xp}:
        {xred(0)}
        s_cbranch_vccnz {xp}_r
        {xp}_ok:
        buffer_store_dword {v(t1)}, {v(vMemW)}, {WSR}, {s(sMemCur)} offen
        """)
        stamp(8)
        flag(t3)
        prof_dump()
        A(f"s_branch {lp}")
        for f in cold: f()
        A(f"chain_last_{tag}:")
        wm_pack()
        A(f"{wm_st}\ns_waitcnt lgkmcnt(0)\ns_barrier")
        t_reset(cls, True)
        for x in km_st(cls): A(x)
        A(f"v_mov_b32 {v(t3)}, {s(sSeg)}\ns_waitcnt vmcnt(0)")
        flag(t3)
        A("s_branch chain_end")

    A(f"""
    s_cmp_lt_u32 {s(sC)}, 10
    s_cbranch_scc0 chain_nw
    s_cmp_lt_u32 {s(S_W)}, 2
    s_cbranch_scc1 chain_pro_c0w
    s_cmp_eq_u32 {s(S_W)}, 2
    s_cbranch_scc1 chain_pro_c1w
    s_branch chain_pro_c2w
    chain_nw:
    s_cmp_lt_u32 {s(S_W)}, 2
    s_cbranch_scc1 chain_pro_c0n
    s_cmp_eq_u32 {s(S_W)}, 2
    s_cbranch_scc1 chain_pro_c1n
    s_branch chain_pro_c2n
    """)
    for isW in (True, False):
        for cls in range(3):
            emit_loop(cls, isW)
    A("chain_end:")
    prof_out()
    ev(A, 4, t0)
    A(f"""
    s_endpgm
    chain_abort:
    v_mov_b32 {v(t0)}, 128
    v_mov_b32 {v(t1)}, 1
    s_mov_b64 exec, 1
    buffer_atomic_add {v(t1)}, {v(t0)}, {s(S_DBG,4)}, 0 offen
    s_endpgm
    """)
```

```python
from common import *

class Moe:
    def __init__(self, A, sa, vp, vt, SO, opt):
        self.A = A; self.opt = opt; self.SO = SO
        self.SG, self.SU, self.SD = sa(4, 4), sa(4, 4), sa(4, 4)
        self.sr = [sa() for _ in range(11)]
        self.K = [sa() for _ in range(8)]
        self.K2 = [sa() for _ in range(9)] if 'spec' in opt else None
        self.vp = [vp() for _ in range(5)]
        self.big = (vt(20, 4), vt(40, 4), vt(48, 4), vt(8, 4))
        self.vs = [vt() for _ in range(8)]
        self.sm = (vt(2, 2), vt(2, 2), vt(4, 4), vt(4, 4), vt(4, 4), vt(4))
    def emit(self, part):
        A = self.A; opt = self.opt; SO = self.SO; SG, SU, SD = self.SG, self.SU, self.SD; K = self.K
        optv = dict(o.split("=") for o in opt if "=" in o)
        sM, sCnt, sT0, sT1, sT2, sM0, sC, sKo, sN1, sN2, sCt = self.sr
        WG = 256
        def Gf(m, t, ks): return WG + ((m * 4 + t) * 5 + ks) * 4
        WD = 256 + 160
        def Df(ct, kk): return WD + (ct * 2 + kk) * 4
        XF, ACC, RD, BF = self.big
        vL16, vKa, vKey, vYs, vYr = self.vp
        vTok, vX, vRow, vSig, t0, t1, t2, t3 = self.vs
        X1, H2, GB, Y, E1, vRd = self.sm
        L = V_LANE; WSR = s(S_WS, 4)
        if part == "weights":
            srd(A, SG, "wg"); srd(A, SU, "wu"); srd(A, SD, "wd")
            A(f"""
            s_mul_i32 {s(sM)}, {s(S_X)}, 3
            s_add_u32 {s(sM)}, {s(sM)}, {s(S_T)}
            s_sub_u32 {s(sM)}, {s(sM)}, {29 if 'c5' in opt else 28}
            s_mul_i32 {s(sM0)}, {s(S_W)}, 40960
            """)
            vSrc, vSrd = XF, XF + 1
            panel_src_off(A, vSrc, t0, L, 0)
            panel_src_off(A, vSrd, t0, L, 1280)
            A(f"""
            v_bfe_u32 {v(t0)}, {v(L)}, 3, 2
            v_bfe_u32 {v(t1)}, {v(L)}, 5, 1
            v_lshl_add_u32 {v(t0)}, {v(t1)}, 3, {v(t0)}
            v_mul_u32_u24 {v(t0)}, 3072, {v(t0)}
            v_add_u32 {v(vSrc)}, {v(vSrc)}, {v(t0)}
            """)
            for t in range(4):
                panel_rd_addr(A, vRd + t, t0, t1, L, t)
                A(f"v_add_u32 {v(vRd+t)}, {s(sM0)}, {v(vRd+t)}")
            A(f"""
            s_mul_i32 {s(sT2)}, {s(S_W)}, {160*3072}
            s_lshl_b32 {s(sT0)}, {s(sM)}, 7
            s_add_u32 {s(sT2)}, {s(sT2)}, {s(sT0)}
            s_waitcnt lgkmcnt(0)
            s_barrier
            """)
            for m, SR in enumerate((SG, SU)):
                for n in range(20):
                    rows = 32 * (n >> 2) + 16 * (n & 1) + 4 * ((n >> 1) & 1)
                    A(f"""
                    s_add_u32 m0, {s(sM0)}, {(m*20+n)*1024}
                    s_add_u32 {s(sT0)}, {s(sT2)}, {rows*3072}
                    buffer_load_dwordx4 {v(vSrc)}, {s(SR,4)}, {s(sT0)} offen nt lds
                    """)
            for i in range(10):
                A(f"s_waitcnt vmcnt({36 - 4*i})")
                for t in range(4): panel_read_frag(A, Gf(i // 5, t, i % 5), vRd + t, i * 4096)
                if i % 2 == 1: A("s_waitcnt lgkmcnt(0)")
            A(f"""
            s_mul_i32 {s(sT2)}, {s(sM)}, {64*1280}
            s_mul_i32 {s(sT0)}, {s(S_W)}, 320
            s_add_u32 {s(sT2)}, {s(sT2)}, {s(sT0)}
            """)
            for p in range(3):
                for n in range(8):
                    A(f"""
                    s_add_u32 m0, {s(sM0)}, {(p*8+n)*1024}
                    s_add_u32 {s(sT0)}, {s(sT2)}, {p*128 + n*8*1280}
                    buffer_load_dwordx4 {v(vSrd)}, {s(SD,4)}, {s(sT0)} offen nt lds
                    """)
            A("s_waitcnt vmcnt(0)")
            for ct in range(10):
                for kk in range(2): panel_read_frag(A, Df(ct, kk), vRd + ct % 4, (ct // 4) * 8192 + kk * 4096)
                if ct % 3 == 2: A("s_waitcnt lgkmcnt(0)")
            A(f"""
            v_lshlrev_b32 {v(vL16)}, 4, {v(L)}
            v_lshrrev_b32 {v(t0)}, 2, {v(L)}
            v_and_b32 {v(t1)}, 3, {v(L)}
            v_lshlrev_b32 {v(t1)}, 2, {v(t1)}
            v_lshl_add_u32 {v(vKa)}, {v(t0)}, 7, {v(t1)}
            v_lshrrev_b32 {v(t0)}, 4, {v(L)}
            v_and_b32 {v(t1)}, 7, {v(L)}
            v_lshlrev_b32 {v(t1)}, 4, {v(t1)}
            v_lshl_add_u32 {v(vYs)}, {v(t0)}, 7, {v(t1)}
            v_lshrrev_b32 {v(t0)}, 5, {v(L)}
            v_mul_u32_u24 {v(t0)}, 20480, {v(t0)}
            v_and_b32 {v(t1)}, 31, {v(L)}
            v_lshl_add_u32 {v(vYr)}, {v(t1)}, 4, {v(t0)}
            s_mul_i32 {s(sCt)}, {s(S_W)}, 24
            s_add_u32 {s(sCt)}, {s(sCt)}, {s(sM)}
            s_mov_b32 {s(sC)}, 0
            s_mov_b32 {s(sKo)}, {OFF_R}
            s_waitcnt lgkmcnt(0)
            s_barrier
            """)
            for k in K: A(f"s_mov_b32 {s(k)}, 0")
            return
        if part[0] == "chunks":
            lim = part[1]; tg = A.label("mc")
            A(f"""
            {tg}_chunk:
            s_cmp_ge_i32 {s(sC)}, {lim}
            s_cbranch_scc1 {tg}_done
            s_mov_b32 {s(sCnt)}, 0
            {tg}_kp:
            buffer_load_dword {v(vKey)}, {v(vKa)}, {WSR}, {s(sKo)} offen sc1
            s_add_u32 {s(sCnt)}, {s(sCnt)}, 1
            s_cmp_gt_u32 {s(sCnt)}, {SPIN_LIMIT}
            s_cbranch_scc1 role_abort
            s_waitcnt vmcnt(0)
            v_cmp_eq_u32 vcc, -1, {v(vKey)}
            s_cbranch_vccz {tg}_ins
            s_sleep {optv.get("ksl", 4)}
            s_branch {tg}_kp
            {tg}_ins:
            v_cmp_lt_u32 vcc, {s(K[7])}, {v(vKey)}
            s_cbranch_vccz {tg}_nx
            s_ff1_i32_b64 {s(sT0)}, vcc
            v_readlane_b32 {s(sN1)}, {v(vKey)}, {s(sT0)}
            v_writelane_b32 {v(vKey)}, 0, {s(sT0)}
            """)
            n = [sN1, sN2]
            for j in range(8):
                A(f"s_min_u32 {s(n[1])}, {s(K[j])}, {s(n[0])}\ns_max_u32 {s(K[j])}, {s(K[j])}, {s(n[0])}")
                n = n[::-1]
            A(f"""
            s_branch {tg}_ins
            {tg}_nx:
            s_add_u32 {s(sKo)}, {s(sKo)}, 2048
            s_add_u32 {s(sC)}, {s(sC)}, 1
            s_branch {tg}_chunk
            {tg}_done:
            """)
            return
        SP = "spec" in opt
        if SP:
            sYo = self.K2[8]
            for j in range(8): A(f"s_mov_b32 {s(self.K2[j])}, {s(K[j])}")
            A(f"s_mov_b32 {s(sYo)}, {OFF_YP}\nmoe_pass:")
        YP = s(sYo) if SP else OFF_YP
        ev(A, 6, t0)
        for j in range(8):
            A(f"s_mov_b32 exec_lo, {0x01010101 << j:#x}\ns_mov_b32 exec_hi, {0x01010101 << j:#x}\nv_mov_b32 {v(vTok)}, {s(K[j])}")
        A(f"""
        s_mov_b64 exec, -1
        v_and_b32 {v(t0)}, 0x7ff, {v(vTok)}
        v_sub_u32 {v(t0)}, 2047, {v(t0)}
        v_mul_u32_u24 {v(vRow)}, 1280, {v(t0)}
        v_lshrrev_b32 {v(t1)}, 4, {v(L)}
        v_lshl_add_u32 {v(vX)}, {v(t1)}, 4, {v(vRow)}
        s_mul_i32 {s(sT0)}, {s(S_W)}, 320
        s_add_u32 {s(sT0)}, {s(sT0)}, {OFF_H2}
        """)
        for i in range(5):
            A(f"buffer_load_dwordx4 {v(XF+4*i,4)}, {v(vX)}, {WSR}, {s(sT0)} offen offset:{64*i} sc1")
        A(f"""
        v_bfe_u32 {v(t1)}, {v(L)}, 3, 2
        s_min_u32 {s(sT2)}, {s(sCt)}, 39
        s_lshl_b32 {s(sT1)}, {s(sT2)}, 5
        v_lshl_add_u32 {v(t2)}, {v(t1)}, 3, {s(sT1)}
        v_add_u32 {v(vRow)}, {v(vRow)}, {v(t2)}
        v_lshlrev_b32 {v(t2)}, 1, {v(t2)}
        s_mov_b32 {s(sT0)}, {OFF_X1}
        s_mov_b32 {s(sT1)}, {OFF_H2}
        s_mov_b32 {s(sN1)}, {OFF_MOD + 5*2560}
        buffer_load_dwordx2 {v(X1,2)}, {v(vRow)}, {WSR}, {s(sT0)} offen sc1
        buffer_load_dwordx2 {v(H2,2)}, {v(vRow)}, {WSR}, {s(sT1)} offen sc1
        buffer_load_dwordx4 {v(GB,4)}, {v(t2)}, {WSR}, {s(sN1)} offen sc1
        ; sigmoid(r)
        v_and_b32 {v(t0)}, 0xffff0000, {v(vTok)}
        v_ashrrev_i32 {v(t1)}, 31, {v(t0)}
        v_not_b32 {v(t1)}, {v(t1)}
        v_or_b32 {v(t1)}, 0x80000000, {v(t1)}
        v_and_b32 {v(t1)}, 0xffff0000, {v(t1)}
        v_xor_b32 {v(t0)}, {v(t0)}, {v(t1)}
        v_mul_f32 {v(t0)}, 0xbfb8aa3b, {v(t0)}
        v_exp_f32 {v(t0)}, {v(t0)}
        v_add_f32 {v(t0)}, 1.0, {v(t0)}
        v_rcp_f32 {v(t0)}, {v(t0)}
        v_cvt_pk_bf16_f32 {v(t0)}, {v(t0)}, {v(t0)}
        v_lshlrev_b32 {v(vSig)}, 16, {v(t0)}
        s_lshl_b32 {s(sT0)}, {s(S_W)}, 13
        v_add_u32 {v(t2)}, {s(sT0)}, {v(vL16)}
        s_lshl_b32 {s(sT0)}, {s(S_W)}, 10
        v_add_u32 {v(t3)}, {s(sT0)}, {v(vL16)}
        """)
        for ks in range(5):
            A(f"s_waitcnt vmcnt({7 - ks})")
            for mt in range(8):
                cc = "0" if ks == 0 else v(ACC + 4*mt, 4)
                A(f"v_mfma_f32_16x16x32_bf16 {v(ACC+4*mt,4)}, {r(Gf(mt // 4, mt % 4, ks),4)}, {v(XF+4*ks,4)}, {cc}")
        for mt in range(8):
            A(f"ds_write_b128 {v(t2)}, {v(ACC+4*mt,4)} offset:{mt*1024}")
        A("s_waitcnt lgkmcnt(0)\ns_barrier")
        for w in range(4):
            for m in range(2):
                A(f"ds_read_b128 {v(RD+(m*4+w)*4,4)}, {v(t3)} offset:{w*8192 + m*4096}")
        A("s_waitcnt lgkmcnt(0)")
        for m in range(2):
            b = RD + m * 16
            for h in (0, 2):
                A(f"v_pk_add_f32 {v(b+h,2)}, {v(b+h,2)}, {v(b+4+h,2)}\nv_pk_add_f32 {v(b+8+h,2)}, {v(b+8+h,2)}, {v(b+12+h,2)}")
            for h in (0, 2):
                A(f"v_pk_add_f32 {v(b+h,2)}, {v(b+h,2)}, {v(b+8+h,2)}"); round2(A, b + h, t0)
        G, Uu = RD, RD + 16
        for i in range(4): A(f"v_mul_f32 {v(E1+i)}, 0xbfb8aa3b, {v(G+i)}")
        for i in range(4): A(f"v_exp_f32 {v(E1+i)}, {v(E1+i)}")
        for i in range(4): A(f"v_add_f32 {v(E1+i)}, 1.0, {v(E1+i)}")
        for i in range(4): A(f"v_rcp_f32 {v(E1+i)}, {v(E1+i)}")
        for h in (0, 2):
            A(f"v_pk_mul_f32 {v(G+h,2)}, {v(G+h,2)}, {v(E1+h,2)}"); round2(A, G + h, t0)
            A(f"v_pk_mul_f32 {v(G+h,2)}, {v(G+h,2)}, {v(Uu+h,2)}")
            A(f"v_cvt_pk_bf16_f32 {v(E1+h//2)}, {v(G+h)}, {v(G+h+1)}")
        A(f"""
        s_lshr_b32 {s(sT0)}, {s(S_W)}, 1
        s_lshl_b32 {s(sT0)}, {s(sT0)}, 10
        s_and_b32 {s(sT1)}, {s(S_W)}, 1
        s_lshl_b32 {s(sT1)}, {s(sT1)}, 3
        s_add_u32 {s(sT0)}, {s(sT0)}, {s(sT1)}
        v_add_u32 {v(t2)}, {s(sT0)}, {v(vL16)}
        ds_write_b64 {v(t2)}, {v(E1,2)} offset:32768
        s_waitcnt lgkmcnt(0)
        s_barrier
        ds_read_b128 {v(BF,4)}, {v(vL16)} offset:32768
        ds_read_b128 {v(BF+4,4)}, {v(vL16)} offset:{32768+1024}
        s_mul_i32 {s(sT0)}, {s(sM)}, 20480
        s_mul_i32 {s(sT1)}, {s(S_W)}, 5120
        s_add_u32 {s(sT0)}, {s(sT0)}, {s(sT1)}
        s_add_u32 {s(sT0)}, {s(sT0)}, {YP}
        s_add_u32 {s(sT1)}, {s(sT0)}, 4096
        s_waitcnt lgkmcnt(0)
        """)
        for kk in range(2):
            for ct in range(10):
                cc = "0" if kk == 0 else v(ACC + 4*ct, 4)
                A(f"v_mfma_f32_16x16x32_bf16 {v(ACC+4*ct,4)}, {r(Df(ct,kk),4)}, {v(BF+4*kk,4)}, {cc}")
        A("s_mov_b32 exec_lo, 0x00ff00ff\ns_mov_b32 exec_hi, 0x00ff00ff")
        for ct in range(10):
            A(f"buffer_store_dwordx4 {v(ACC+4*ct,4)}, {v(vYs)}, {WSR}, {s(sT0 if ct < 8 else sT1)} offen offset:{(ct % 8)*512} sc1")
        ev(A, 7, t0)
        A(f"""
        s_mov_b64 exec, -1
        s_cmp_ge_u32 {s(sCt)}, 40
        s_cbranch_scc1 {'moe_mid' if SP else 'moe_end'}
        s_lshl_b32 {s(sT2)}, {s(sCt)}, 9
        s_add_u32 {s(sT2)}, {s(sT2)}, {YP}
        s_sleep {optv.get("ysl", 8)}
        s_mov_b32 {s(sCnt)}, 0
        moe_yp:
        s_mov_b32 {s(sT0)}, {s(sT2)}
        """)
        for i in range(12):
            A(f"buffer_load_dwordx4 {v(RD+4*i,4)}, {v(vYr)}, {WSR}, {s(sT0)} offen sc1\ns_add_u32 {s(sT0)}, {s(sT0)}, 40960")
        A(f"""
        s_add_u32 {s(sCnt)}, {s(sCnt)}, 1
        s_cmp_gt_u32 {s(sCnt)}, {SPIN_LIMIT}
        s_cbranch_scc1 role_abort
        s_waitcnt vmcnt(10)
        v_pk_add_f32 {v(Y,2)}, {v(RD,2)}, {v(RD+4,2)}
        v_pk_add_f32 {v(Y+2,2)}, {v(RD+2,2)}, {v(RD+6,2)}
        """)
        for i in range(2, 12):
            A(f"s_waitcnt vmcnt({11-i})\nv_pk_add_f32 {v(Y,2)}, {v(Y,2)}, {v(RD+4*i,2)}\nv_pk_add_f32 {v(Y+2,2)}, {v(Y+2,2)}, {v(RD+4*i+2,2)}")
        A(f"""
        v_add_f32 {v(t0)}, {v(Y)}, {v(Y+1)}
        v_add_f32 {v(t1)}, {v(Y+2)}, {v(Y+3)}
        v_cmp_u_f32 vcc, {v(t0)}, {v(t1)}
        s_cbranch_vccz moe_yok
        s_sleep 2
        s_branch moe_yp
        moe_yok:
        """)
        for i in range(4): A(f"v_mov_b32 {v(E1+i)}, {v(Y+i)}")
        for i in range(4): A(f"v_permlane32_swap_b32 {v(Y+i)}, {v(E1+i)}")
        XU, HU = RD, RD + 4
        for h in range(2):
            unpack(A, XU + 2*h, X1 + h); unpack(A, HU + 2*h, H2 + h)
        for h in (0, 2):
            A(f"v_pk_add_f32 {v(Y+h,2)}, {v(Y+h,2)}, {v(E1+h,2)}"); round2(A, Y + h, t0)
            A(f"v_mul_f32 {v(Y+h)}, {v(Y+h)}, {v(vSig)}\nv_mul_f32 {v(Y+h+1)}, {v(Y+h+1)}, {v(vSig)}"); round2(A, Y + h, t0)
            A(f"v_pk_add_f32 {v(Y+h,2)}, {v(Y+h,2)}, {v(HU+h,2)}"); round2(A, Y + h, t0)
            A(f"v_pk_mul_f32 {v(Y+h,2)}, {v(Y+h,2)}, {v(GB+h,2)}"); round2(A, Y + h, t0)
            A(f"v_pk_add_f32 {v(Y+h,2)}, {v(Y+h,2)}, {v(XU+h,2)}")
            A(f"v_cvt_pk_bf16_f32 {v(E1+h//2)}, {v(Y+h)}, {v(Y+h+1)}")
        if SP:
            A(f"moe_mid:\ns_cmp_lg_u32 {s(sYo)}, {OFF_YP}\ns_cbranch_scc1 moe_fin")
            ev(A, 9, t0)
            self.emit(("chunks", 32))
            A(f"s_add_u32 {s(sYo)}, {s(sYo)}, {24 * 20480}")
            for j in range(8): A(f"s_cmp_lg_u32 {s(self.K2[j])}, {s(K[j])}\ns_cbranch_scc1 moe_pass")
            A(f"moe_fin:\ns_cmp_ge_u32 {s(sCt)}, 40\ns_cbranch_scc1 moe_end")
        A(f"""
        s_mov_b32 exec_hi, 0
        buffer_store_dwordx2 {v(E1,2)}, {v(vRow)}, {s(SO,4)}, 0 offen sc1
        """)
        ev(A, 8, t0)
        A("moe_end:\ns_endpgm")
```

```python
from common import *
from k_boot import *

def gen_p(A, opt=()):
    optv = dict(o.split('=') for o in opt if '=' in o)
    TNT = 'nt' if 'tnt' in opt else ''
    T0_ = '; ' if 't0' not in opt else ''
    sa = Alloc(20, 100)
    SWt = sa(4, 4)
    sPw, sMat, sLH, sRg, sSeg, sCnt, sT0, sT1, sT2, sM0, sHo, sOut, sNeed, sBuf, sOb = [sa() for _ in range(15)]
    va = Alloc(2, 192)
    W = 192
    def Wf(t, ks): return W + (t * 20 + ks) * 4
    ACC = [va(16, 4), va(16, 4)]
    NB = 4
    B = [va(4, 4) for _ in range(NB)]
    ST = va(40, 4)
    PK = va(8, 4)
    vL16, vNd, vInc, vLr, vFl, vHp, vPg, t0, t1, t2, vTc, vTd = [va() for _ in range(12)]
    sTc = sa()
    vRd = va(4)
    L = V_LANE; WSR = s(S_WS, 4)
    A(f"""
    s_sub_u32 {s(sPw)}, {s(S_T)}, 12
    s_lshl_b32 {s(sPw)}, {s(sPw)}, 2
    s_add_u32 {s(sPw)}, {s(sPw)}, {s(S_W)}
    s_mul_i32 {s(sMat)}, {s(sPw)}, 43
    s_lshr_b32 {s(sMat)}, {s(sMat)}, 9
    s_mul_i32 {s(sT0)}, {s(sMat)}, 12
    s_sub_u32 {s(sT0)}, {s(sPw)}, {s(sT0)}
    s_mul_i32 {s(sLH)}, {s(sT0)}, 43
    s_lshr_b32 {s(sLH)}, {s(sLH)}, 7
    s_mul_i32 {s(sT1)}, {s(sLH)}, 3
    s_sub_u32 {s(sRg)}, {s(sT0)}, {s(sT1)}
    s_load_dwordx2 {s(SWt,2)}, s[0:1], {KA['wq']}
    s_load_dwordx2 s[4:5], s[0:1], {KA['wk']}
    s_load_dwordx2 s[6:7], s[0:1], {KA['wv']}
    s_mov_b32 {s(SWt+2)}, {SZ['wq']}
    s_mov_b32 {s(SWt+3)}, 0x00020000
    s_waitcnt lgkmcnt(0)
    s_cmp_eq_u32 {s(sMat)}, 1
    s_cselect_b64 {s(SWt,2)}, s[4:5], {s(SWt,2)}
    s_cmp_eq_u32 {s(sMat)}, 2
    s_cselect_b64 {s(SWt,2)}, s[6:7], {s(SWt,2)}
    """)
    vSrc = ST
    panel_src_off(A, vSrc, t0, L, 0)
    A(f"""
    v_bfe_u32 {v(t0)}, {v(L)}, 3, 2
    v_bfe_u32 {v(t1)}, {v(L)}, 5, 1
    v_lshl_add_u32 {v(t0)}, {v(t1)}, 3, {v(t0)}
    v_mul_u32_u24 {v(t0)}, 12288, {v(t0)}
    v_add_u32 {v(vSrc)}, {v(vSrc)}, {v(t0)}
    s_mul_i32 {s(sM0)}, {s(S_W)}, 40960
    """)
    for t in range(4):
        panel_rd_addr(A, vRd + t, t0, t1, L, t)
        A(f"v_add_u32 {v(vRd+t)}, {s(sM0)}, {v(vRd+t)}")
    A(f"""
    s_lshl_b32 {s(sT0)}, {s(S_X)}, 2
    s_add_u32 {s(sT0)}, {s(sT0)}, {s(sLH)}
    s_mul_i32 {s(sT2)}, {s(sT0)}, 384
    s_lshl_b32 {s(sT1)}, {s(sRg)}, 7
    s_add_u32 {s(sT2)}, {s(sT2)}, {s(sT1)}
    s_lshl_b32 {s(sOb)}, {s(S_X)}, 22
    s_mul_i32 {s(sT0)}, {s(sLH)}, 12288
    s_add_u32 {s(sOb)}, {s(sOb)}, {s(sT0)}
    s_mul_i32 {s(sT0)}, {s(sMat)}, {QKV_MAT}
    s_add_u32 {s(sOb)}, {s(sOb)}, {s(sT0)}
    s_lshl_b32 {s(sT1)}, {s(sRg)}, 11
    s_add_u32 {s(sOb)}, {s(sOb)}, {s(sT1)}
    s_add_u32 {s(sOb)}, {s(sOb)}, {OFF_RING}
    s_mov_b32 {s(sOut)}, {s(sOb)}
    s_mov_b32 {s(sTc)}, 6144
    """)
    A(f"s_cmp_lg_u32 {s(sPw)}, {99 if 'wonly' in opt else 8}\ns_cbranch_scc1 p_nc")
    calib(A, 88, PK, opt)
    A(f"s_branch p_go\np_nc:\ns_cmp_lg_u32 {s(sMat)}, 0\ns_cbranch_scc1 p_go")
    for _ in range(int(optv.get("qw", 0))): A("s_sleep 100")
    A(f"""
    p_go:
    v_and_b32 {v(vTc)}, 15, {v(L)}
    v_lshlrev_b32 {v(vTc)}, 7, {v(vTc)}
    v_bfe_u32 {v(t0)}, {v(L)}, 4, 1
    v_mad_u32_u24 {v(vTc)}, {v(t0)}, {s(sTc)}, {v(vTc)}
    v_lshrrev_b32 {v(t0)}, 5, {v(L)}
    v_mul_u32_u24 {v(t0)}, {QS}, {v(t0)}
    v_add_u32 {v(t2)}, {v(t0)}, {v(vTc)}
    s_add_u32 {s(sTc)}, {s(sOb)}, {2*QS}
    """)
    VW = Cnt(A, "vmcnt", 63)
    def wdma(ks):
        for i in range(4):
            rows = 32 * ks + 16 * (i & 1) + 4 * ((i >> 1) & 1)
            A(f"""
            s_add_u32 m0, {s(sM0)}, {(ks % 10)*4096 + i*1024}
            s_add_u32 {s(sT0)}, {s(sT2)}, {rows*12288}
            buffer_load_dwordx4 {v(vSrc)}, {s(SWt,4)}, {s(sT0)} offen nt lds
            """)
            VW.note(ks)
        if ks == int(optv.get("ptk0", 16)) and not T0_: VW.issue(f"buffer_load_dword {v(vTd)}, {v(t2)}, {WSR}, {s(sOb)} offen sc1 {TNT}")
        if ks == int(optv.get("ptk", 19)) and not T0_: VW.issue(f"buffer_load_dword {v(vTd)}, {v(t2)}, {WSR}, {s(sTc)} offen sc1 {TNT}")
    PD = int(optv.get("pdep", 6))
    assert PD <= 8
    for ks in range(PD): wdma(ks)
    for ks in range(20):
        VW.wait(ks)
        if ks + PD < 20: wdma(ks + PD)
        for t in range(4):
            panel_read_frag(A, Wf(t, ks), vRd + t, (ks % 10) * 4096)
        A("s_waitcnt lgkmcnt(8)")
    A("s_waitcnt lgkmcnt(0)")
    ev(A, 1, t0)
    if "wonly" in opt: A("s_endpgm")
    A(f"""
    v_lshlrev_b32 {v(vL16)}, 4, {v(L)}
    s_mul_i32 {s(sBuf)}, {s(S_W)}, 10240
    v_mov_b32 {v(vLr)}, {v(vL16)}
    s_mul_i32 {s(sHo)}, {s(S_X)}, {H_X}
    s_add_u32 {s(sHo)}, {s(sHo)}, {OFF_H}
    s_add_u32 {s(sHo)}, {s(sHo)}, {s(sBuf)}
    s_lshl_b32 {s(sT0)}, {s(S_X)}, 8
    v_lshl_add_u32 {v(vHp)}, {v(L)}, 2, {s(sT0)}
    v_add_u32 {v(vHp)}, {HPROG}, {v(vHp)}
    v_add_u32 {v(t0)}, {SPROG - HPROG - 64}, {v(vHp)}
    v_cmp_gt_u32 vcc, 16, {v(L)}
    v_cndmask_b32 {v(vHp)}, {v(t0)}, {v(vHp)}, vcc
    v_cndmask_b32 {v(vInc)}, 1, 2, vcc
    v_cndmask_b32 {v(vNd)}, -8, 2, vcc
    s_lshl_b32 {s(sT1)}, {s(sPw)}, 2
    s_add_u32 {s(sT0)}, {s(sT0)}, {s(sT1)}
    s_add_u32 {s(sT0)}, {s(sT0)}, {PPROG}
    v_mov_b32 {v(vFl)}, {s(sT0)}
    s_mov_b32 {s(sSeg)}, 0
    s_mov_b32 {s(sNeed)}, 2
    v_mov_b32 {v(t2)}, 0
    s_barrier
    """)
    def h_loads():
        H = []
        for i in range(10):
            pre = f"s_add_u32 m0, {s(sBuf)}, {i*1024}\ns_add_u32 {s(sT0)}, {s(sHo)}, {i*1024}\n" if i % 4 == 0 else ""
            H.append(pre + f"buffer_load_dwordx4 {v(vL16)}, {WSR}, {s(sT0)} offen offset:{(i % 4)*1024} sc1 lds")
        return H
    g0_wait(A, t0, sCnt)
    ev(A, 5, t0)
    poll_ge(A, vPg, vHp, s(sNeed), 0xffff, sCnt, "role_abort")
    ev(A, 6, t0)
    for x in h_loads(): A(x)
    A(f"""
    s_xor_b32 {s(sBuf)}, {s(sBuf)}, 0x10000
    s_waitcnt vmcnt(0)
    s_barrier
    """)
    ev(A, 2, t0)
    PR = Prof(A, 'prof' in opt and 'cprof' not in opt, sa, 3)
    A("p_loop:")
    PR.stamp(0)
    A("s_waitcnt lgkmcnt(0)")
    def epilogue(acc, sout):
        E = []
        for kk in range(2):
            for j in range(2):
                a0 = acc + (2*kk + j) * 4
                E.append(f"v_cvt_pk_bf16_f32 {v(PK+4*kk+2*j)}, {v(a0)}, {v(a0+1)}")
                E.append(f"v_cvt_pk_bf16_f32 {v(PK+4*kk+2*j+1)}, {v(a0+2)}, {v(a0+3)}")
            E.append(f"buffer_store_dwordx4 {v(PK+4*kk,4)}, {v(vL16)}, {WSR}, {s(sout)} offen offset:{kk*1024}")
        return E
    LG = Cnt(A, "lgkmcnt", 15)
    def rd(f): LG.issue(f"ds_read_b128 {v(B[f % NB],4)}, {v(vLr)} offset:{f*1024}", f)
    A(f"""
    v_add_u32 {v(vNd)}, {v(vNd)}, {v(vInc)}
    v_min_i32 {v(vNd)}, 128, {v(vNd)}
    """)
    for f in range(NB - 1): rd(f)
    poll_ge(A, vPg, vHp, v(vNd), 0xffffff, sCnt, "role_abort", first=False, ty="i32", slp=int(optv.get("psl", 8)))
    A(f"""
    s_cmp_lt_u32 {s(sSeg)}, 63
    s_cselect_b32 {s(sT0)}, {32*1280}, 0
    s_add_u32 {s(sHo)}, {s(sHo)}, {s(sT0)}
    s_add_u32 {s(sT2)}, {s(sOut)}, 6144
    s_and_b32 {s(sT0)}, {s(sSeg)}, 7
    s_mul_i32 {s(sT0)}, {s(sT0)}, {QS}
    s_add_u32 {s(sOut)}, {s(sOb)}, {s(sT0)}
    v_max_u32 {v(t2)}, {s(sSeg)}, {v(t2)}
    s_add_u32 {s(sTc)}, {s(sSeg)}, {optv.get('pts', 2)}
    s_and_b32 {s(sTc)}, {s(sTc)}, 7
    s_mul_i32 {s(sTc)}, {s(sTc)}, {QS}
    s_add_u32 {s(sTc)}, {s(sTc)}, {s(sOb)}
    """)
    side0 = epilogue(ACC[1], sT2) + [y for x in h_loads() for y in (x, None)] + ["s_waitcnt vmcnt(10)", f"buffer_store_dword {v(t2)}, {v(vFl)}, {WSR}, 0 offen",
             f"buffer_load_dword {v(vPg)}, {v(vHp)}, {WSR}, 0 offen sc1"]
    if "notouch" not in opt: side0 += [f"buffer_load_dword {v(vTd)}, {v(vTc)}, {WSR}, {s(sTc)} offen sc1"]
    side1 = epilogue(ACC[0], sOut)
    for tt in range(2):
        side = side0 if tt == 0 else side1
        for ks in range(20):
            f = tt * 20 + ks
            LG.wait(f)
            for t in range(4):
                c = "0" if ks == 0 else v(ACC[tt] + 4*t, 4)
                A(f"v_mfma_f32_16x16x32_bf16 {v(ACC[tt]+4*t,4)}, {r(Wf(t,ks),4)}, {v(B[f % NB],4)}, {c}")
                if t == 0 and f + NB - 1 < 40: rd(f + NB - 1)
                elif t in (1, 2) and ks >= 1 and side:
                    x = side.pop(0)
                    if x and x.startswith("ds_"): LG.issue(x)
                    elif x: A(x)
        assert not side, len(side)
    PR.stamp(1); PR.stamp(2, True); PR.dump(t0, t1)
    A(f"""
    s_xor_b32 {s(sBuf)}, {s(sBuf)}, 0x10000
    v_xor_b32 {v(vLr)}, 0x10000, {v(vLr)}
    s_add_u32 {s(sSeg)}, {s(sSeg)}, 1
    s_sub_u32 {s(sT0)}, {s(sSeg)}, {int(optv.get("pfast", 2)) + 1}
    s_cmp_lt_u32 {s(sT0)}, {63 - int(optv.get("pfast", 2))}
    s_cbranch_scc0 p_now
    s_waitcnt vmcnt({3 if PR.on else 2}) lgkmcnt(0)
    s_barrier
    s_branch p_loop
    p_now:
    s_add_u32 {s(sT2)}, {s(sOut)}, 6144
    """)
    for x in epilogue(ACC[1], sT2): A(x)
    A(f"""
    v_mov_b32 {v(t2)}, {s(sSeg)}
    s_waitcnt vmcnt(0)
    buffer_store_dword {v(t2)}, {v(vFl)}, {WSR}, 0 offen
    s_cmp_lt_u32 {s(sSeg)}, 64
    s_barrier
    s_cbranch_scc1 p_loop
    """)
    ev(A, 4, t0)
    if "p" in optv.get("wb", ""):
        A(f"s_cmp_lg_u32 {s(sPw)}, 0\ns_cbranch_scc1 p_end2\nbuffer_wbl2 sc1\ns_waitcnt vmcnt(0)\np_end2:")
        ev(A, 9, t0)
    A("s_endpgm")
```

```python
from common import *
from k_boot import *
from k_moe import Moe

def gen_r(A, opt=()):
    sa = Alloc(20, 100)
    SX, SO, SWR = sa(4, 4), sa(4, 4), sa(4, 4)
    sWv, sN, sCnt, sT0, sT1, sXo, sHo, sNeed, sRow, sGate = [sa() for _ in range(10)]
    SC, SWM = sa(4, 4), sa(4, 4)
    sB, sLim = sa(), sa()
    optv = dict(o.split('=') for o in opt if '=' in o)
    vp = Alloc(176, 256)
    PC, PS, PGA, PGB, PWR = [vp(10, 2) for _ in range(5)]
    vL4, vL8, vFl, vAp, ELO, EHI, vAl = [vp() for _ in range(7)]
    va = Alloc(2, 176)
    X = va(10, 2); D = va(10, 2)
    XN = va(5); O = va(5); O2 = va(5); O3 = va(5)
    PA = va(40)
    T, M = va(2, 2), va(2, 2)
    t0, t1, t2, vPg = [va() for _ in range(4)]
    PG4 = va(4, 4)
    moe = Moe(A, sa, vp, Alloc(2, 176), SO, opt)
    L = V_LANE; WSR = s(S_WS, 4)
    srd(A, SX, "x"); srd(A, SO, "out"); srd(A, SWR, "wr"); srd(A, SC, "c"); srd(A, SWM, "wmod")
    A(f"""
    s_sub_u32 {s(sWv)}, {s(S_T)}, 28
    s_sub_u32 {s(sB)}, 3, {s(sWv)}
    s_lshl_b32 {s(sB)}, {s(sB)}, 3
    s_add_u32 {s(sB)}, {s(sB)}, {s(S_X)}
    s_lshl_b32 {s(sWv)}, {s(sWv)}, 2
    s_add_u32 {s(sWv)}, {s(sWv)}, {s(S_W)}
    s_mul_i32 {s(sHo)}, {s(S_X)}, {H_X}
    s_lshl_b32 {s(sT0)}, {s(sWv)}, 13
    s_add_u32 {s(sT0)}, {s(sT0)}, {s(sHo)}
    s_add_u32 {s(sT0)}, {s(sT0)}, {OFF_H}
    v_lshlrev_b32 v2, 7, {v(L)}
    buffer_load_dword v3, v2, {WSR}, {s(sT0)} offen sc1
    s_waitcnt lgkmcnt(0)
    """)
    NG, RD = int(optv.get("npre", 2)), 3
    X4, P4, OUT = X, PC, PGA
    assert PA - X >= 40 and PS == PC + 10 and PGB == PGA + 10
    NB = va(20 * NG, 2)
    RW = [PA, PA + 20, va(20, 2)]
    vXa, vHa, vMa, vOne = [va() for _ in range(4)]
    T2 = va(8, 2)
    def nxt(R):
        for k in range(5): A(f"buffer_load_dwordx4 {v(R+4*k,4)}, {v(vXa)}, {s(SX,4)}, {s(sXo)} offen offset:{256*k}")
        A(f"s_add_u32 {s(sXo)}, {s(sXo)}, {64*1280}\ns_min_u32 {s(sXo)}, {s(sXo)}, {2044*1280}")
    A(f"""
    v_lshlrev_b32 {v(vL4)}, 2, {v(L)}
    s_mul_i32 {s(sXo)}, {s(sWv)}, {4*1280}
    v_and_b32 {v(t0)}, 3, {v(L)}
    v_lshrrev_b32 {v(t1)}, 2, {v(L)}
    v_mul_u32_u24 {v(vXa)}, 1280, {v(t0)}
    v_lshl_add_u32 {v(vXa)}, {v(t1)}, 4, {v(vXa)}
    """)
    for g in range(NG): nxt(NB + 20*g)
    A(f"""
    s_add_u32 {s(sT0)}, {s(sT0)}, {16*8192}
    buffer_load_dword a101, v2, {WSR}, {s(sT0)} offen sc1
    v_lshlrev_b32 {v(vHa)}, 4, {v(t0)}
    v_lshl_add_u32 {v(vHa)}, {v(t1)}, 8, {v(vHa)}
    v_lshrrev_b32 {v(t2)}, 1, {v(t0)}
    v_mul_u32_u24 {v(vMa)}, {2560 - 32}, {v(t2)}
    v_lshl_add_u32 {v(vMa)}, {v(t0)}, 4, {v(vMa)}
    v_lshl_add_u32 {v(vMa)}, {v(t1)}, 5, {v(vMa)}
    v_cvt_f32_u32 {v(vOne)}, {v(t2)}
    """)
    A(f"""
    s_lshl_b32 {s(sT0)}, {s(S_X)}, 22
    s_lshl_b32 {s(sT1)}, {s(sWv)}, 13
    s_add_u32 {s(sT0)}, {s(sT0)}, {s(sT1)}
    s_add_u32 {s(sT0)}, {s(sT0)}, {OFF_RING + R_U}
    s_mov_b32 {s(sT1)}, {16*8192}
    s_mov_b32 {s(sLim)}, {S4}
    s_cmp_lt_u32 {s(sWv)}, 4
    s_cselect_b32 {s(sT1)}, {s(sT1)}, {(QKV_MAT - 4*8192 - R_U) & 0xffffffff}
    s_cselect_b32 {s(sLim)}, {s(sLim)}, {QS}
    s_add_u32 {s(sT1)}, {s(sT1)}, {s(sT0)}
    """)
    NT_ = int(optv.get("rts", 1))
    for i in range(NT_):
        A(f"""
        buffer_load_dword a100, v2, {WSR}, {s(sT1)} offen sc1
        buffer_load_dword a100, v2, {WSR}, {s(sT0)} offen sc1
        s_add_u32 {s(sT0)}, {s(sT0)}, {S4}
        s_add_u32 {s(sT1)}, {s(sT1)}, {s(sLim)}
        """)
    A(f"""
    v_lshlrev_b32 {v(vL8)}, 3, {v(L)}
    s_lshl_b32 {s(sT0)}, {s(S_X)}, 8
    s_lshl_b32 {s(sT1)}, {s(sWv)}, 2
    s_add_u32 {s(sT0)}, {s(sT0)}, {s(sT1)}
    s_add_u32 {s(sT0)}, {s(sT0)}, {HPROG}
    v_mov_b32 {v(vFl)}, {s(sT0)}
    v_mov_b32 {v(ELO)}, 0x00003f80
    v_mov_b32 {v(EHI)}, 0x3f800000
    s_mul_i32 {s(sHo)}, {s(S_X)}, {H_X}
    s_add_u32 {s(sHo)}, {s(sHo)}, {OFF_H}
    s_lshr_b32 {s(sT0)}, {s(sWv)}, 2
    s_mul_i32 {s(sT0)}, {s(sT0)}, {16*1280}
    s_add_u32 {s(sHo)}, {s(sHo)}, {s(sT0)}
    s_lshl_b32 {s(sT0)}, {s(S_W)}, 6
    s_add_u32 {s(sHo)}, {s(sHo)}, {s(sT0)}
    s_waitcnt lgkmcnt(0)
    """)
    def ld_mod(P, k):
        A(f"s_mov_b32 {s(sT0)}, {OFF_MOD + k*2560}")
        for i in range(5):
            A(f"buffer_load_dwordx2 {v(P+2*i,2)}, {v(vL8)}, {WSR}, {s(sT0)} offen offset:{512*i} sc1")
    def one_plus(P):
        for i in range(5):
            A(f"v_add_f32 {v(P+2*i)}, 1.0, {v(P+2*i)}\nv_add_f32 {v(P+2*i+1)}, 1.0, {v(P+2*i+1)}")
            round2(A, P + 2*i, t0)
    def ld_row(R, srdr, so, mods=""):
        for i in range(5):
            A(f"buffer_load_dword {v(R+i)}, {v(vL4)}, {srdr}, {so} offen offset:{256*i} {mods}")
    def st_row(R, srdr, so, mods=""):
        for i in range(5):
            A(f"buffer_store_dword {v(R+i)}, {v(vL4)}, {srdr}, {so} offen offset:{256*i} {mods}")
    def ln(OUT):
        norm(None); affine(OUT)
    def norm(N):
        A(f"v_pk_add_f32 {v(T,2)}, {v(X,2)}, {v(X+2,2)}\nv_pk_add_f32 {v(M,2)}, {v(X+4,2)}, {v(X+6,2)}")
        A(f"v_pk_add_f32 {v(T,2)}, {v(T,2)}, {v(X+8,2)}\nv_pk_add_f32 {v(T,2)}, {v(T,2)}, {v(M,2)}\nv_add_f32 {v(T)}, {v(T)}, {v(T+1)}")
        wave_sum(A, [T], [t0])
        A(f"v_mul_f32 {v(M)}, {f32bits(-1/640)}, {v(T)}\nv_mul_f32 {v(M+1)}, {f32bits(-1/640)}, {v(T)}")
        for i in range(5): A(f"v_pk_add_f32 {v(D+2*i,2)}, {v(X+2*i,2)}, {v(M,2)}")
        A(f"v_pk_mul_f32 {v(T,2)}, {v(D,2)}, {v(D,2)}")
        for i in range(1, 5): A(f"v_pk_fma_f32 {v(T,2)}, {v(D+2*i,2)}, {v(D+2*i,2)}, {v(T,2)}")
        A(f"v_add_f32 {v(T)}, {v(T)}, {v(T+1)}")
        round2(A, M, t1)
        wave_sum(A, [T], [t0])
        for i in range(5): A(f"v_pk_add_f32 {v(D+2*i,2)}, {v(X+2*i,2)}, {v(M,2)}")
        A(f"""
        v_mul_f32 {v(T)}, {f32bits(1/640)}, {v(T)}
        v_cvt_pk_bf16_f32 {v(T)}, {v(T)}, {v(T)}
        v_lshlrev_b32 {v(T)}, 16, {v(T)}
        v_add_f32 {v(T)}, {f32bits(1e-5)}, {v(T)}
        v_cvt_pk_bf16_f32 {v(T)}, {v(T)}, {v(T)}
        v_lshlrev_b32 {v(T)}, 16, {v(T)}
        v_sqrt_f32 {v(T)}, {v(T)}
        """)
        round2(A, D, t0)
        A(f"v_cvt_pk_bf16_f32 {v(T)}, {v(T)}, {v(T)}\nv_lshlrev_b32 {v(T)}, 16, {v(T)}\nv_rcp_f32 {v(T)}, {v(T)}")
        for i in range(1, 5): round2(A, D + 2*i, t0)
        A(f"v_mov_b32 {v(T+1)}, {v(T)}")
        for i in range(5):
            A(f"v_pk_mul_f32 {v(D+2*i,2)}, {v(D+2*i,2)}, {v(T,2)}")
            if N is None: round2(A, D + 2*i, t0)
            else: A(f"v_cvt_pk_bf16_f32 {v(N+i)}, {v(D+2*i)}, {v(D+2*i+1)}")
    def affine(OUT):
        for i in range(5):
            A(f"v_pk_mul_f32 {v(D+2*i,2)}, {v(D+2*i,2)}, {v(PC+2*i,2)}"); round2(A, D + 2*i, t0)
        for i in range(5):
            A(f"v_pk_add_f32 {v(D+2*i,2)}, {v(D+2*i,2)}, {v(PS+2*i,2)}")
            A(f"v_cvt_pk_bf16_f32 {v(OUT+i)}, {v(D+2*i)}, {v(D+2*i+1)}")

    def sum4(x):
        for r_ in (8, 4): A(f"v_add_f32_dpp {v(x)}, {v(x)}, {v(x)} row_ror:{r_} row_mask:0xf bank_mask:0xf")
        for sw in (16, 32): A(f"v_mov_b32 {v(t0)}, {v(x)}\nv_permlane{sw}_swap_b32 {v(x)}, {v(t0)}\nv_add_f32 {v(x)}, {v(x)}, {v(t0)}")
    def rnd4(i): round2(A, X4 + 2*i, T2 + (i & 3))
    def norm4(R, N=None, mid=None):
        for i in range(20): unpack(A, X4 + 2*i, R + i)
        A(f"v_pk_add_f32 {v(T,2)}, {v(X4,2)}, {v(X4+2,2)}\nv_pk_add_f32 {v(M,2)}, {v(X4+4,2)}, {v(X4+6,2)}")
        for i in range(4, 20): A(f"v_pk_add_f32 {v((T, M)[i & 1],2)}, {v((T, M)[i & 1],2)}, {v(X4+2*i,2)}")
        A(f"v_pk_add_f32 {v(T,2)}, {v(T,2)}, {v(M,2)}\nv_add_f32 {v(T)}, {v(T)}, {v(T+1)}")
        sum4(T)
        A(f"v_mul_f32 {v(M)}, {f32bits(-1/640)}, {v(T)}\nv_mul_f32 {v(M+1)}, {f32bits(-1/640)}, {v(T)}")
        for i in range(21):
            if i < 20: A(f"v_pk_add_f32 {v(T2+2*(i%3),2)}, {v(X4+2*i,2)}, {v(M,2)}")
            if i:
                d, acc = T2 + 2*((i-1) % 3), (T, T2 + 6)[i & 1]
                if i < 3: A(f"v_pk_mul_f32 {v(acc,2)}, {v(d,2)}, {v(d,2)}")
                else: A(f"v_pk_fma_f32 {v(acc,2)}, {v(d,2)}, {v(d,2)}, {v(acc,2)}")
        round2(A, M, t1)
        A(f"v_pk_add_f32 {v(T,2)}, {v(T,2)}, {v(T2+6,2)}\nv_add_f32 {v(T)}, {v(T)}, {v(T+1)}")
        sum4(T)
        ch = f"""v_mul_f32 {v(T)}, {f32bits(1/640)}, {v(T)}
        v_cvt_pk_bf16_f32 {v(T)}, {v(T)}, {v(T)}
        v_lshlrev_b32 {v(T)}, 16, {v(T)}
        v_add_f32 {v(T)}, {f32bits(1e-5)}, {v(T)}
        v_cvt_pk_bf16_f32 {v(T)}, {v(T)}, {v(T)}
        v_lshlrev_b32 {v(T)}, 16, {v(T)}
        v_sqrt_f32 {v(T)}, {v(T)}
        v_cvt_pk_bf16_f32 {v(T)}, {v(T)}, {v(T)}
        v_lshlrev_b32 {v(T)}, 16, {v(T)}
        v_rcp_f32 {v(T)}, {v(T)}
        v_mov_b32 {v(T+1)}, {v(T)}""".split("\n")
        for i in range(20):
            A(f"v_pk_add_f32 {v(X4+2*i,2)}, {v(X4+2*i,2)}, {v(M,2)}")
            if ch: A(ch.pop(0))
        for i in range(20): rnd4(i)
        if mid: mid()
        for i in range(20): A(f"v_pk_mul_f32 {v(X4+2*i,2)}, {v(X4+2*i,2)}, {v(T,2)}")
        for i in range(20):
            if N is None: rnd4(i)
            else: A(f"v_cvt_pk_bf16_f32 {v(N+i)}, {v(X4+2*i)}, {v(X4+2*i+1)}")
    def affine4(src=None, mid=None):
        for k in range(5):
            E = range(8*k, 8*k + 8)
            if src is not None:
                for i in range(4*k, 4*k + 4): unpack(A, X4 + 2*i, src + i)
            q = lambda b, e: "quad_perm:[%d,%d,%d,%d] row_mask:0xf bank_mask:0xf" % ((b + ((e >> 2) & 1),) * 4)
            for e in E: A(f"v_mul_f32_dpp {v(X4+e)}, {v(P4+4*k+(e&3))}, {v(X4+e)} {q(2, e)}")
            for i in range(4*k, 4*k + 4): rnd4(i)
            for e in E: A(f"v_add_f32_dpp {v(X4+e)}, {v(P4+4*k+(e&3))}, {v(X4+e)} {q(0, e)}")
            for i in range(4*k, 4*k + 4): A(f"v_cvt_pk_bf16_f32 {v(OUT+i)}, {v(X4+2*i)}, {v(X4+2*i+1)}")
            if mid and k == 0: mid()
            A(f"s_add_u32 {s(sT0)}, {s(sHo)}, {4096*k}\nbuffer_store_dwordx4 {v(OUT+4*k,4)}, {v(vHa)}, {WSR}, {s(sT0)} offen")
        A(f"s_add_u32 {s(sHo)}, {s(sHo)}, {64*1280}\ns_add_u32 {s(sN)}, {s(sN)}, 4")
    def flag(n): return lambda: A(f"v_mov_b32 {v(t2)}, {s(sN)}\ns_waitcnt vmcnt({n})\nbuffer_store_dword {v(t2)}, {v(vFl)}, {WSR}, 0 offen")
    for g in range(NG):
        A(f"s_waitcnt vmcnt({5 * (NG - 1 - g) + 2 * NT_ + 1})")
        norm4(NB + 20*g, NB + 20*g)
    ev(A, 11, t0)
    A(f"s_cmp_lg_u32 {s(S_W)}, 0\ns_cbranch_scc1 r_g1\ns_cmp_lg_u32 {s(S_T)}, 31\ns_cbranch_scc1 r_g0")
    g_wait(A, GM, GM_N, t0, sCnt, slp=int(optv.get("gms", 4)))
    g0_add(A, t0, sT0)
    A("r_g0:")
    g0_wait(A, t0, sCnt, slp=2)
    A("r_g1:\ns_barrier")
    ev(A, 9, t0)
    A(f"s_mov_b32 {s(sT0)}, {OFF_MOD}\ns_mov_b32 {s(sN)}, 0")
    for k in range(5): A(f"buffer_load_dwordx4 {v(P4+4*k,4)}, {v(vMa)}, {WSR}, {s(sT0)} offen offset:{512*k} sc1")
    for k in range(5):
        A(f"s_waitcnt vmcnt({4-k})")
        for i in range(4): A(f"v_add_f32 {v(P4+4*k+i)}, {v(vOne)}, {v(P4+4*k+i)}")
        round2(A, P4 + 4*k, t0); round2(A, P4 + 4*k + 2, t1)
    ev(A, 10, t0)
    for g in range(NG): affine4(NB + 20*g, flag(0) if g else None)
    for R in RW: nxt(R)
    flag(15)()
    A("s_waitcnt vmcnt(11)")
    def group(k, first=False):
        norm4(RW[k], None, flag(6 if first else 5))
        affine4()
        nxt(RW[k])
        A(f"s_cmp_lt_u32 {s(sN)}, 128")
    group(0, True)
    A("r_ln1:")
    for k in list(range(1, RD)) + [0]:
        group(k)
        A("s_cbranch_scc0 r_ln1e" if k else "s_cbranch_scc1 r_ln1")
    A("r_ln1e:")
    flag(0)()
    ev(A, 1, t0)
    if "noR" in opt:
        A("s_endpgm"); return
    A(f"""
    s_add_u32 {s(sB)}, {s(sB)}, 20
    r_mod2:
    """)
    mod_round(A, sB, SC, SWM, G2, "b")
    A(f"""
    s_barrier
    s_add_u32 {s(sB)}, {s(sB)}, 32
    s_cmp_lt_u32 {s(sB)}, 60
    s_cbranch_scc1 r_mod2
    """)
    for x in moe.vp: A(f"v_mov_b32 {v(x)}, 0")
    A(f"s_cmp_eq_u32 {s(S_T)}, 31\ns_cbranch_scc1 r_now")
    moe.emit("weights")
    A("r_now:")
    ev(A, 5, t0)
    g_wait(A, G2, G2_N, t0, sCnt, slp=8)
    ld_mod(PGA, 2); ld_mod(PS, 3); ld_mod(PC, 4); ld_mod(PGB, 5)
    ld_row(XN, s(SWR, 4), "0")
    A(f"""
    v_lshlrev_b32 {v(vAp)}, 4, {v(L)}
    s_lshl_b32 {s(sT0)}, {s(S_X)}, 8
    s_add_u32 {s(sT0)}, {s(sT0)}, {SPROG}
    v_and_b32 {v(t0)}, 7, {v(L)}
    v_lshl_add_u32 {v(vAl)}, {v(t0)}, 2, {s(sT0)}
    s_waitcnt vmcnt(0)
    """)
    one_plus(PC)
    for i in range(5): unpack(A, PWR + 2*i, XN + i)
    A(f"""
    s_mov_b32 {s(sN)}, {s(S_X)}
    r_loop:
    s_lshl_b32 {s(sRow)}, {s(sN)}, 4
    s_add_u32 {s(sRow)}, {s(sRow)}, {s(sWv)}
    s_mul_i32 {s(sXo)}, {s(sRow)}, 1280
    s_lshr_b32 {s(sNeed)}, {s(sN)}, 1
    s_mul_i32 {s(sHo)}, {s(sNeed)}, {8*32*1280}
    s_and_b32 {s(sT0)}, {s(sRow)}, 31
    s_mul_i32 {s(sT0)}, {s(sT0)}, 1280
    s_add_u32 {s(sHo)}, {s(sHo)}, {s(sT0)}
    s_add_u32 {s(sHo)}, {s(sHo)}, {OFF_AOP}
    s_add_u32 {s(sGate)}, {s(sNeed)}, 2
    s_min_u32 {s(sGate)}, {s(sGate)}, 64
    s_lshl_b32 {s(sT1)}, {s(sNeed)}, 10
    s_add_u32 {s(sT1)}, {s(sT1)}, {OFF_AFL}
    """)
    ld_row(XN, s(SX, 4), s(sXo))
    poll_ge(A, vPg, vAl, s(sGate), 0xff, sCnt, "role_abort", slp=8)
    A(f"""
    s_cmp_lt_u32 {s(sNeed)}, 63
    s_cbranch_scc1 r_p0
    s_sleep {optv.get("rsl", 16)}
    r_p0:
    s_mov_b32 {s(sCnt)}, 0
    r_poll:
    buffer_load_dwordx4 {v(PG4,4)}, {v(vAp)}, {WSR}, {s(sT1)} offen sc1
    s_add_u32 {s(sCnt)}, {s(sCnt)}, 1
    s_cmp_gt_u32 {s(sCnt)}, {SPIN_LIMIT}
    s_cbranch_scc1 role_abort
    s_waitcnt vmcnt(0)
    v_max3_u32 {v(t0)}, {v(PG4)}, {v(PG4+1)}, {v(PG4+2)}
    v_max_u32 {v(t0)}, {v(t0)}, {v(PG4+3)}
    v_cmp_eq_u32 vcc, -1, {v(t0)}
    s_and_b32 vcc_lo, vcc_lo, 0x1f1f1f1f
    s_and_b32 vcc_hi, vcc_hi, 0x1f1f1f1f
    s_cmp_eq_u64 vcc, 0
    s_cbranch_scc1 r_go
    s_sleep 4
    s_branch r_poll
    r_go:
    """)
    ev(A, 3, t0)
    RTH = optv.get("rth")
    for x in range(8):
        ld_row(PA + 5*x, WSR, s(sHo), "sc1")
        A(f"s_add_u32 {s(sHo)}, {s(sHo)}, {32*1280}")
        if RTH is not None and x < 7:
            A(f"s_cmp_ge_u32 {s(sNeed)}, {optv.get('rfast', 62)}\ns_cbranch_scc1 r_f{x}\ns_waitcnt vmcnt(0)\ns_sleep {RTH}\nr_f{x}:")
    for i in range(5): unpack(A, X + 2*i, XN + i)
    for x in range(8):
        A(f"s_waitcnt vmcnt({5*(7-x)})")
        for i in range(5):
            if x == 0: unpack(A, D + 2*i, PA + i)
            else:
                A(f"v_dot2c_f32_bf16 {v(D+2*i)}, {v(PA+5*x+i)}, {v(ELO)}\nv_dot2c_f32_bf16 {v(D+2*i+1)}, {v(PA+5*x+i)}, {v(EHI)}")
    for i in range(5): round2(A, D + 2*i, t0)
    for i in range(5):
        A(f"v_pk_mul_f32 {v(D+2*i,2)}, {v(D+2*i,2)}, {v(PGA+2*i,2)}"); round2(A, D + 2*i, t0)
    for i in range(5):
        A(f"v_pk_add_f32 {v(X+2*i,2)}, {v(X+2*i,2)}, {v(D+2*i,2)}"); round2(A, X + 2*i, O2 + i)
    A(f"s_add_u32 {s(sT0)}, {s(sXo)}, {OFF_X1}")
    st_row(O2, WSR, s(sT0), "sc1")
    ln(O)
    A(f"s_add_u32 {s(sT0)}, {s(sXo)}, {OFF_H2}")
    st_row(O, WSR, s(sT0), "sc1")
    for i in range(5): unpack(A, D + 2*i, O + i)
    A(f"v_pk_mul_f32 {v(T,2)}, {v(D,2)}, {v(PWR,2)}")
    for i in range(1, 5): A(f"v_pk_fma_f32 {v(T,2)}, {v(D+2*i,2)}, {v(PWR+2*i,2)}, {v(T,2)}")
    A(f"v_add_f32 {v(T)}, {v(T)}, {v(T+1)}")
    for i in range(5):
        A(f"v_pk_mul_f32 {v(D+2*i,2)}, {v(D+2*i,2)}, {v(PGB+2*i,2)}"); round2(A, D + 2*i, t0)
    for i in range(5):
        A(f"v_pk_add_f32 {v(D+2*i,2)}, {v(D+2*i,2)}, {v(X+2*i,2)}")
        A(f"v_cvt_pk_bf16_f32 {v(O3+i)}, {v(D+2*i)}, {v(D+2*i+1)}")
    st_row(O3, s(SO, 4), s(sXo), "sc1")
    wave_sum(A, [T], [t0])
    A(f"""
    v_cvt_pk_bf16_f32 {v(T)}, {v(T)}, {v(T)}
    v_lshlrev_b32 {v(T)}, 16, {v(T)}
    v_ashrrev_i32 {v(t0)}, 31, {v(T)}
    v_or_b32 {v(t0)}, 0x80000000, {v(t0)}
    v_xor_b32 {v(T)}, {v(T)}, {v(t0)}
    v_and_b32 {v(T)}, 0xffff0000, {v(T)}
    s_sub_u32 {s(sT0)}, 2047, {s(sRow)}
    v_or_b32 {v(T)}, {s(sT0)}, {v(T)}
    s_lshr_b32 {s(sT0)}, {s(sRow)}, 2
    s_lshl_b32 {s(sT0)}, {s(sT0)}, 7
    s_lshl_b32 {s(sT1)}, {s(S_W)}, 2
    s_add_u32 {s(sT0)}, {s(sT0)}, {s(sT1)}
    s_add_u32 {s(sT0)}, {s(sT0)}, {OFF_R}
    v_mov_b32 {v(t1)}, {s(sT0)}
    s_waitcnt vmcnt(0)
    s_mov_b64 exec, 1
    buffer_store_dword {v(T)}, {v(t1)}, {WSR}, 0 offen sc1
    s_mov_b64 exec, -1
    s_cmp_eq_u32 {s(S_T)}, 31
    s_cbranch_scc1 r_nc
    s_lshr_b32 {s(sLim)}, {s(sN)}, 3
    s_lshl_b32 {s(sLim)}, {s(sLim)}, 1
    s_sub_u32 {s(sLim)}, {s(sLim)}, 1
    """)
    moe.emit(("chunks", s(sLim)))
    A(f"""
    r_nc:
    s_add_u32 {s(sN)}, {s(sN)}, 8
    s_cmp_lt_u32 {s(sN)}, 128
    s_cbranch_scc1 r_loop
    """)
    ev(A, 4, t0)
    A(f"s_cmp_eq_u32 {s(S_T)}, 31\ns_cbranch_scc1 moe_end")
    moe.emit(("chunks", 30))
    A(f"s_mov_b32 {s(sGate)}, 64")
    poll_ge(A, vPg, vAl, s(sGate), 0xff, sCnt, "role_abort", slp=4)
    moe.emit(("chunks", 31))
    A(f"s_cmp_ge_u32 {s(S_X)}, 4\ns_cbranch_scc1 r_c31\ns_sleep {optv.get('msl2', 32)}\nr_c31:")
    moe.emit(("chunks", 32))
    moe.emit("final")
```

```python
from common import *
from k_boot import *
from k_moe import Moe

def gen_r(A, opt=()):
    sa = Alloc(20, 100)
    SX, SO, SWR = sa(4, 4), sa(4, 4), sa(4, 4)
    sWv, sN, sCnt, sT0, sT1, sXo, sHo, sNeed, sRow, sGate = [sa() for _ in range(10)]
    SC, SWM = sa(4, 4), sa(4, 4)
    sB, sLim, sRc = sa(), sa(), sa()
    optv = dict(o.split('=') for o in opt if '=' in o)
    vp = Alloc(176, 256)
    PC, PS, PGA, PGB, PWR = [vp(10, 2) for _ in range(5)]
    vL4, vL8, vFl, vAp, ELO, EHI, vAl = [vp() for _ in range(7)]
    va = Alloc(2, 176)
    X = va(10, 2); D = va(10, 2)
    XN = va(5); O = va(5); O2 = va(5); O3 = va(5)
    PA = va(40)
    T, M = va(2, 2), va(2, 2)
    t0, t1, t2, vPg = [va() for _ in range(4)]
    PG4 = va(4, 4)
    moe = Moe(A, sa, vp, Alloc(2, 176), SO, opt)
    L = V_LANE; WSR = s(S_WS, 4)
    srd(A, SX, "x"); srd(A, SO, "out"); srd(A, SWR, "wr"); srd(A, SC, "c"); srd(A, SWM, "wmod")
    A(f"""
    s_sub_u32 {s(sRc)}, {s(S_T)}, 29
    s_sub_u32 {s(sB)}, 2, {s(sRc)}
    s_lshl_b32 {s(sB)}, {s(sB)}, 3
    s_add_u32 {s(sB)}, {s(sB)}, {s(S_X)}
    s_lshl_b32 {s(sWv)}, {s(sRc)}, 2
    s_add_u32 {s(sWv)}, {s(sWv)}, {s(S_W)}
    s_mul_i32 {s(sHo)}, {s(S_X)}, {H_X}
    s_lshl_b32 {s(sT0)}, {s(sWv)}, 13
    s_add_u32 {s(sT0)}, {s(sT0)}, {s(sHo)}
    s_add_u32 {s(sT0)}, {s(sT0)}, {OFF_H}
    v_lshlrev_b32 v2, 7, {v(L)}
    {"" if "s4" in opt else f"buffer_load_dword v3, v2, {WSR}, {s(sT0)} offen sc1"}
    s_waitcnt lgkmcnt(0)
    """)
    NG, RD = int(optv.get("npre", 2)), 3
    X4, P4, OUT = X, PC, PGA
    assert PA - X >= 40 and PS == PC + 10 and PGB == PGA + 10
    NB = va(20 * NG, 2)
    RW = [PA, PA + 20, va(20, 2)]
    vXa, vHa, vMa, vOne = [va() for _ in range(4)]
    T2 = va(8, 2)
    sTx, sTh, sSh = sRow, sGate, sNeed
    def adv(T):
        A(f"""
        s_add_u32 {s(sT1)}, {s(T)}, 24
        s_cmp_lt_u32 {s(T)}, {HLOC}
        s_cselect_b32 {s(sT1)}, {s(sSh)}, {s(sT1)}
        s_add_u32 {s(T)}, {s(T)}, 3
        s_cmp_lt_u32 {s(T)}, {HLOC}
        s_cselect_b32 {s(T)}, {s(T)}, {s(sT1)}
        s_min_u32 {s(T)}, {s(T)}, 127
        """)
    A(f"""
    s_mov_b32 {s(sTx)}, {s(sRc)}
    s_mov_b32 {s(sTh)}, {s(sRc)}
    s_mul_i32 {s(sSh)}, {s(S_X)}, 3
    s_add_u32 {s(sSh)}, {s(sSh)}, {s(sRc)}
    s_add_u32 {s(sSh)}, {s(sSh)}, {HLOC}
    """)
    def nxt(R):
        for k in range(10): A(f"buffer_load_dwordx2 {v(R+2*k,2)}, {v(vXa)}, {s(SX,4)}, {s(sXo)} offen offset:{256*(k//2) + 32*(k&1)}")
        adv(sTx)
        A(f"s_mul_i32 {s(sXo)}, {s(sTx)}, {16*1280}\ns_mul_i32 {s(sT1)}, {s(S_W)}, {4*1280}\ns_add_u32 {s(sXo)}, {s(sXo)}, {s(sT1)}")
    A(f"""
    v_lshlrev_b32 {v(vL4)}, 2, {v(L)}
    s_mul_i32 {s(sXo)}, {s(sWv)}, {4*1280}
    v_and_b32 {v(t0)}, 3, {v(L)}
    v_lshrrev_b32 {v(t1)}, 2, {v(L)}
    v_mul_u32_u24 {v(vXa)}, 1280, {v(t0)}
    v_lshrrev_b32 {v(t2)}, 4, {v(L)}
    v_bfe_u32 {v(vPg)}, {v(L)}, 2, 2
    v_lshl_add_u32 {v(vPg)}, {v(t2)}, 3, {v(vPg)}
    v_lshl_add_u32 {v(vXa)}, {v(vPg)}, 3, {v(vXa)}
    """)
    S1 = "s1" in opt; S6 = "s6" in opt
    for g in range(NG): nxt(NB + 20*g)
    if S1: nxt(RW[0])
    A(f"""
    s_add_u32 {s(sT0)}, {s(sT0)}, {12*8192}
    {"" if "s4" in opt else f"buffer_load_dword a101, v2, {WSR}, {s(sT0)} offen sc1"}
    v_lshlrev_b32 {v(vHa)}, 4, {v(t0)}
    v_lshl_add_u32 {v(vHa)}, {v(t1)}, 8, {v(vHa)}
    v_lshrrev_b32 {v(t2)}, 1, {v(t0)}
    v_mul_u32_u24 {v(vMa)}, {2560 - 128}, {v(t2)}
    v_lshl_add_u32 {v(vMa)}, {v(t0)}, 6, {v(vMa)}
    v_lshl_add_u32 {v(vMa)}, {v(vPg)}, 4, {v(vMa)}
    v_cvt_f32_u32 {v(vOne)}, {v(t2)}
    """)
    A(f"""
    s_lshl_b32 {s(sT0)}, {s(S_X)}, 22
    s_lshl_b32 {s(sT1)}, {s(sWv)}, 13
    s_add_u32 {s(sT0)}, {s(sT0)}, {s(sT1)}
    s_add_u32 {s(sT0)}, {s(sT0)}, {OFF_RING}
    """)
    NT_ = -1 if "s4" in opt else 3
    for i in range(NT_):
        A(f"buffer_load_dword a100, v2, {WSR}, {s(sT0)} offen sc1\ns_add_u32 {s(sT0)}, {s(sT0)}, {12*8192}")
    A(f"""
    v_lshlrev_b32 {v(vL8)}, 3, {v(L)}
    s_lshl_b32 {s(sT0)}, {s(S_X)}, 8
    s_lshl_b32 {s(sT1)}, {s(sWv)}, 2
    s_add_u32 {s(sT0)}, {s(sT0)}, {s(sT1)}
    s_add_u32 {s(sT0)}, {s(sT0)}, {HPROG}
    v_mov_b32 {v(vFl)}, {s(sT0)}
    v_mov_b32 {v(ELO)}, 0x00003f80
    v_mov_b32 {v(EHI)}, 0x3f800000
    s_mul_i32 {s(sHo)}, {s(S_X)}, {H_X}
    s_add_u32 {s(sHo)}, {s(sHo)}, {OFF_H}
    s_mul_i32 {s(sT0)}, {s(sRc)}, {16*1280}
    s_add_u32 {s(sHo)}, {s(sHo)}, {s(sT0)}
    s_lshl_b32 {s(sT0)}, {s(S_W)}, 6
    s_add_u32 {s(sHo)}, {s(sHo)}, {s(sT0)}
    s_waitcnt lgkmcnt(0)
    """)
    def ld_mod(P, k):
        A(f"s_mov_b32 {s(sT0)}, {OFF_MOD + k*2560}")
        for i in range(5):
            A(f"buffer_load_dwordx2 {v(P+2*i,2)}, {v(vL8)}, {WSR}, {s(sT0)} offen offset:{512*i} sc1")
    def one_plus(P):
        for i in range(5):
            A(f"v_add_f32 {v(P+2*i)}, 1.0, {v(P+2*i)}\nv_add_f32 {v(P+2*i+1)}, 1.0, {v(P+2*i+1)}")
            round2(A, P + 2*i, t0)
    def ld_row(R, srdr, so, mods=""):
        for i in range(5):
            A(f"buffer_load_dword {v(R+i)}, {v(vL4)}, {srdr}, {so} offen offset:{256*i} {mods}")
    def st_row(R, srdr, so, mods=""):
        for i in range(5):
            A(f"buffer_store_dword {v(R+i)}, {v(vL4)}, {srdr}, {so} offen offset:{256*i} {mods}")
    def ln(OUT):
        norm(None); affine(OUT)
    def norm(N):
        A(f"v_pk_add_f32 {v(T,2)}, {v(X,2)}, {v(X+2,2)}\nv_pk_add_f32 {v(M,2)}, {v(X+4,2)}, {v(X+6,2)}")
        A(f"v_pk_add_f32 {v(T,2)}, {v(T,2)}, {v(X+8,2)}\nv_pk_add_f32 {v(T,2)}, {v(T,2)}, {v(M,2)}\nv_add_f32 {v(T)}, {v(T)}, {v(T+1)}")
        wave_sum(A, [T], [t0])
        A(f"v_mul_f32 {v(M)}, {f32bits(-1/640)}, {v(T)}\nv_mul_f32 {v(M+1)}, {f32bits(-1/640)}, {v(T)}")
        for i in range(5): A(f"v_pk_add_f32 {v(D+2*i,2)}, {v(X+2*i,2)}, {v(M,2)}")
        A(f"v_pk_mul_f32 {v(T,2)}, {v(D,2)}, {v(D,2)}")
        for i in range(1, 5): A(f"v_pk_fma_f32 {v(T,2)}, {v(D+2*i,2)}, {v(D+2*i,2)}, {v(T,2)}")
        A(f"v_add_f32 {v(T)}, {v(T)}, {v(T+1)}")
        round2(A, M, t1)
        wave_sum(A, [T], [t0])
        for i in range(5): A(f"v_pk_add_f32 {v(D+2*i,2)}, {v(X+2*i,2)}, {v(M,2)}")
        A(f"""
        v_mul_f32 {v(T)}, {f32bits(1/640)}, {v(T)}
        v_cvt_pk_bf16_f32 {v(T)}, {v(T)}, {v(T)}
        v_lshlrev_b32 {v(T)}, 16, {v(T)}
        v_add_f32 {v(T)}, {f32bits(1e-5)}, {v(T)}
        v_cvt_pk_bf16_f32 {v(T)}, {v(T)}, {v(T)}
        v_lshlrev_b32 {v(T)}, 16, {v(T)}
        v_sqrt_f32 {v(T)}, {v(T)}
        """)
        round2(A, D, t0)
        A(f"v_cvt_pk_bf16_f32 {v(T)}, {v(T)}, {v(T)}\nv_lshlrev_b32 {v(T)}, 16, {v(T)}\nv_rcp_f32 {v(T)}, {v(T)}")
        for i in range(1, 5): round2(A, D + 2*i, t0)
        A(f"v_mov_b32 {v(T+1)}, {v(T)}")
        for i in range(5):
            A(f"v_pk_mul_f32 {v(D+2*i,2)}, {v(D+2*i,2)}, {v(T,2)}")
            if N is None: round2(A, D + 2*i, t0)
            else: A(f"v_cvt_pk_bf16_f32 {v(N+i)}, {v(D+2*i)}, {v(D+2*i+1)}")
    def affine(OUT):
        for i in range(5):
            A(f"v_pk_mul_f32 {v(D+2*i,2)}, {v(D+2*i,2)}, {v(PC+2*i,2)}"); round2(A, D + 2*i, t0)
        for i in range(5):
            A(f"v_pk_add_f32 {v(D+2*i,2)}, {v(D+2*i,2)}, {v(PS+2*i,2)}")
            A(f"v_cvt_pk_bf16_f32 {v(OUT+i)}, {v(D+2*i)}, {v(D+2*i+1)}")

    def sum4(x):
        for r_ in (8, 4): A(f"v_add_f32_dpp {v(x)}, {v(x)}, {v(x)} row_ror:{r_} row_mask:0xf bank_mask:0xf")
        for sw in (16, 32): A(f"v_mov_b32 {v(t0)}, {v(x)}\nv_permlane{sw}_swap_b32 {v(x)}, {v(t0)}\nv_add_f32 {v(x)}, {v(x)}, {v(t0)}")
    def rnd4(i): round2(A, X4 + 2*i, T2 + (i & 3))
    def norm4(R, N=None, mid=None):
        for i in range(20): unpack(A, X4 + 2*i, R + i)
        A(f"v_pk_add_f32 {v(T,2)}, {v(X4,2)}, {v(X4+2,2)}\nv_pk_add_f32 {v(M,2)}, {v(X4+4,2)}, {v(X4+6,2)}")
        for i in range(4, 20): A(f"v_pk_add_f32 {v((T, M)[i & 1],2)}, {v((T, M)[i & 1],2)}, {v(X4+2*i,2)}")
        A(f"v_pk_add_f32 {v(T,2)}, {v(T,2)}, {v(M,2)}\nv_add_f32 {v(T)}, {v(T)}, {v(T+1)}")
        sum4(T)
        A(f"v_mul_f32 {v(M)}, {f32bits(-1/640)}, {v(T)}\nv_mul_f32 {v(M+1)}, {f32bits(-1/640)}, {v(T)}")
        for i in range(21):
            if i < 20: A(f"v_pk_add_f32 {v(T2+2*(i%3),2)}, {v(X4+2*i,2)}, {v(M,2)}")
            if i:
                d, acc = T2 + 2*((i-1) % 3), (T, T2 + 6)[i & 1]
                if i < 3: A(f"v_pk_mul_f32 {v(acc,2)}, {v(d,2)}, {v(d,2)}")
                else: A(f"v_pk_fma_f32 {v(acc,2)}, {v(d,2)}, {v(d,2)}, {v(acc,2)}")
        round2(A, M, t1)
        A(f"v_pk_add_f32 {v(T,2)}, {v(T,2)}, {v(T2+6,2)}\nv_add_f32 {v(T)}, {v(T)}, {v(T+1)}")
        sum4(T)
        ch = f"""v_mul_f32 {v(T)}, {f32bits(1/640)}, {v(T)}
        v_cvt_pk_bf16_f32 {v(T)}, {v(T)}, {v(T)}
        v_lshlrev_b32 {v(T)}, 16, {v(T)}
        v_add_f32 {v(T)}, {f32bits(1e-5)}, {v(T)}
        v_cvt_pk_bf16_f32 {v(T)}, {v(T)}, {v(T)}
        v_lshlrev_b32 {v(T)}, 16, {v(T)}
        v_sqrt_f32 {v(T)}, {v(T)}
        v_cvt_pk_bf16_f32 {v(T)}, {v(T)}, {v(T)}
        v_lshlrev_b32 {v(T)}, 16, {v(T)}
        v_rcp_f32 {v(T)}, {v(T)}
        v_mov_b32 {v(T+1)}, {v(T)}""".split("\n")
        for i in range(20):
            A(f"v_pk_add_f32 {v(X4+2*i,2)}, {v(X4+2*i,2)}, {v(M,2)}")
            if ch: A(ch.pop(0))
        for i in range(20): rnd4(i)
        if mid: mid()
        for i in range(20): A(f"v_pk_mul_f32 {v(X4+2*i,2)}, {v(X4+2*i,2)}, {v(T,2)}")
        for i in range(20):
            if N is None: rnd4(i)
            else: A(f"v_cvt_pk_bf16_f32 {v(N+i)}, {v(X4+2*i)}, {v(X4+2*i+1)}")
    def affine4(src=None, mid=None):
        for k in range(5):
            E = range(8*k, 8*k + 8)
            if src is not None:
                for i in range(4*k, 4*k + 4): unpack(A, X4 + 2*i, src + i)
            q = lambda b, e: "quad_perm:[%d,%d,%d,%d] row_mask:0xf bank_mask:0xf" % ((b + ((e >> 2) & 1),) * 4)
            for e in E: A(f"v_mul_f32_dpp {v(X4+e)}, {v(P4+4*k+(e&3))}, {v(X4+e)} {q(2, e)}")
            for i in range(4*k, 4*k + 4): rnd4(i)
            for e in E: A(f"v_add_f32_dpp {v(X4+e)}, {v(P4+4*k+(e&3))}, {v(X4+e)} {q(0, e)}")
            for i in range(4*k, 4*k + 4): A(f"v_cvt_pk_bf16_f32 {v(OUT+i)}, {v(X4+2*i)}, {v(X4+2*i+1)}")
            if mid and k == 0: mid()
            A(f"s_add_u32 {s(sT0)}, {s(sHo)}, {4096*k}\nbuffer_store_dwordx4 {v(OUT+4*k,4)}, {v(vHa)}, {WSR}, {s(sT0)} offen {'' if src is not None else 'sc1'}")
        adv(sTh)
        A(f"""
        s_mul_i32 {s(sHo)}, {s(S_X)}, {H_X}
        s_cmp_lt_u32 {s(sTh)}, {HLOC}
        s_cselect_b32 {s(sHo)}, {s(sHo)}, 0
        s_mul_i32 {s(sT1)}, {s(sTh)}, {16*1280}
        s_add_u32 {s(sHo)}, {s(sHo)}, {s(sT1)}
        s_lshl_b32 {s(sT1)}, {s(S_W)}, 6
        s_add_u32 {s(sHo)}, {s(sHo)}, {s(sT1)}
        s_add_u32 {s(sHo)}, {s(sHo)}, {OFF_H}
        s_add_u32 {s(sN)}, {s(sN)}, 3
        """)
    def flag(n, lag=0): return lambda: A(f"s_sub_u32 {s(sT1)}, {s(sN)}, {lag}\ns_min_u32 {s(sT1)}, {s(sT1)}, {HLOC}\nv_mov_b32 {v(t2)}, {s(sT1)}\ns_waitcnt vmcnt({n})\nbuffer_store_dword {v(t2)}, {v(vFl)}, {WSR}, 0 offen")
    for g in range(NG):
        A(f"s_waitcnt vmcnt({10 * (NG - 1 - g + S1) + NT_ + 1})")
        norm4(NB + 20*g, NB + 20*g)
    ev(A, 11, t0)
    if S1:
        A(f"""
        s_cmp_lg_u32 {s(S_W)}, 0
        s_cbranch_scc1 r_g1
        s_lshl_b32 {s(sT0)}, {s(S_X)}, 2
        s_add_u32 {s(sT0)}, {s(sT0)}, {G0}
        v_mov_b32 {v(t0)}, {GM}
        v_mov_b32 {v(t2)}, {GM_N}
        v_writelane_b32 {v(t0)}, {s(sT0)}, 0
        v_writelane_b32 {v(t2)}, 1, 0
        s_mov_b32 {s(sCnt)}, 0
        s_mov_b64 exec, 3
        {f"s_cmp_eq_u32 {s(S_T)}, 31" if S6 else ""}
        {f"s_cselect_b64 exec, 3, 1" if S6 else ""}
        r_gp:
        buffer_load_dword {v(t1)}, {v(t0)}, {s(S_DBG,4)}, 0 offen sc1
        s_add_u32 {s(sCnt)}, {s(sCnt)}, 1
        s_cmp_gt_u32 {s(sCnt)}, {SPIN_LIMIT}
        s_cbranch_scc1 role_abort
        s_waitcnt vmcnt(0)
        v_cmp_gt_u32 vcc, {v(t2)}, {v(t1)}
        s_cbranch_vccz r_gq
        s_sleep {optv.get("gms", 4)}
        s_branch r_gp
        r_gq:
        s_mov_b64 exec, -1
        """)
        if S6:
            A(f"""
            s_lshl_b32 {s(sT0)}, {s(S_X)}, 8
            s_add_u32 {s(sT0)}, {s(sT0)}, {HPROG + 128}
            v_mov_b32 {v(t0)}, {s(sT0)}
            v_mov_b32 {v(t2)}, 1
            s_cmp_lg_u32 {s(S_T)}, 31
            s_cbranch_scc1 r_g2
            buffer_store_dword {v(t2)}, {v(t0)}, {WSR}, 0 offen
            s_branch r_g1
            r_g2:
            """)
            poll_ge(A, t1, t0, 1, 1, sCnt, "role_abort", slp=1)
        A(f"r_g1:\ns_barrier\ns_cmp_lg_u32 {s(sWv)}, 9\ns_cbranch_scc1 r_g0")
        if "s3" not in opt: g0_add(A, t0, sT0)
        A("r_g0:")
    else:
        A(f"s_cmp_lg_u32 {s(S_W)}, 0\ns_cbranch_scc1 r_g1\ns_cmp_lg_u32 {s(S_T)}, 31\ns_cbranch_scc1 r_g0")
        g_wait(A, GM, GM_N, t0, sCnt, slp=int(optv.get("gms", 4)))
        g0_add(A, t0, sT0)
        A("r_g0:")
        g0_wait(A, t0, sCnt, slp=2)
        A("r_g1:\ns_barrier")
    ev(A, 9, t0)
    A(f"s_mov_b32 {s(sT0)}, {OFF_MOD}\ns_mov_b32 {s(sN)}, {s(sRc)}")
    for k in range(5): A(f"buffer_load_dwordx4 {v(P4+4*k,4)}, {v(vMa)}, {WSR}, {s(sT0)} offen offset:{512*k} sc1")
    for k in range(5):
        A(f"s_waitcnt vmcnt({4-k})")
        for i in range(4): A(f"v_add_f32 {v(P4+4*k+i)}, {v(vOne)}, {v(P4+4*k+i)}")
        round2(A, P4 + 4*k, t0); round2(A, P4 + 4*k + 2, t1)
    ev(A, 10, t0)
    for g in range(NG): affine4(NB + 20*g, flag(0) if g else None)
    if S1:
        flag(0)(); nxt(RW[1]); norm4(RW[0]); affine4(); flag(0)(); nxt(RW[2]); nxt(RW[0])
    else:
        for R in RW: nxt(R)
        flag(30)()
        A("s_waitcnt vmcnt(21)")
    def group(k, first=False):
        norm4(RW[k], None, flag(11 if first else 10))
        affine4()
        nxt(RW[k])
        A(f"s_cmp_lt_u32 {s(sN)}, {HLOC + 3 * ((128 - HLOC + 23) // 24)}")
    if not S1: group(0, True)
    A("r_ln1:")
    for k in list(range(1, RD)) + [0]:
        group(k)
        A("s_cbranch_scc0 r_ln1e" if k else "s_cbranch_scc1 r_ln1")
    A("r_ln1e:")
    A(f"s_waitcnt vmcnt(0)\ns_barrier\ns_cmp_lg_u32 {s(S_W)}, 0\ns_cbranch_scc1 r_h1")
    g_add(A, G3, t0)
    A(f"s_cmp_lg_u32 {s(sRc)}, 0\ns_cbranch_scc1 r_h1")
    g_wait(A, G3, 24, t0, sCnt, slp=8)
    A(f"""
    v_add_u32 {v(t0)}, {v(vFl)}, {v(vL4)}
    v_mov_b32 {v(t1)}, 128
    s_mov_b64 exec, 0xfff
    buffer_store_dword {v(t1)}, {v(t0)}, {WSR}, 0 offen
    s_mov_b64 exec, -1
    r_h1:
    """)
    ev(A, 1, t0)
    if "noR" in opt:
        A("s_endpgm"); return
    A(f"""
    s_add_u32 {s(sB)}, {s(sB)}, 20
    r_mod2:
    """)
    mod_round(A, sB, SC, SWM, G2, "b")
    A(f"""
    s_barrier
    s_add_u32 {s(sB)}, {s(sB)}, 24
    s_cmp_lt_u32 {s(sB)}, 60
    s_cbranch_scc1 r_mod2
    """)
    for x in moe.vp: A(f"v_mov_b32 {v(x)}, 0")
    moe.emit("weights")
    ev(A, 5, t0)
    SP = "spec" in opt
    if SP:
        A("s_branch r_par\nr_help:")
        srd(A, SX, "x"); srd(A, SO, "out"); srd(A, SWR, "wr")
        A(f"""
        s_add_u32 {s(sRc)}, {s(S_T)}, 60
        v_lshlrev_b32 {v(vL4)}, 2, {v(L)}
        v_lshlrev_b32 {v(vL8)}, 3, {v(L)}
        v_mov_b32 {v(ELO)}, 0x00003f80
        v_mov_b32 {v(EHI)}, 0x3f800000
        s_waitcnt lgkmcnt(0)
        r_par:
        """)
    g_wait(A, G2, G2_N - 64 * ("b1" in opt), t0, sCnt, slp=8)
    ld_mod(PGA, 2); ld_mod(PS, 3); ld_mod(PC, 4); ld_mod(PGB, 5)
    ld_row(XN, s(SWR, 4), "0")
    A(f"""
    v_lshlrev_b32 {v(vAp)}, 7, {v(L)}
    s_lshl_b32 {s(sT0)}, {s(S_X)}, 8
    s_add_u32 {s(sT1)}, {s(sT0)}, {PPROG + 48}
    s_add_u32 {s(sT0)}, {s(sT0)}, {CPROG + 96}
    v_and_b32 {v(t0)}, 3, {v(L)}
    v_lshl_add_u32 {v(vAl)}, {v(t0)}, 2, {s(sT0)}
    v_mov_b32 {v(vFl)}, {s(sT1)}
    s_waitcnt vmcnt(0)
    """)
    one_plus(PC)
    for i in range(5): unpack(A, PWR + 2*i, XN + i)
    LATE = int(int(optv.get("aq", 0)) >= 100)
    A(f"""
    s_mov_b32 {s(sNeed)}, {s(sRc)}
    s_lshl_b32 {s(sWv)}, {s(S_X)}, 2
    s_add_u32 {s(sWv)}, {s(sWv)}, {s(S_W)}
    r_loop:
    s_lshl_b32 {s(sRow)}, {s(sNeed)}, 5
    s_add_u32 {s(sRow)}, {s(sRow)}, {s(sWv)}
    s_mul_i32 {s(sXo)}, {s(sRow)}, 1280
    s_mul_i32 {s(sHo)}, {s(sNeed)}, {8*32*1280}
    s_mul_i32 {s(sT0)}, {s(sWv)}, 1280
    s_add_u32 {s(sHo)}, {s(sHo)}, {s(sT0)}
    s_add_u32 {s(sHo)}, {s(sHo)}, {OFF_AOP}
    s_add_u32 {s(sGate)}, {s(sNeed)}, {5 + LATE}
    s_min_u32 {s(sGate)}, {s(sGate)}, 64
    s_max_u32 {s(sT1)}, {s(sNeed)}, 60
    s_lshl_b32 {s(sT1)}, {s(sT1)}, 14
    s_add_u32 {s(sT1)}, {s(sT1)}, {OFF_AFL - 60 * 16384}
    s_add_u32 {s(sLim)}, {s(sT1)}, 8192
    """)
    ld_row(XN, s(SX, 4), s(sXo))
    def at(sseg):
        A(f"""
        s_min_u32 {s(sT0)}, {s(sseg)}, 63
        s_lshl_b32 {s(sT0)}, {s(sT0)}, 5
        s_add_u32 {s(sT0)}, {s(sT0)}, {s(sWv)}
        s_mul_i32 {s(sT0)}, {s(sT0)}, 10240
        s_add_u32 {s(sT0)}, {s(sT0)}, {OFF_AOP}
        buffer_load_dword a250, {v(vAp)}, {WSR}, {s(sT0)} offen sc1
        buffer_load_dword a250, {v(vAp)}, {WSR}, {s(sT0)} offen offset:2048 sc1
        """)
    if "rat" in optv:
        A(f"s_add_u32 {s(sCnt)}, {s(sNeed)}, {optv['rat']}"); at(sCnt)
    A(f"s_cmp_ge_u32 {s(sNeed)}, {optv.get('rkm', 57)}\ns_cbranch_scc1 r_km")
    poll_ge(A, vPg, vAl, s(sGate), 0xf, sCnt, "role_abort", slp=int(optv.get("rps", 8)))
    if "rph" in optv: A(f"s_cmp_lt_u32 {s(sCnt)}, 2\ns_cbranch_scc1 r_go\ns_sleep {optv['rph']}")
    TL = "tl" in opt
    if TL:
        Z = [int(x) for x in optv.get("rz", "0,0,24,46,28,28,8").split(",")]
        A(f"""
        s_branch r_go
        r_km:
        s_mov_b32 {s(sLim)}, {Z[0]}
        """)
        for i in range(1, 7): A(f"s_cmp_eq_u32 {s(sNeed)}, {57 + i}\ns_cselect_b32 {s(sLim)}, {Z[i]}, {s(sLim)}")
        A(f"""
        s_add_u32 {s(sGate)}, {s(sNeed)}, 5
        s_min_u32 {s(sGate)}, {s(sGate)}, 63
        s_cmp_gt_u32 {s(sNeed)}, 60
        s_cselect_b32 {s(sGate)}, 64, {s(sGate)}
        s_cmp_eq_u32 {s(sNeed)}, 63
        s_cselect_b64 vcc, -1, 0
        v_cndmask_b32 {v(t2)}, {v(vFl)}, {v(vAl)}, vcc
        """)
        poll_ge(A, vPg, t2, s(sGate), 0xf, sCnt, "role_abort", slp=int(optv.get("rgs", 4)))
        A(f"""
        s_cmp_lt_u32 {s(sCnt)}, 2
        s_cbranch_scc1 r_go
        r_z:
        s_sub_u32 {s(sLim)}, {s(sLim)}, 1
        s_cbranch_scc1 r_go
        s_sleep 1
        s_branch r_z
        r_go:
        s_mov_b32 {s(sCnt)}, 0
        """)
    else:
        A("s_branch r_go\nr_km:\ns_mov_b64 exec, 1")
        poll_ge(A, vPg, vFl, s(sGate), 1, sCnt, "role_abort", slp=8)
        A(f"""
        s_mov_b64 exec, -1
        s_cmp_lt_u32 {s(sNeed)}, {60 - LATE}
        s_cbranch_scc1 r_go
        s_cmp_lt_u32 {s(sNeed)}, 63
        s_cbranch_scc1 r_p0
        """)
        poll_ge(A, vPg, vAl, s(sGate), 0xf, sCnt, "role_abort", slp=4)
        A(f"""
        s_sleep {optv.get("rsl", 16)}
        r_p0:
        s_mov_b32 {s(sCnt)}, 0
        r_poll:
        buffer_load_dwordx4 {v(PG4,4)}, {v(vAp)}, {WSR}, {s(sT1)} offen sc1
        buffer_load_dwordx4 {v(PA,4)}, {v(vAp)}, {WSR}, {s(sLim)} offen sc1
        s_add_u32 {s(sCnt)}, {s(sCnt)}, 1
        s_cmp_gt_u32 {s(sCnt)}, {SPIN_LIMIT}
        s_cbranch_scc1 role_abort
        s_waitcnt vmcnt(0)
        v_or3_b32 {v(t0)}, {v(PG4)}, {v(PG4+1)}, {v(PG4+2)}
        v_or3_b32 {v(t0)}, {v(t0)}, {v(PG4+3)}, {v(PA)}
        v_or3_b32 {v(t0)}, {v(t0)}, {v(PA+1)}, {v(PA+2)}
        v_or_b32 {v(t0)}, {v(t0)}, {v(PA+3)}
        v_cmp_ne_u32 vcc, 0, {v(t0)}
        s_and_b32 vcc_lo, vcc_lo, 0x03ff03ff
        s_and_b32 vcc_hi, vcc_hi, 0x03ff03ff
        s_cmp_eq_u64 vcc, 0
        s_cbranch_scc1 r_go
        s_sleep 4
        s_branch r_poll
        r_go:
        """)
    ev(A, 3, t0)
    RTH = optv.get("rth")
    A("r_ld:")
    for x in range(8):
        ld_row(PA + 5*x, WSR, s(sHo), "sc1")
        A(f"s_add_u32 {s(sHo)}, {s(sHo)}, {32*1280}")
        if RTH is not None and x < 7:
            A(f"s_cmp_ge_u32 {s(sNeed)}, {optv.get('rfast', 62)}\ns_cbranch_scc1 r_f{x}\ns_waitcnt vmcnt(0)\ns_sleep {RTH}\nr_f{x}:")
    for i in range(5): unpack(A, X + 2*i, XN + i)
    for x in range(8):
        A(f"s_waitcnt vmcnt({5*(7-x)})")
        for i in range(5):
            if x == 0: unpack(A, D + 2*i, PA + i)
            else:
                A(f"v_dot2c_f32_bf16 {v(D+2*i)}, {v(PA+5*x+i)}, {v(ELO)}\nv_dot2c_f32_bf16 {v(D+2*i+1)}, {v(PA+5*x+i)}, {v(EHI)}")
        if TL:
            A(f"v_max3_u32 {v(t2)}, {v(PA+5*x)}, {v(PA+5*x+1)}, {v(PA+5*x+2) if x == 0 else v(t2)}")
            A(f"v_max3_u32 {v(t2)}, {v(PA+5*x+3)}, {v(PA+5*x+4)}, {v(t2)}")
            if x: A(f"v_max_u32 {v(t2)}, {v(PA+5*x+2)}, {v(t2)}")
    if TL:
        A(f"""
        v_cmp_eq_u32 vcc, -1, {v(t2)}
        s_cbranch_vccz r_ok
        s_sub_u32 {s(sHo)}, {s(sHo)}, {8*32*1280}
        s_add_u32 {s(sCnt)}, {s(sCnt)}, 1
        s_cmp_gt_u32 {s(sCnt)}, {SPIN_LIMIT}
        s_cbranch_scc1 role_abort
        s_sleep {optv.get("rrs", 2)}
        s_branch r_ld
        r_ok:
        """)
        ev(A, 12, t0, sCnt)
    for i in range(5): round2(A, D + 2*i, t0)
    for i in range(5):
        A(f"v_pk_mul_f32 {v(D+2*i,2)}, {v(D+2*i,2)}, {v(PGA+2*i,2)}"); round2(A, D + 2*i, t0)
    for i in range(5):
        A(f"v_pk_add_f32 {v(X+2*i,2)}, {v(X+2*i,2)}, {v(D+2*i,2)}"); round2(A, X + 2*i, O2 + i)
    A(f"s_add_u32 {s(sT0)}, {s(sXo)}, {OFF_X1}")
    st_row(O2, WSR, s(sT0), "sc1")
    ln(O)
    A(f"s_add_u32 {s(sT0)}, {s(sXo)}, {OFF_H2}")
    st_row(O, WSR, s(sT0), "sc1")
    for i in range(5): unpack(A, D + 2*i, O + i)
    A(f"v_pk_mul_f32 {v(T,2)}, {v(D,2)}, {v(PWR,2)}")
    for i in range(1, 5): A(f"v_pk_fma_f32 {v(T,2)}, {v(D+2*i,2)}, {v(PWR+2*i,2)}, {v(T,2)}")
    A(f"v_add_f32 {v(T)}, {v(T)}, {v(T+1)}")
    for i in range(5):
        A(f"v_pk_mul_f32 {v(D+2*i,2)}, {v(D+2*i,2)}, {v(PGB+2*i,2)}"); round2(A, D + 2*i, t0)
    for i in range(5):
        A(f"v_pk_add_f32 {v(D+2*i,2)}, {v(D+2*i,2)}, {v(X+2*i,2)}")
        A(f"v_cvt_pk_bf16_f32 {v(O3+i)}, {v(D+2*i)}, {v(D+2*i+1)}")
    st_row(O3, s(SO, 4), s(sXo), "sc1")
    wave_sum(A, [T], [t0])
    A(f"""
    v_cvt_pk_bf16_f32 {v(T)}, {v(T)}, {v(T)}
    v_lshlrev_b32 {v(T)}, 16, {v(T)}
    v_ashrrev_i32 {v(t0)}, 31, {v(T)}
    v_or_b32 {v(t0)}, 0x80000000, {v(t0)}
    v_xor_b32 {v(T)}, {v(T)}, {v(t0)}
    v_and_b32 {v(T)}, 0xffff0000, {v(T)}
    s_sub_u32 {s(sT0)}, 2047, {s(sRow)}
    v_or_b32 {v(T)}, {s(sT0)}, {v(T)}
    s_lshr_b32 {s(sT0)}, {s(sRow)}, 2
    s_lshl_b32 {s(sT0)}, {s(sT0)}, 7
    s_lshl_b32 {s(sT1)}, {s(S_W)}, 2
    s_add_u32 {s(sT0)}, {s(sT0)}, {s(sT1)}
    s_add_u32 {s(sT0)}, {s(sT0)}, {OFF_R}
    v_mov_b32 {v(t1)}, {s(sT0)}
    s_waitcnt vmcnt(0)
    s_mov_b64 exec, 1
    buffer_store_dword {v(T)}, {v(t1)}, {WSR}, 0 offen sc1
    s_mov_b64 exec, -1
    s_sub_u32 {s(sLim)}, {s(sNeed)}, 3
    s_ashr_i32 {s(sLim)}, {s(sLim)}, 1
    """)
    if SP:
        ev(A, 13, t0)
        A(f"s_cmp_ge_u32 {s(sRc)}, 60\ns_cbranch_scc1 moe_end")
    moe.emit(("chunks", s(sLim)))
    A(f"""
    s_add_u32 {s(sNeed)}, {s(sNeed)}, 3
    s_cmp_lt_u32 {s(sNeed)}, {60 if SP else 64}
    s_cbranch_scc1 r_loop
    """)
    ev(A, 4, t0)
    if SP:
        moe.emit(("chunks", 29))
        Zs = optv.get("msz", "40,16,0").split(",")
        for i in range(3): A(f"s_cmp_lg_u32 {s(sRc)}, {i}\ns_cbranch_scc1 r_cz{i}\ns_sleep {Zs[i]}\nr_cz{i}:")
        moe.emit(("chunks", 30))
    else:
        moe.emit(("chunks", 30))
        A(f"s_cmp_lg_u32 {s(sRc)}, 1\ns_cbranch_scc1 r_c30\ns_sleep {optv.get('msl1', 8)}\nr_c30:")
        moe.emit(("chunks", 31))
        A(f"s_cmp_eq_u32 {s(sRc)}, 0\ns_cbranch_scc1 r_c31\ns_sleep {optv.get('msl2', 16)}\nr_c31:")
        moe.emit(("chunks", 32))
    moe.emit("final")
```

```python
from common import *
from k_boot import *
SCALE = 192 ** -0.5

def gen_sm(A, opt=()):
    sa = Alloc(20, 100)
    sWv, sLH, sQt, sHead, sSeg, sCnt, sT0, sT1, sT2, sQo, sKo, sMo, sPo, sPm, sNeed = [sa() for _ in range(15)]
    sKb, sQb, sMb, sPb, sPmb, sXb, sXl = [sa() for _ in range(7)]
    optv = dict(o.split("=") for o in opt if "=" in o)
    X8 = "x8" in opt; NP = XPN[0]
    va = Alloc(2, 256)
    QF = va(24, 4); KF = va(48, 4); MF = va(24, 4)
    S = va(8, 4); SMm = va(4, 4); BI = va(8, 4)
    PX = va(4, 4); SC = va(2, 2); R2 = va(2, 2); SENT = va(4, 4); vXr = va()
    vL16, vKm, vPp, vCp, vFl, vPg, vCg, t0, t1, t2, PM = [va() for _ in range(11)]
    L = V_LANE; WSR = s(S_WS, 4); C2 = 'c2' in opt
    A(f"""
    s_sub_u32 {s(sWv)}, {s(S_T)}, 26
    s_lshl_b32 {s(sWv)}, {s(sWv)}, 2
    s_add_u32 {s(sWv)}, {s(sWv)}, {s(S_W)}
    """)
    boot_sm(A, sWv, opt)
    ev(A, 1, t0)
    A(f"""
    s_lshr_b32 {s(sLH)}, {s(sWv)}, 1
    s_and_b32 {s(sQt)}, {s(sWv)}, 1
    s_lshl_b32 {s(sHead)}, {s(S_X)}, 2
    s_add_u32 {s(sHead)}, {s(sHead)}, {s(sLH)}
    v_lshlrev_b32 {v(vL16)}, 4, {v(L)}
    ; KM lane address: (g*8 + 2(i>>2) + (i&1))*16  | c2: (g*16 + 4(i>>2) + (i&1))*16
    v_bfe_u32 {v(t0)}, {v(L)}, 2, 2
    v_and_b32 {v(t1)}, 1, {v(L)}
    v_lshl_add_u32 {v(t0)}, {v(t0)}, {2 if C2 else 1}, {v(t1)}
    v_lshrrev_b32 {v(t1)}, 4, {v(L)}
    v_lshl_add_u32 {v(t0)}, {v(t1)}, {4 if C2 else 3}, {v(t0)}
    v_lshlrev_b32 {v(vKm)}, 4, {v(t0)}
    v_and_b32 {v(t0)}, 15, {v(L)}
    s_lshl_b32 {s(sT0)}, {s(sQt)}, 4
    v_add_u32 {v(t0)}, {s(sT0)}, {v(t0)}
    v_lshlrev_b32 {v(t1)}, 2, {v(t1)}
    v_sub_u32 {v(t0)}, {v(t0)}, {v(t1)}
    v_mov_b32 {v(t1)}, 0
    v_mov_b32 {v(t2)}, {f32bits(-1e30)}
    """)
    for e in range(8):
        k = (e & 3) + 16 * (e >> 2)
        A(f"v_cmp_le_i32 vcc, {k}, {v(t0)}\nv_cndmask_b32 {v(BI+e)}, {v(t2)}, {v(t1)}, vcc")
    A(f"""
    v_mov_b32 {v(SC)}, {f32bits(SCALE)}
    v_mov_b32 {v(SC+1)}, {f32bits(SCALE)}
    s_lshl_b32 {s(sT0)}, {s(S_X)}, 8
    v_lshl_add_u32 {v(vPp)}, {v(L)}, 2, {s(sT0)}
    v_add_u32 {v(vCp)}, {CPROG}, {v(vPp)}
    s_mul_i32 {s(sT1)}, {s(sLH)}, 12
    v_add_u32 {v(vPp)}, {s(sT1)}, {v(vPp)}
    s_lshl_b32 {s(sT1)}, {s(sWv)}, 2
    s_add_u32 {s(sT0)}, {s(sT0)}, {s(sT1)}
    s_add_u32 {s(sT0)}, {s(sT0)}, {SPROG}
    v_mov_b32 {v(vFl)}, {s(sT0)}
    s_lshl_b32 {s(sT2)}, {s(S_X)}, 22
    s_add_u32 {s(sT2)}, {s(sT2)}, {OFF_RING}
    s_mul_i32 {s(sKb)}, {s(sLH)}, 12288
    s_add_u32 {s(sKb)}, {s(sKb)}, {s(sT2)}
    s_mul_i32 {s(sT0)}, {s(sQt)}, 6144
    s_add_u32 {s(sQb)}, {s(sKb)}, {s(sT0)}
    s_add_u32 {s(sKb)}, {s(sKb)}, {QKV_MAT}
    s_mul_i32 {s(sMb)}, {s(sLH)}, 3072
    s_add_u32 {s(sMb)}, {s(sMb)}, {s(sT2)}
    s_add_u32 {s(sMb)}, {s(sMb)}, {R_KM}
    s_lshl_b32 {s(sT0)}, {s(sQt)}, 10
    s_add_u32 {s(sT2)}, {s(sT2)}, {s(sT0)}
    s_lshl_b32 {s(sPb)}, {s(sLH)}, 11
    s_add_u32 {s(sPb)}, {s(sPb)}, {s(sT2)}
    s_add_u32 {s(sPb)}, {s(sPb)}, {R_PT}
    s_lshl_b32 {s(sPmb)}, {s(sLH)}, 2
    s_add_u32 {s(sPmb)}, {s(sPmb)}, {s(sT2)}
    s_add_u32 {s(sPmb)}, {s(sPmb)}, {R_PM}
    s_mov_b32 {s(sNeed)}, 1
    v_mov_b32 {v(vPg)}, 0
    s_lshl_b32 {s(sXb)}, {s(sWv)}, 13
    s_lshl_b32 {s(sT0)}, {s(S_X)}, 8
    s_add_u32 {s(sXb)}, {s(sXb)}, {s(sT0)}
    s_add_u32 {s(sXb)}, {s(sXb)}, {OFF_XP}
    s_cmp_lt_u32 {s(sWv)}, 4
    s_cselect_b32 {s(sXl)}, {20*NP//8*8*8192}, 0
    v_lshrrev_b32 {v(t0)}, 4, {v(L)}
    v_lshlrev_b32 {v(t0)}, 11, {v(t0)}
    v_and_b32 {v(t1)}, 15, {v(L)}
    v_lshl_add_u32 {v(vXr)}, {v(t1)}, 4, {v(t0)}
    v_mov_b32 {v(SENT)}, -1
    v_mov_b32 {v(SENT+1)}, -1
    v_mov_b32 {v(SENT+2)}, -1
    v_mov_b32 {v(SENT+3)}, -1
    s_waitcnt vmcnt(0)
    """)
    g0_wait(A, t0, sCnt, slp=8)
    PR = Prof(A, 'prof' in opt and 'cprof' not in opt, sa, 7)
    A("sm_loop:")
    PR.stamp(0)
    A(f"""
    s_sub_u32 {s(sSeg)}, {s(sNeed)}, 1
    s_and_b32 {s(sT0)}, {s(sSeg)}, 7
    s_mul_i32 {s(sT0)}, {s(sT0)}, {QS}
    s_add_u32 {s(sKo)}, {s(sKb)}, {s(sT0)}
    s_add_u32 {s(sQo)}, {s(sQb)}, {s(sT0)}
    s_and_b32 {s(sT0)}, {s(sSeg)}, 3
    s_mul_i32 {s(sT0)}, {s(sT0)}, {S4}
    s_add_u32 {s(sMo)}, {s(sMb)}, {s(sT0)}
    s_add_u32 {s(sPo)}, {s(sPb)}, {s(sT0)}
    s_add_u32 {s(sPm)}, {s(sPmb)}, {s(sT0)}
    """)
    poll_ge(A, vPg, vPp, s(sNeed), 0x7007, sCnt, "role_abort", first=False, slp=4)
    PR.stamp(1)
    VM = Cnt(A, "vmcnt", 63)
    A(f"s_add_u32 {s(sT0)}, {s(sKo)}, 4096\ns_add_u32 {s(sT1)}, {s(sKo)}, 8192\ns_add_u32 {s(sT2)}, {s(sQo)}, 4096")
    for kk in range(6):
        VM.issue(f"buffer_load_dwordx4 {v(QF+kk*4,4)}, {v(vL16)}, {WSR}, {s([sQo, sT2][kk // 4])} offen offset:{(kk % 4)*1024} sc1")
        for kt in range(2):
            f = kt * 6 + kk
            VM.issue(f"buffer_load_dwordx4 {v(KF+f*4,4)}, {v(vL16)}, {WSR}, {s([sKo, sT0, sT1][f // 4])} offen offset:{(f % 4)*1024} sc1", kk)
    VM.issue(f"buffer_load_dword {v(vPg)}, {v(vPp)}, {WSR}, 0 offen sc1")
    for kk in range(6):
        VM.wait(kk)
        for kt in range(2):
            cc = "0" if kk == 0 else v(S + 4*kt, 4)
            A(f"v_mfma_f32_16x16x32_bf16 {v(S+4*kt,4)}, {v(KF+(kt*6+kk)*4,4)}, {v(QF+kk*4,4)}, {cc}")
    for i in range(4): round2(A, S + 2*i, t0)
    for i in range(4):
        A(f"v_pk_fma_f32 {v(S+2*i,2)}, {v(S+2*i,2)}, {v(SC,2)}, {v(BI+2*i,2)}"); round2(A, S + 2*i, t0)
    A(f"""
    v_max3_f32 {v(t2)}, {v(S)}, {v(S+1)}, {v(S+2)}
    v_max3_f32 {v(t2)}, {v(t2)}, {v(S+3)}, {v(S+4)}
    v_max3_f32 {v(t2)}, {v(t2)}, {v(S+5)}, {v(S+6)}
    v_max_f32 {v(t2)}, {v(t2)}, {v(S+7)}
    """)
    A(f"s_cmp_eq_u32 {s(sNeed)}, 6\ns_cbranch_scc1 sm_boot2\nsm_b2r:")
    PR.stamp(2)
    poll_ge(A, vCg, vCp, s(sNeed), (1 << 48) - 1, sCnt, "role_abort", slp=2)
    PR.stamp(3)
    for kk in range(6):
        A(f"buffer_load_dwordx4 {v(MF+kk*4,4)}, {v(vKm)}, {WSR}, {s(sMo)} offen offset:{(kk>>1)*1024 + (kk&1)*32 if C2 else kk*512} sc1")
    for kk in range(6):
        cc = "0" if kk == 0 else v(SMm, 4)
        A(f"s_waitcnt vmcnt({5-kk})\nv_mfma_f32_16x16x32_bf16 {v(SMm,4)}, {v(MF+kk*4,4)}, {v(QF+kk*4,4)}, {cc}")
    PR.stamp(4)
    if X8:
        A(f"s_cmp_gt_u32 {s(sSeg)}, 57\ns_cbranch_scc1 sm_nr")
        A(f"""
        s_add_u32 {s(sT0)}, {s(sSeg)}, 5
        s_and_b32 {s(sT1)}, {s(sT0)}, 4
        s_lshl_b32 {s(sT1)}, {s(sT1)}, 20
        s_and_b32 {s(sT0)}, {s(sT0)}, 3
        s_mul_i32 {s(sT0)}, {s(sT0)}, {XP_SLOT*NP}
        s_add_u32 {s(sT0)}, {s(sT0)}, {s(sT1)}
        s_add_u32 {s(sT0)}, {s(sT0)}, {s(sXb)}
        s_add_u32 {s(sT1)}, {s(sT0)}, {s(sXl)}
        """)
        for i in range(20 * NP // 8):
            A(f"buffer_store_dwordx4 {v(SENT,4)}, {v(vXr)}, {WSR}, {s(sT0)} offen sc1\ns_add_u32 {s(sT0)}, {s(sT0)}, {8*8192}")
        if NP % 2: A(f"buffer_store_dwordx4 {v(SENT,4)}, {v(vXr)}, {WSR}, {s(sT1)} offen sc1")
        A("sm_nr:")
    round2(A, SMm, t0)
    A(f"v_pk_mul_f32 {v(SMm,2)}, {v(SMm,2)}, {v(SC,2)}"); round2(A, SMm, t0)
    A(f"v_max3_f32 {v(t2)}, {v(t2)}, {v(SMm)}, {v(SMm+1)}")
    def xg(op):
        for sw in (16, 32):
            A(f"v_mov_b32 {v(t1)}, {v(t2)}\nv_permlane{sw}_swap_b32 {v(t2)}, {v(t1)}\nv_{op}_f32 {v(t2)}, {v(t2)}, {v(t1)}")
    xg("max")
    LE = f32bits(1.4426950408889634)
    E = [S + i for i in range(8)] + [SMm, SMm + 1]
    for e in E: A(f"v_sub_f32 {v(e)}, {v(e)}, {v(t2)}")
    for e in E: A(f"v_mul_f32 {v(e)}, {LE}, {v(e)}")
    for e in E: A(f"v_exp_f32 {v(e)}, {v(e)}")
    A(f"""
    v_pk_add_f32 {v(R2,2)}, {v(S,2)}, {v(S+2,2)}
    v_pk_add_f32 {v(SMm+2,2)}, {v(S+4,2)}, {v(S+6,2)}
    v_pk_add_f32 {v(R2,2)}, {v(R2,2)}, {v(SMm,2)}
    v_pk_add_f32 {v(R2,2)}, {v(R2,2)}, {v(SMm+2,2)}
    v_add_f32 {v(t2)}, {v(R2)}, {v(R2+1)}
    """)
    xg("add")
    A(f"v_rcp_f32 {v(R2)}, {v(t2)}\nv_mov_b32 {v(R2+1)}, {v(R2)}")
    for i in range(4):
        A(f"v_pk_mul_f32 {v(S+2*i,2)}, {v(S+2*i,2)}, {v(R2,2)}\nv_cvt_pk_bf16_f32 {v(PX+i)}, {v(S+2*i)}, {v(S+2*i+1)}")
    A(f"""
    v_pk_mul_f32 {v(SMm,2)}, {v(SMm,2)}, {v(R2,2)}
    buffer_store_dwordx4 {v(PX,4)}, {v(vL16)}, {WSR}, {s(sPo)} offen
    v_cvt_pk_bf16_f32 {v(PM)}, {v(SMm)}, {v(SMm+1)}
    buffer_store_dword {v(PM)}, {v(vL16)}, {WSR}, {s(sPm)} offen
    v_mov_b32 {v(t2)}, {s(sNeed)}
    s_add_u32 {s(sNeed)}, {s(sNeed)}, 1
    """)
    PR.stamp(5)
    A(f"""
    s_waitcnt vmcnt(0)
    buffer_store_dword {v(t2)}, {v(vFl)}, {WSR}, 0 offen
    """)
    PR.stamp(6); PR.dump(t0, t1)
    A(f"""
    s_cmp_le_u32 {s(sNeed)}, 64
    s_cbranch_scc1 sm_loop
    """)
    ev(A, 4, t0)
    A("s_endpgm\nsm_boot2:")
    boot_sm2(A, sWv, sT0, sT1, MF, vL16, t0)
    A("s_branch sm_b2r")
```

```python
from common import *
from k_boot import *
SCALE = 192 ** -0.5

def gen_sm(A, opt=()):
    optv = dict(o.split("=") for o in opt if "=" in o)
    sa = Alloc(21, 100)
    sSeg, sCnt, sT0, sT1, sT2, sT3, sQo, sKo, sMo, sPo, sPm, sNeed = [sa() for _ in range(12)]
    sQb, sMb, sPb, sPmb, sAt = [sa() for _ in range(5)]
    va = Alloc(2, 256)
    QF = va(48, 4); KF = va(48, 4); MF = va(24, 4)
    S = [va(8, 4), va(8, 4)]; SMm = [va(4, 4), va(4, 4)]; BI = va(4, 4)
    PX = [va(4, 4), va(4, 4)]; SC = va(2, 2); R2 = [va(2, 2), va(2, 2)]
    vL16, vKm, vPp, vFl, vPg, t0, t1 = [va() for _ in range(7)]
    T1, T2, PM = [va(), va()], [va(), va()], [va(), va()]
    vL128, vTd = va(), va()
    L = V_LANE; WSR = s(S_WS, 4)
    ev(A, 1, t0)
    A(f"""
    v_lshlrev_b32 {v(vL16)}, 4, {v(L)}
    v_bfe_u32 {v(t0)}, {v(L)}, 2, 2
    v_and_b32 {v(t1)}, 1, {v(L)}
    v_lshl_add_u32 {v(t0)}, {v(t0)}, 1, {v(t1)}
    v_lshrrev_b32 {v(t1)}, 4, {v(L)}
    v_lshl_add_u32 {v(t0)}, {v(t1)}, 3, {v(t0)}
    v_lshlrev_b32 {v(vKm)}, 4, {v(t0)}
    v_and_b32 {v(t0)}, 15, {v(L)}
    v_lshlrev_b32 {v(t1)}, 2, {v(t1)}
    v_sub_u32 {v(t0)}, {v(t0)}, {v(t1)}
    v_mov_b32 {v(t1)}, 0
    v_mov_b32 {v(vPg)}, {f32bits(-1e30)}
    """)
    for e in range(4):
        A(f"v_cmp_le_i32 vcc, {e}, {v(t0)}\nv_cndmask_b32 {v(BI+e)}, {v(vPg)}, {v(t1)}, vcc")
    A(f"""
    v_mov_b32 {v(SC)}, {f32bits(SCALE)}
    v_mov_b32 {v(SC+1)}, {f32bits(SCALE)}
    v_mov_b32 {v(PX[0]+2)}, 0
    v_mov_b32 {v(PX[0]+3)}, 0
    s_lshl_b32 {s(sT0)}, {s(S_X)}, 8
    s_lshl_b32 {s(sT1)}, {s(S_W)}, 6
    s_add_u32 {s(sT1)}, {s(sT1)}, {s(sT0)}
    v_and_b32 {v(t0)}, 15, {v(L)}
    v_lshl_add_u32 {v(vPp)}, {v(t0)}, 2, {s(sT1)}
    s_lshl_b32 {s(sT1)}, {s(S_W)}, 2
    s_add_u32 {s(sT0)}, {s(sT0)}, {s(sT1)}
    s_add_u32 {s(sT0)}, {s(sT0)}, {CPROG + 96}
    v_mov_b32 {v(vFl)}, {s(sT0)}
    s_lshl_b32 {s(sT2)}, {s(S_X)}, 22
    s_add_u32 {s(sT2)}, {s(sT2)}, {OFF_RING}
    s_mul_i32 {s(sQb)}, {s(S_W)}, 12288
    s_add_u32 {s(sQb)}, {s(sQb)}, {s(sT2)}
    s_mul_i32 {s(sMb)}, {s(S_W)}, 3072
    s_add_u32 {s(sMb)}, {s(sMb)}, {s(sT2)}
    s_add_u32 {s(sMb)}, {s(sMb)}, {R5_KM}
    s_lshl_b32 {s(sPb)}, {s(S_W)}, 11
    s_add_u32 {s(sPb)}, {s(sPb)}, {s(sT2)}
    s_add_u32 {s(sPb)}, {s(sPb)}, {R5_PT}
    s_add_u32 {s(sPmb)}, {s(sT1)}, {s(sT2)}
    s_add_u32 {s(sPmb)}, {s(sPmb)}, {R5_PM}
    s_mov_b32 {s(sNeed)}, 1
    v_lshlrev_b32 {v(vL128)}, 7, {v(L)}
    s_lshl_b32 {s(sAt)}, {s(S_X)}, 2
    s_add_u32 {s(sAt)}, {s(sAt)}, {s(S_W)}
    s_mul_i32 {s(sAt)}, {s(sAt)}, 10240
    s_add_u32 {s(sAt)}, {s(sAt)}, {OFF_AOP}
    v_mov_b32 {v(vPg)}, 0
    s_waitcnt vmcnt(0)
    """)
    if "b0" in opt: A("s_branch sm_boot2\nsm_b2r:")
    g0_wait(A, t0, sCnt, slp=8)
    PR = Prof(A, 'prof' in opt and 'cprof' not in opt, sa, 7)
    A("sm_loop:")
    PR.stamp(0)
    A(f"""
    s_sub_u32 {s(sSeg)}, {s(sNeed)}, 1
    s_and_b32 {s(sT0)}, {s(sSeg)}, 3
    s_mul_i32 {s(sT0)}, {s(sT0)}, {QS}
    s_add_u32 {s(sQo)}, {s(sQb)}, {s(sT0)}
    s_add_u32 {s(sKo)}, {s(sQo)}, {QKV_MAT}
    s_and_b32 {s(sT0)}, {s(sSeg)}, 3
    s_mul_i32 {s(sT0)}, {s(sT0)}, {S5}
    s_add_u32 {s(sMo)}, {s(sMb)}, {s(sT0)}
    s_add_u32 {s(sPo)}, {s(sPb)}, {s(sT0)}
    s_add_u32 {s(sPm)}, {s(sPmb)}, {s(sT0)}
    """)
    poll_ge(A, vPg, vPp, s(sNeed), 0xfff, sCnt, "role_abort", first=False, slp=4)
    PR.stamp(1)
    VM = Cnt(A, "vmcnt", 63)
    A(f"s_add_u32 {s(sT0)}, {s(sKo)}, 4096\ns_add_u32 {s(sT1)}, {s(sKo)}, 8192\ns_add_u32 {s(sT2)}, {s(sQo)}, 4096\ns_add_u32 {s(sT3)}, {s(sQo)}, 8192")
    for kk in range(6):
        for R_, so in ((QF, [sQo, sT2, sT3]), (KF, [sKo, sT0, sT1])):
            for tt in range(2):
                f = tt * 6 + kk
                VM.issue(f"buffer_load_dwordx4 {v(R_+f*4,4)}, {v(vL16)}, {WSR}, {s(so[f // 4])} offen offset:{(f % 4)*1024} sc1", kk)
    TL = [(0, 0), (1, 0), (1, 1)]
    for kk in range(6):
        VM.wait(kk)
        for qt, kt in TL:
            cc = "0" if kk == 0 else v(S[qt] + 4*kt, 4)
            A(f"v_mfma_f32_16x16x32_bf16 {v(S[qt]+4*kt,4)}, {v(KF+(kt*6+kk)*4,4)}, {v(QF+(qt*6+kk)*4,4)}, {cc}")
    PRS = [(qt, S[qt] + 4*kt + 2*h, BI + 2*h if qt == kt else None) for qt, kt in TL for h in range(2)]
    for qt, x, b in PRS: round2(A, x, T1[qt])
    for qt, x, b in PRS:
        A(f"v_pk_fma_f32 {v(x,2)}, {v(x,2)}, {v(SC,2)}, {v(b,2)}" if b else f"v_pk_mul_f32 {v(x,2)}, {v(x,2)}, {v(SC,2)}"); round2(A, x, T1[qt])
    A(f"""
    v_max3_f32 {v(T2[0])}, {v(S[0])}, {v(S[0]+1)}, {v(S[0]+2)}
    v_max3_f32 {v(T2[1])}, {v(S[1])}, {v(S[1]+1)}, {v(S[1]+2)}
    v_max_f32 {v(T2[0])}, {v(T2[0])}, {v(S[0]+3)}
    v_max3_f32 {v(T2[1])}, {v(T2[1])}, {v(S[1]+3)}, {v(S[1]+4)}
    v_max3_f32 {v(T2[1])}, {v(T2[1])}, {v(S[1]+5)}, {v(S[1]+6)}
    v_max_f32 {v(T2[1])}, {v(T2[1])}, {v(S[1]+7)}
    """)
    B2 = int(optv.get("b2", 0))
    if B2: A(f"s_sub_u32 {s(sT2)}, {s(sNeed)}, {B2}\ns_cmp_lt_u32 {s(sT2)}, 8\ns_cbranch_scc1 sm_boot2\nsm_b2r:")
    elif "b1" in opt: A("sm_b2r:")
    elif "b0" not in opt: A(f"s_cmp_eq_u32 {s(sNeed)}, 6\ns_cbranch_scc1 sm_boot2\nsm_b2r:")
    PR.stamp(2)
    poll_ge(A, vPg, vPp, s(sNeed), 0x7000, sCnt, "role_abort", slp=2)
    PR.stamp(3)
    for kk in range(6):
        A(f"buffer_load_dwordx4 {v(MF+kk*4,4)}, {v(vKm)}, {WSR}, {s(sMo)} offen offset:{kk*512} sc1")
    for kk in range(6):
        A(f"s_waitcnt vmcnt({5-kk})")
        for qt in range(2):
            cc = "0" if kk == 0 else v(SMm[qt], 4)
            A(f"v_mfma_f32_16x16x32_bf16 {v(SMm[qt],4)}, {v(MF+kk*4,4)}, {v(QF+(qt*6+kk)*4,4)}, {cc}")
    PR.stamp(4)
    def both(f):
        a_, b_ = [[x for x in f(q).split("\n") if x.strip()] for q in range(2)]
        for x, y in zip(a_, b_): A(x); A(y)
    rnd = lambda d, t: f"v_cvt_pk_bf16_f32 {v(t)}, {v(d)}, {v(d+1)}\nv_lshlrev_b32 {v(d)}, 16, {v(t)}\nv_and_b32 {v(d+1)}, 0xffff0000, {v(t)}"
    xg = lambda q, op: "\n".join(f"v_mov_b32 {v(T1[q])}, {v(T2[q])}\nv_permlane{sw}_swap_b32 {v(T2[q])}, {v(T1[q])}\nv_{op}_f32 {v(T2[q])}, {v(T2[q])}, {v(T1[q])}" for sw in (16, 32))
    both(lambda q: f"""{rnd(SMm[q], T1[q])}
    v_pk_mul_f32 {v(SMm[q],2)}, {v(SMm[q],2)}, {v(SC,2)}
    {rnd(SMm[q], T1[q])}
    v_max3_f32 {v(T2[q])}, {v(T2[q])}, {v(SMm[q])}, {v(SMm[q]+1)}
    {xg(q, "max")}""")
    LE = f32bits(1.4426950408889634)
    E = [(0, S[0] + i) for i in range(4)] + [(1, S[1] + i) for i in range(8)] + [(q, SMm[q] + i) for q in range(2) for i in range(2)]
    for q, e in E: A(f"v_sub_f32 {v(e)}, {v(e)}, {v(T2[q])}")
    for q, e in E: A(f"v_mul_f32 {v(e)}, {LE}, {v(e)}")
    for q, e in E: A(f"v_exp_f32 {v(e)}, {v(e)}")
    A(f"""
    v_pk_add_f32 {v(R2[0],2)}, {v(S[0],2)}, {v(S[0]+2,2)}
    v_pk_add_f32 {v(R2[1],2)}, {v(S[1],2)}, {v(S[1]+2,2)}
    v_pk_add_f32 {v(SMm[1]+2,2)}, {v(S[1]+4,2)}, {v(S[1]+6,2)}
    v_pk_add_f32 {v(R2[0],2)}, {v(R2[0],2)}, {v(SMm[0],2)}
    v_pk_add_f32 {v(R2[1],2)}, {v(R2[1],2)}, {v(SMm[1],2)}
    v_pk_add_f32 {v(R2[1],2)}, {v(R2[1],2)}, {v(SMm[1]+2,2)}
    """)
    both(lambda q: f"""v_add_f32 {v(T2[q])}, {v(R2[q])}, {v(R2[q]+1)}
    {xg(q, "add")}
    v_rcp_f32 {v(R2[q])}, {v(T2[q])}
    v_mov_b32 {v(R2[q]+1)}, {v(R2[q])}""")
    for q in range(2):
        for i in range(2 + 2 * q):
            A(f"v_pk_mul_f32 {v(S[q]+2*i,2)}, {v(S[q]+2*i,2)}, {v(R2[q],2)}\nv_cvt_pk_bf16_f32 {v(PX[q]+i)}, {v(S[q]+2*i)}, {v(S[q]+2*i+1)}")
        A(f"""
        v_pk_mul_f32 {v(SMm[q],2)}, {v(SMm[q],2)}, {v(R2[q],2)}
        buffer_store_dwordx4 {v(PX[q],4)}, {v(vL16)}, {WSR}, {s(sPo)} offen offset:{q*1024}
        v_cvt_pk_bf16_f32 {v(PM[q])}, {v(SMm[q])}, {v(SMm[q]+1)}
        buffer_store_dword {v(PM[q])}, {v(vL16)}, {WSR}, {s(sPm)} offen offset:{q*1024}
        """)
    A(f"v_mov_b32 {v(t0)}, {s(sNeed)}\ns_add_u32 {s(sNeed)}, {s(sNeed)}, 1")
    PR.stamp(5)
    A(f"""
    s_waitcnt vmcnt(0)
    buffer_store_dword {v(t0)}, {v(vFl)}, {WSR}, 0 offen
    """)
    if "at" in optv:
        A(f"""
        buffer_load_dword {v(vTd)}, {v(vL128)}, {WSR}, {s(sAt)} offen {optv['at'].replace('+', ' ')}
        buffer_load_dword {v(vTd)}, {v(vL128)}, {WSR}, {s(sAt)} offen offset:2048 {optv['at'].replace('+', ' ')}
        s_add_u32 {s(sAt)}, {s(sAt)}, {8*32*1280}
        """)
    PR.stamp(6); PR.dump(T1[0], T1[1])
    A(f"""
    s_cmp_le_u32 {s(sNeed)}, 64
    s_cbranch_scc1 sm_loop
    """)
    ev(A, 4, t0)
    A("s_endpgm\nsm_boot2:")
    if B2:
        for i in range(4): A(f"v_mov_b32 {v(MF+i)}, -1")
        A(f"""
        s_lshl_b32 {s(sT0)}, {s(S_X)}, 2
        s_add_u32 {s(sT0)}, {s(sT0)}, {s(S_W)}
        s_mul_i32 {s(sT1)}, {s(sT0)}, {30*1024}
        s_lshl_b32 {s(sT3)}, {s(sT2)}, 12
        s_min_u32 {s(sT3)}, {s(sT3)}, {26*1024}
        s_add_u32 {s(sT1)}, {s(sT1)}, {s(sT3)}
        s_add_u32 {s(sT1)}, {s(sT1)}, {OFF_YP}
        """)
        for i in range(4): A(f"buffer_store_dwordx4 {v(MF,4)}, {v(vL16)}, {WSR}, {s(sT1)} offen offset:{1024*i} sc1")
        A(f"""
        s_cmp_lg_u32 {s(sT2)}, 7
        s_cbranch_scc1 sm_b2r
        s_lshl_b32 {s(sT0)}, {s(sT0)}, 11
        s_add_u32 {s(sT0)}, {s(sT0)}, {OFF_R}
        buffer_store_dwordx4 {v(MF,4)}, {v(vL16)}, {WSR}, {s(sT0)} offen sc1
        buffer_store_dwordx4 {v(MF,4)}, {v(vL16)}, {WSR}, {s(sT0)} offen offset:1024 sc1
        """)
        g_add(A, G2, t0); g_add(A, G2, t0)
    for h in range(2 * (not B2)):
        A(f"s_add_u32 {s(sT2)}, {s(S_W)}, {4*h}")
        boot_sm2(A, sT2, sT0, sT1, MF, vL16, t0)
    A("s_branch sm_b2r")
```

```python
from common import *
from k_boot import *

def gen_ua(A, opt=()):
    optv = dict(o.split("=") for o in opt if "=" in o)
    UFAST = int(optv.get('ufast', 2))
    DLY = 4
    L_PX, L_PM, L_WM = 131072, 131072 + 8192, 131072 + 10240
    TNT = 'nt' if 'tnt' in opt else ''
    T0_ = '; ' if 't0' not in opt else ''
    sa = Alloc(20, 100)
    SO = sa(4, 4)
    sU, sHead, sI, sCnt, sT0, sT1, sT2, sM0, sVo, sUo, sNeed, sCp = [sa() for _ in range(12)]
    sAP, sAW, sAM, sAO, sFa, sSl, sMP, sMM, sMW, sV1, sV2 = [sa() for _ in range(11)]
    sAMb, sAPb, sAWb, sVb, sUb, sPre = [sa() for _ in range(6)]
    UP = int(optv.get('up', 0))
    va = Alloc(2, 256)
    W = 256
    def Wf(ct, kk): return W + (ct * 6 + kk) * 4
    VF = va(48, 4)
    ACC = va(32, 4)
    PK = va(8, 4)
    UF = va(32, 4)
    PXF = va(32, 4)
    WMF = va(8, 4)
    PMF = va(8, 4)
    AC2 = va(16, 4)
    OUT = va(8, 4)
    vL16, vWa, vOa, vFl, vFa, vPp, vSp, vPg, vSg, vSt, t0, t1, t2, vTc, vTd = [va() for _ in range(15)]
    vUr, vUw, vUrb, vUwb = va(2), va(2), va(2), va(2)
    vRd = va(4)
    L = V_LANE; WSR = s(S_WS, 4)
    srd(A, SO, "wo"); srd(A, 88, "c"); srd(A, 92, "wmod")
    A(f"""
    s_mul_i32 {s(sU)}, {s(S_X)}, 5
    s_add_u32 {s(sU)}, {s(sU)}, {s(S_T)}
    s_sub_u32 {s(sU)}, {s(sU)}, 21
    s_cmp_ge_u32 {s(sU)}, {0 if 'nomod' in opt else 20}
    s_cbranch_scc1 ua_nm
    s_waitcnt lgkmcnt(0)
    """)
    mod_round(A, sU, 88, 92, GM, "a")
    ev(A, 5, t0)
    A("s_barrier\ns_branch ua_md\nua_nm:")
    for _ in range(int(optv.get("uw", 0))): A("s_sleep 100")
    A(f"""
    ua_md:
    s_sub_u32 {s(sU)}, {s(S_T)}, 21
    s_lshl_b32 {s(sHead)}, {s(S_X)}, 2
    s_add_u32 {s(sHead)}, {s(sHead)}, {s(S_W)}
    s_lshl_b32 {s(sCp)}, {s(sU)}, 2
    s_add_u32 {s(sCp)}, {s(sCp)}, {s(S_W)}
    """)
    A(f"""
    s_lshl_b32 {s(sT2)}, {s(S_X)}, 22
    s_mul_i32 {s(sUb)}, {s(S_W)}, 40960
    s_lshl_b32 {s(sT0)}, {s(sU)}, 13
    s_add_u32 {s(sUb)}, {s(sUb)}, {s(sT0)}
    s_add_u32 {s(sUb)}, {s(sUb)}, {s(sT2)}
    s_add_u32 {s(sUb)}, {s(sUb)}, {OFF_RING + R_U}
    s_add_u32 {s(sT0)}, {s(sUb)}, {S4}
    v_lshlrev_b32 {v(vTc)}, 7, {v(L)}
    """)
    vSrc = VF
    panel_src_off(A, vSrc, t0, L, 1280)
    A(f"s_mul_i32 {s(sM0)}, {s(S_W)}, 40960")
    for t in range(4):
        panel_rd_addr(A, vRd + t, t0, t1, L, t)
        A(f"v_add_u32 {v(vRd+t)}, {s(sM0)}, {v(vRd+t)}")
    A(f"""
    s_mul_i32 {s(sT2)}, {s(sHead)}, {192*1280}
    s_lshl_b32 {s(sT0)}, {s(sU)}, 8
    s_add_u32 {s(sT2)}, {s(sT2)}, {s(sT0)}
    s_waitcnt lgkmcnt(0)
    """)
    def dma(panel, n, slot):
        A(f"""
        s_add_u32 m0, {s(sM0)}, {slot*1024}
        s_add_u32 {s(sT0)}, {s(sT2)}, {panel*128 + n*8*1280}
        buffer_load_dwordx4 {v(vSrc)}, {s(SO,4)}, {s(sT0)} offen nt lds
        """)
    UD = int(optv.get("udep", 4))
    def unit(u):
        for n in range(4): dma(u // 6, (u % 6) * 4 + n, (u % 10) * 4 + n)
    for u in range(UD): unit(u)
    for u in range(12):
        A(f"s_waitcnt vmcnt({4 * min(UD - 1, 11 - u)})")
        if u + UD < 12: unit(u + UD)
        for t in range(4): panel_read_frag(A, Wf(4 * (u // 6) + t, u % 6), vRd + t, (u % 10) * 4096)
        A("s_waitcnt lgkmcnt(8)")
    A("s_waitcnt lgkmcnt(0)")
    ev(A, 1, t0)
    if "wonly" in opt: A("s_endpgm")
    A(f"""
    s_barrier
    v_lshlrev_b32 {v(vL16)}, 4, {v(L)}
    v_add_u32 {v(vSt)}, {L_PX}, {v(vL16)}
    v_bfe_u32 {v(t0)}, {v(L)}, 2, 1
    v_and_b32 {v(t1)}, 3, {v(L)}
    v_lshl_add_u32 {v(t0)}, {v(t0)}, 3, {v(t1)}
    v_lshrrev_b32 {v(t1)}, 4, {v(L)}
    v_lshl_add_u32 {v(t0)}, {v(t1)}, 4, {v(t0)}
    v_lshlrev_b32 {v(t0)}, 4, {v(t0)}
    v_bfe_u32 {v(t1)}, {v(L)}, 3, 1
    v_mul_u32_u24 {v(t2)}, {1024 + 64}, {v(t1)}
    s_lshl_b32 {s(sT0)}, {s(S_W)}, 11
    v_add3_u32 {v(vUrb)}, {v(t0)}, {v(t2)}, {s(sT0)}
    v_xor_b32 {v(vUrb+1)}, 64, {v(vUrb)}
    s_lshl_b32 {s(sT0)}, {s(S_W)}, 13
    v_add_u32 {v(vUwb)}, {s(sT0)}, {v(vL16)}
    v_xor_b32 {v(vUwb+1)}, 64, {v(vUwb)}
    s_lshr_b32 {s(sT0)}, {s(S_W)}, 1
    s_lshl_b32 {s(sT0)}, {s(sT0)}, 10
    s_and_b32 {s(sT1)}, {s(S_W)}, 1
    s_lshl_b32 {s(sT2)}, {s(sT1)}, 3
    s_add_u32 {s(sT0)}, {s(sT0)}, {s(sT2)}
    s_add_u32 {s(sT0)}, {s(sT0)}, {L_WM}
    v_lshl_add_u32 {v(t0)}, {v(t1)}, 2, {v(t0)}
    v_add_u32 {v(vWa)}, {s(sT0)}, {v(t0)}
    s_lshl_b32 {s(sT0)}, {s(S_W)}, 11
    s_add_u32 {s(sMP)}, {s(sT0)}, {L_PX}
    s_add_u32 {s(sMW)}, {s(sT0)}, {L_WM}
    s_lshl_b32 {s(sT1)}, {s(sT1)}, 10
    s_add_u32 {s(sMM)}, {s(sT1)}, {L_PM}
    s_lshl_b32 {s(sT2)}, {s(S_X)}, 22
    s_add_u32 {s(sT2)}, {s(sT2)}, {OFF_RING}
    s_add_u32 {s(sAMb)}, {s(sT2)}, {s(sT1)}
    s_add_u32 {s(sAMb)}, {s(sAMb)}, {R_PM}
    s_add_u32 {s(sAPb)}, {s(sT2)}, {s(sT0)}
    s_add_u32 {s(sAPb)}, {s(sAPb)}, {R_PT}
    s_mul_i32 {s(sAWb)}, {s(S_W)}, 10240
    s_lshl_b32 {s(sT0)}, {s(sU)}, 11
    s_add_u32 {s(sAWb)}, {s(sAWb)}, {s(sT0)}
    s_add_u32 {s(sAWb)}, {s(sAWb)}, {s(sT2)}
    s_add_u32 {s(sAWb)}, {s(sAWb)}, {R_WM}
    s_mul_i32 {s(sVb)}, {s(S_W)}, 12288
    s_add_u32 {s(sVb)}, {s(sVb)}, {s(sT2)}
    s_add_u32 {s(sVb)}, {s(sVb)}, {2*QKV_MAT}
    s_mov_b32 {s(sVo)}, {s(sVb)}
    v_and_b32 {v(t0)}, 15, {v(L)}
    v_mul_u32_u24 {v(t0)}, 1280, {v(t0)}
    v_lshrrev_b32 {v(t1)}, 4, {v(L)}
    v_lshl_add_u32 {v(vOa)}, {v(t1)}, 4, {v(t0)}
    ; flags
    s_lshl_b32 {s(sT0)}, {s(S_X)}, 8
    v_lshl_add_u32 {v(vPp)}, {v(L)}, 2, {s(sT0)}
    v_add_u32 {v(vSp)}, {SPROG}, {v(vPp)}
    s_mul_i32 {s(sT1)}, {s(S_W)}, 12
    s_add_u32 {s(sT1)}, {s(sT1)}, {PPROG + 24*4}
    v_add_u32 {v(vPp)}, {s(sT1)}, {v(vPp)}
    s_lshl_b32 {s(sT1)}, {s(sCp)}, 2
    s_add_u32 {s(sT0)}, {s(sT0)}, {s(sT1)}
    s_add_u32 {s(sT0)}, {s(sT0)}, {PPROG + 36*4}
    v_mov_b32 {v(vFl)}, {s(sT0)}
    s_lshl_b32 {s(sT0)}, {s(S_X)}, 7
    s_add_u32 {s(sT0)}, {s(sT0)}, {s(sT1)}
    s_add_u32 {s(sFa)}, {s(sT0)}, {OFF_AFL}
    s_add_u32 {s(sT0)}, {s(sT0)}, {OFF_DUMMY}
    v_mov_b32 {v(vFa)}, {s(sT0)}
    s_mul_i32 {s(sAO)}, {s(S_X)}, {32*1280}
    s_lshl_b32 {s(sT0)}, {s(sCp)}, 6
    s_add_u32 {s(sAO)}, {s(sAO)}, {s(sT0)}
    s_add_u32 {s(sAO)}, {s(sAO)}, {OFF_AOP}
    s_mov_b32 {s(sI)}, 0
    s_mov_b32 {s(sNeed)}, 1
    s_mov_b32 {s(sPre)}, 0
    v_mov_b32 {v(vSg)}, 0
    """)
    VB = [VF, 256 + 192]
    PR = Prof(A, 'prof' in opt and 'cprof' not in opt, sa, 8)
    def v_loads(buf):
        A(f"s_add_u32 {s(sV1)}, {s(sVo)}, 4096\ns_add_u32 {s(sV2)}, {s(sVo)}, 8192")
        return [f"buffer_load_dwordx4 {r(buf+f*4,4)}, {v(vL16)}, {WSR}, {s([sVo, sV1, sV2][f // 4])} offen offset:{(f % 4)*1024} sc1" for f in range(12)]
    afl = f"s_mov_b64 exec, 1\nbuffer_store_dword {v(t2)}, {v(vFa)}, {WSR}, 0 offen sc1\ns_mov_b64 exec, -1"
    A(f"""
    s_add_u32 {s(sT0)}, {s(sUb)}, {S4}
    {T0_}buffer_load_dword {v(vTd)}, {v(vTc)}, {WSR}, {s(sUb)} offen sc1 {TNT}
    {T0_}buffer_load_dword {v(vTd)}, {v(vTc)}, {WSR}, {s(sT0)} offen sc1 {TNT}
    s_add_u32 {s(sT0)}, {s(sUb)}, {2*S4}
    s_add_u32 {s(sT1)}, {s(sUb)}, {3*S4}
    {T0_}buffer_load_dword {v(vTd)}, {v(vTc)}, {WSR}, {s(sT0)} offen sc1 {TNT}
    {T0_}buffer_load_dword {v(vTd)}, {v(vTc)}, {WSR}, {s(sT1)} offen sc1 {TNT}
    """)
    g0_wait(A, t0, sCnt)
    poll_ge(A, vPg, vPp, s(sNeed), 0x7, sCnt, "role_abort", slp=2)
    ev(A, 2, t0)
    for x in v_loads(VB[0]): A(x)
    def body(par):
        A(f"""
        ua_loop{par}:
        s_and_b32 {s(sSl)}, {s(sI)}, 3
        s_mul_i32 {s(sT0)}, {s(sSl)}, {S4}
        s_add_u32 {s(sAM)}, {s(sAMb)}, {s(sT0)}
        s_add_u32 {s(sAP)}, {s(sAPb)}, {s(sT0)}
        s_add_u32 {s(sAW)}, {s(sAWb)}, {s(sT0)}
        s_add_u32 {s(sUo)}, {s(sUb)}, {s(sT0)}
        s_lshl_b32 {s(sSl)}, {s(sSl)}, 15
        v_add_u32 {v(vUr)}, {s(sSl)}, {v(vUrb)}
        v_add_u32 {v(vUr+1)}, {s(sSl)}, {v(vUrb+1)}
        v_add_u32 {v(vUw)}, {s(sSl)}, {v(vUwb)}
        v_add_u32 {v(vUw+1)}, {s(sSl)}, {v(vUwb+1)}
        s_cmp_ge_u32 {s(sI)}, {DLY}
        s_cbranch_scc1 ua_ao{par}
        s_waitcnt vmcnt(0)
        s_branch ua_u{par}
        ua_ao{par}:
        s_sub_u32 {s(sNeed)}, {s(sI)}, {DLY-1}
        """)
        PR.stamp(0)
        for lh in range(4):
            for o in range(2):
                A(f"ds_read_b128 {v(UF+(lh*2+o)*4,4)}, {v(vUr+o)} offset:{lh*8192}")
        ao_dma = f"""
        s_mov_b32 m0, {s(sMP)}
        s_nop 0
        buffer_load_dwordx4 {v(vL16)}, {WSR}, {s(sAP)} offen sc1 lds
        buffer_load_dwordx4 {v(vL16)}, {WSR}, {s(sAP)} offen offset:1024 sc1 lds
        s_mov_b32 m0, {s(sMW)}
        buffer_load_dwordx4 {v(vL16)}, {WSR}, {s(sAW)} offen sc1 lds
        buffer_load_dwordx4 {v(vL16)}, {WSR}, {s(sAW)} offen offset:1024 sc1 lds
        s_mov_b32 m0, {s(sMM)}
        buffer_load_dwordx4 {v(vL16)}, {WSR}, {s(sAM)} offen sc1 lds
        """
        if UP > 1: A(f"s_cmp_lg_u32 {s(sPre)}, 0\ns_cbranch_scc1 ua_pre{par}")
        poll_ge(A, vSg, vSp, s(sNeed), 0xff, sCnt, "role_abort", slp=2, first=UP == 0)
        PR.stamp(1)
        A(ao_dma)
        A(f"""
        ua_pre{par}:
        v_mov_b32 {v(vFa)}, {s(sFa)}
        s_mov_b32 {s(sPre)}, 0
        s_add_u32 {s(sFa)}, {s(sFa)}, 1024
        s_add_u32 {s(sT0)}, {s(sAO)}, {16*1280}
        s_waitcnt vmcnt(0) lgkmcnt(0)
        s_barrier
        """)
        PR.stamp(2)
        if PR.on: A("s_waitcnt lgkmcnt(0)")
        LG = Cnt(A, "lgkmcnt", 15)
        for lh in range(4):
            for qt in range(2):
                LG.issue(f"ds_read_b128 {v(PXF+(lh*2+qt)*4,4)}, {v(vSt)} offset:{(lh*2+qt)*1024}", ("p", lh))
        extra = [f"ds_read_b128 {v(PMF+qt*4,4)}, {v(vSt)} offset:{8192 + qt*1024}" for qt in range(2)]
        extra += [f"ds_read_b32 {v(WMF+o*4+lh)}, {v(vWa)} offset:{lh*2048 + o*64}" for o in range(2) for lh in range(4)]
        for lh in range(4):
            LG.wait(("p", lh))
            for qt in range(2):
                for o in range(2):
                    a0 = AC2 + (qt * 2 + o) * 4
                    cc = "0" if lh == 0 else v(a0, 4)
                    A(f"v_mfma_f32_16x16x32_bf16 {v(a0,4)}, {v(UF+(lh*2+o)*4,4)}, {v(PXF+(lh*2+qt)*4,4)}, {cc}")
                    if extra: LG.issue(extra.pop(0))
        A("s_waitcnt lgkmcnt(0)")
        for qt in range(2):
            for o in range(2):
                a0 = AC2 + (qt * 2 + o) * 4
                A(f"v_mfma_f32_16x16x32_bf16 {v(a0,4)}, {v(WMF+o*4,4)}, {v(PMF+qt*4,4)}, {v(a0,4)}")
        A("s_barrier")
        for qt in range(2):
            for o in range(2):
                a0 = AC2 + (qt * 2 + o) * 4
                A(f"v_cvt_pk_bf16_f32 {v(OUT+qt*4+o*2)}, {v(a0)}, {v(a0+1)}")
                A(f"v_cvt_pk_bf16_f32 {v(OUT+qt*4+o*2+1)}, {v(a0+2)}, {v(a0+3)}")
            A(f"buffer_store_dwordx4 {v(OUT+qt*4,4)}, {v(vOa)}, {WSR}, {s(sT0 if qt else sAO)} offen sc1")
        A(f"""
        s_add_u32 {s(sAO)}, {s(sAO)}, {8*32*1280}
        s_cmp_lt_u32 {s(sI)}, 64
        s_cbranch_scc1 ua_u{par}
        s_waitcnt vmcnt(0)
        {afl}
        s_add_u32 {s(sI)}, {s(sI)}, 1
        s_cmp_ge_u32 {s(sI)}, {64 + DLY}
        s_cbranch_scc1 ua_end
        s_branch ua_loop{par}
        ua_u{par}:
        s_add_u32 {s(sNeed)}, {s(sI)}, 2
        s_min_u32 {s(sNeed)}, {s(sNeed)}, 64
        s_cmp_lt_u32 {s(sI)}, {UFAST}
        s_cselect_b32 {s(sNeed)}, 0, {s(sNeed)}
        """)
        PR.stamp(3)
        poll_ge(A, vPg, vPp, s(sNeed), 0x7, sCnt, "role_abort", first=False, slp=4)
        A(f"""
        s_add_u32 {s(sI)}, {s(sI)}, 1
        s_and_b32 {s(sT0)}, {s(sI)}, 7
        s_mul_i32 {s(sT0)}, {s(sT0)}, {QS}
        s_add_u32 {s(sVo)}, {s(sVb)}, {s(sT0)}
        v_mov_b32 {v(t2)}, {s(sI)}
        s_add_u32 {s(sT2)}, {s(sUo)}, 4096
        """)
        VM = Cnt(A, "vmcnt", 63)
        VL = v_loads(VB[par ^ 1])
        V = VB[par]
        def epi(cp):
            E = []
            acc = ACC + (cp & 1) * 16
            for c in range(2):
                ct = 2 * cp + c
                for tt in range(2):
                    a0 = acc + (c * 2 + tt) * 4
                    E.append(f"v_cvt_pk_bf16_f32 {v(PK+4*c+2*tt)}, {v(a0)}, {v(a0+1)}")
                    E.append(f"v_cvt_pk_bf16_f32 {v(PK+4*c+2*tt+1)}, {v(a0+2)}, {v(a0+3)}")
                E.append(f"buffer_store_dwordx4 {v(PK+4*c,4)}, {v(vL16)}, {WSR}, {s(sUo if ct < 4 else sT2)} offen offset:{(ct % 4)*1024}")
                E.append(f"ds_write_b128 {v(vUw+c)}, {v(PK+4*c,4)} offset:{ct*1024}")
            return E
        side = []
        n = 0
        for cp in range(4):
            acc = ACC + (cp & 1) * 16
            if cp == int(optv.get("aflcp", 2)):
                PR.stamp(4); VM.wait("ao"); PR.stamp(5); A(afl); VM.note()
            for kk in range(6):
                if UP > 1 and cp * 6 + kk == int(optv.get("upl", 14)):
                    VM.issue(f"buffer_load_dword {v(vSg)}, {v(vSp)}, {WSR}, 0 offen sc1", "sg")
                if UP > 1 and cp * 6 + kk == int(optv.get("upc", 21)):
                    A(f"""
                    s_sub_u32 {s(sNeed)}, {s(sI)}, {DLY-1}
                    s_and_b32 {s(sT0)}, {s(sI)}, 3
                    s_mul_i32 {s(sT0)}, {s(sT0)}, {S4}
                    s_add_u32 {s(sAM)}, {s(sAMb)}, {s(sT0)}
                    s_add_u32 {s(sAP)}, {s(sAPb)}, {s(sT0)}
                    s_add_u32 {s(sAW)}, {s(sAWb)}, {s(sT0)}
                    """)
                    VM.wait("sg")
                    A(f"""
                    v_cmp_gt_i32 vcc, {s(sNeed)}, {v(vSg)}
                    s_cmp_le_u32 {s(sI)}, {DLY}
                    s_cbranch_scc1 ua_np{par}
                    s_and_b32 vcc_lo, vcc_lo, 0xff
                    s_cbranch_scc1 ua_np{par}
                    s_mov_b32 {s(sPre)}, 1
                    {ao_dma}
                    ua_np{par}:
                    """)
                for c in range(2):
                    for tt in range(2):
                        a0 = acc + (c * 2 + tt) * 4
                        cc = "0" if kk == 0 else v(a0, 4)
                        A(f"v_mfma_f32_16x16x32_bf16 {v(a0,4)}, {r(V+(tt*6+kk)*4,4)}, {r(Wf(2*cp+c,kk),4)}, {cc}")
                        n += 1
                        if n % 4 == 0 and VL: VM.issue(VL.pop(0))
                        elif kk >= 1 and side:
                            x = side.pop(0)
                            if x.startswith("buffer"): VM.issue(x)
                            else: A(x)
            assert not side
            side = epi(cp)
        for x in side: A(x)
        PR.stamp(6)
        A(f"""
        buffer_load_dword {v(vPg)}, {v(vPp)}, {WSR}, 0 offen sc1
        {f"buffer_load_dword {v(vSg)}, {v(vSp)}, {WSR}, 0 offen sc1" if UP else ""}
        s_waitcnt vmcnt(0) lgkmcnt(0)
        buffer_store_dword {v(t2)}, {v(vFl)}, {WSR}, 0 offen
        s_cmp_gt_u32 {s(sI)}, {DLY}
        s_cbranch_scc1 ua_nb{par}
        s_cmp_gt_u32 {s(sI)}, {UFAST}
        s_cbranch_scc1 ua_nr{par}
        s_add_u32 {s(sNeed)}, {s(sI)}, 1
        """)
        poll_ge(A, vPg, vPp, s(sNeed), 0x7, sCnt, "role_abort", first=False, slp=2)
        for x in v_loads(VB[par ^ 1]): A(x)
        A(f"""
        ua_nr{par}:
        s_cmp_eq_u32 {s(sI)}, {DLY}
        s_cbranch_scc0 ua_nb{par}
        s_barrier
        ua_nb{par}:
        """)
        PR.stamp(7); PR.dump(t0, t1)
    body(0); body(1)
    A("s_branch ua_loop0\nua_end:")
    ev(A, 4, t0)
    if "u" in optv.get("wb", ""):
        A(f"s_cmp_lg_u32 {s(sCp)}, 0\ns_cbranch_scc1 ua_end2\nbuffer_wbl2 sc1\ns_waitcnt vmcnt(0)\nua_end2:")
        ev(A, 6, t0)
    A("s_endpgm")
```

```python
from common import *
from k_boot import *
from k_b5 import CProf, nap

L_U, L_WM, L_RED, L_RZ = 0, 65536, 81920, 90112
SCALE = 192 ** -0.5
ZLO, ZHI = (127 - 60) << 23, (127 + 100) << 23

def gen_w(A, prof=False, opt=()):
    optv = dict(o.split("=") for o in opt if "=" in o)
    NP = XPN[0]
    sa = Alloc(20, 88)
    SO = sa(4, 4)
    sC, sSeg, sCnt, sT0, sT1, sT2, sM0 = [sa() for _ in range(7)]
    sMemB, sMemN, sSVgb, sSVg, sSVgv, sXPb, sXh, sVb, sAPb, sAMb, sAO, sFa, sNv, sNm = [sa() for _ in range(14)]
    sV = [sa() for _ in range(4)]; sAP = [sa(), sa()]; sAM = sa()
    sXPw_, sXPz_, sXPl_, sXPo_ = [[sa() for _ in range(NP)] for _ in range(4)]
    sXm, sMlo, sCL = sa(2, 2), sa(2, 2), sa(2, 2)
    va = Alloc(2, 256)
    def WOf(ct, kk): return 256 + (ct * 6 + kk) * 4
    VF = [256 + 96, 256 + 120]
    UF = 256 + 144
    PXF, PMF = 256 + 176, 256 + 192
    G_V, G_SM, G_SX = va(12, 4), va(4, 4), va(12, 4)
    U = va(16, 4); ACU = va(16, 4)
    S0, S4_ = va(4, 4), va(2, 2); S5_ = S4_ + 1
    ZD, SELA, ONES = va(4, 4), va(4, 4), va(4, 4)
    WMD = va(16, 4); WMP = va(8, 4)
    PXL, PXH, PML, PMH = va(4, 4), va(4, 4), va(2, 2), va(2, 2)
    QK, HALF = va(2, 2), va(2, 2)
    RR = va(8, 4); FD = va(8, 4); CX, CY = va(2, 2), va(2, 2)
    XR = [va(8, 4) for _ in range(NP)]; XD, XC = va(4, 4), va(4, 4)
    WMF = va(8, 4); AC2 = va(8, 4); OUT = va(4, 4)
    NM = int(optv.get("nm", 4))
    MK = [va() for _ in range(NM)]
    va.p = max(va.p, 160)
    (vL16, vL4, vRedW, vRedR, vMemW, vPf, vIdx, vProg, vRzW, vRzR, vPi, vMk, vFa, vOa, vWab, vWa, vWwb, vWw, vZero,
     t0, t1, t2, t3, vSrc) = [va() for _ in range(24)]
    vUr, vUw, vUrb, vUwb = va(2), va(2), va(2), va(2)
    vWa2, vWab2, vNb, vNeed = va(), va(), va(), va()
    XB = "xb" in opt; MKM = 0x3ff01ff if XB else 0x1ff
    SL = "sl" in opt
    if SL: MKM = 0x3f01ff
    vRo = va(4)
    L = V_LANE; WSR = s(S_WS, 4)

    srd(A, SO, "wo"); srd(A, 88, "c"); srd(A, 92, "wmod")
    panel_src_off(A, vSrc, t0, L, 1280)
    A(f"""
    s_sub_u32 {s(sC)}, {s(S_T)}, 18
    s_lshl_b32 {s(sT0)}, {s(S_X)}, 2
    s_add_u32 {s(sT0)}, {s(sT0)}, {s(S_W)}
    s_mul_i32 {s(sT2)}, {s(sT0)}, {192*1280}
    s_lshl_b32 {s(sT0)}, {s(sC)}, 7
    s_add_u32 {s(sT2)}, {s(sT2)}, {s(sT0)}
    s_mul_i32 {s(sM0)}, {s(S_W)}, 24576
    s_add_u32 {s(sM0)}, {s(sM0)}, 16384
    """)
    if "s2" in opt:
        A(f"""
        s_cmp_ge_u32 {s(sC)}, 8
        s_cbranch_scc1 w_nm
        v_mov_b32 {v(t0)}, {GT}
        v_mov_b32 {v(t1)}, 1
        v_mov_b32 {v(t2)}, 0
        s_cmp_lg_u32 {s(S_W)}, 0
        s_cbranch_scc1 w_gt
        s_mov_b64 exec, 1
        buffer_atomic_add {v(t1)}, {v(t0)}, {s(S_DBG,4)}, 0 offen sc0 sc1
        s_waitcnt vmcnt(0)
        ds_write_b32 {v(t2)}, {v(t1)}
        s_waitcnt lgkmcnt(0)
        s_mov_b64 exec, -1
        w_gt:
        s_barrier
        ds_read_b32 {v(t1)}, {v(t2)}
        s_waitcnt lgkmcnt(0)
        v_readfirstlane_b32 {s(sT0)}, {v(t1)}
        s_barrier
        s_cmp_ge_u32 {s(sT0)}, 20
        s_cbranch_scc1 w_nm
        """)
    else:
        A(f"""
    s_sub_u32 {s(sT0)}, 7, {s(sC)}
    s_lshl_b32 {s(sT0)}, {s(sT0)}, 3
    s_add_u32 {s(sT0)}, {s(sT0)}, {s(S_X)}
    s_cmp_ge_u32 {s(sT0)}, 20
    s_waitcnt lgkmcnt(0)
    s_cbranch_scc1 w_nm
    """)
    WW = int(optv.get('ww', 0)); assert not WW or 's1' in opt
    def w_dma():
        for n in range(24):
            A(f"""
            s_add_u32 m0, {s(sM0)}, {n*1024}
            s_add_u32 {s(sT1)}, {s(sT2)}, {n*8*1280}
            {f"s_waitcnt vmcnt({WW - 1})" if WW and n >= WW else ""}
            buffer_load_dwordx4 {v(vSrc)}, {s(SO,4)}, {s(sT1)} offen nt lds
            """)
        return 24
    mod_round(A, sT0, 88, 92, GM, "a", mid=None if "s1" in opt else w_dma)
    ev(A, 5, t0)
    A(f"""
    s_branch {"w_nc" if "s1" in opt else "w_md"}
    w_nm:
    s_waitcnt lgkmcnt(0)
    s_lshl_b32 {s(sT0)}, {s(sC)}, 2
    s_add_u32 {s(sT0)}, {s(sT0)}, {s(S_W)}
    s_cmp_lg_u32 {s(sT0)}, 32
    s_cbranch_scc1 w_nc
    """)
    calib(A, 88, 12, opt, word=CPROG + 28 * 4)
    A("w_nc:")
    if "s4" in opt:
        A(f"""
        s_cmp_ge_u32 {s(sC)}, 4
        s_cbranch_scc1 w_nt
        s_lshl_b32 {s(sT0)}, {s(sC)}, 2
        s_add_u32 {s(sT0)}, {s(sT0)}, {s(S_W)}
        s_lshl_b32 {s(sT0)}, {s(sT0)}, 13
        s_mul_i32 {s(sT1)}, {s(S_X)}, {H_X}
        s_add_u32 {s(sT1)}, {s(sT1)}, {s(sT0)}
        s_add_u32 {s(sT1)}, {s(sT1)}, {OFF_H}
        v_lshlrev_b32 {v(t0)}, 7, {v(L)}
        buffer_load_dword {v(t1)}, {v(t0)}, {WSR}, {s(sT1)} offen sc1
        s_lshl_b32 {s(sT1)}, {s(S_X)}, 22
        s_add_u32 {s(sT0)}, {s(sT0)}, {s(sT1)}
        s_add_u32 {s(sT0)}, {s(sT0)}, {OFF_RING}
        buffer_load_dword {v(t1)}, {v(t0)}, {WSR}, {s(sT0)} offen sc1
        s_add_u32 {s(sT0)}, {s(sT0)}, {16*8192}
        buffer_load_dword {v(t1)}, {v(t0)}, {WSR}, {s(sT0)} offen sc1
        s_add_u32 {s(sT0)}, {s(sT0)}, {16*8192}
        buffer_load_dword {v(t1)}, {v(t0)}, {WSR}, {s(sT0)} offen sc1
        w_nt:
        """)
        if "nst" in opt:
            A(f"""
            s_sub_u32 {s(sT0)}, {s(sC)}, 4
            s_cmp_ge_u32 {s(sT0)}, 4
            s_cbranch_scc1 w_nt2
            s_lshl_b32 {s(sT0)}, {s(sT0)}, 2
            s_add_u32 {s(sT0)}, {s(sT0)}, {s(S_W)}
            s_lshl_b32 {s(sT0)}, {s(sT0)}, 13
            s_lshl_b32 {s(sT1)}, {s(S_X)}, 22
            s_add_u32 {s(sT1)}, {s(sT1)}, {OFF_RING + 48*8192}
            s_add_u32 {s(sT0)}, {s(sT0)}, {s(sT1)}
            v_lshlrev_b32 {v(t0)}, 7, {v(L)}
            buffer_load_dword {v(t1)}, {v(t0)}, {WSR}, {s(sT0)} offen sc1
            s_add_u32 {s(sT0)}, {s(sT0)}, {20*8192}
            buffer_load_dword {v(t1)}, {v(t0)}, {WSR}, {s(sT0)} offen sc1
            s_lshl_b32 {s(sT0)}, {s(S_W)}, 13
            s_add_u32 {s(sT0)}, {s(sT0)}, {s(sT1)}
            s_add_u32 {s(sT0)}, {s(sT0)}, {16*8192}
            s_cmp_lg_u32 {s(sC)}, 4
            s_cbranch_scc1 w_nt2
            buffer_load_dword {v(t1)}, {v(t0)}, {WSR}, {s(sT0)} offen sc1
            w_nt2:
            """)
    w_dma()
    A("w_md:")
    if "s4" in opt: A("s_waitcnt vmcnt(24)")
    if "b1" in opt:
        for i in range(4): A(f"v_mov_b32 {v(XD+i)}, -1")
        A(f"""
        s_cmp_ge_u32 {s(sC)}, 8
        s_cbranch_scc1 w_ns
        s_lshl_b32 {s(sT0)}, {s(sC)}, 2
        s_add_u32 {s(sT0)}, {s(sT0)}, {s(S_W)}
        s_mul_i32 {s(sT1)}, {s(S_X)}, 30
        s_add_u32 {s(sT1)}, {s(sT1)}, {OFF_YP // 4096}
        s_lshl_b32 {s(sT2)}, {s(S_X)}, 1
        s_add_u32 {s(sT2)}, {s(sT2)}, {OFF_R // 4096 - 30}
        s_cmp_lt_u32 {s(sT0)}, 30
        s_cselect_b32 {s(sT1)}, {s(sT1)}, {s(sT2)}
        s_add_u32 {s(sT0)}, {s(sT0)}, {s(sT1)}
        s_lshl_b32 {s(sT0)}, {s(sT0)}, 12
        v_lshlrev_b32 {v(XC)}, 4, {v(L)}
        """)
        for i in range(4): A(f"buffer_store_dwordx4 {v(XD,4)}, {v(XC)}, {WSR}, {s(sT0)} offen offset:{1024*i} sc1")
        A("w_ns:")
    for ct in range(4):
        panel_rd_addr(A, vRo + ct, t0, t1, L, ct)
        A(f"v_add_u32 {v(vRo+ct)}, {s(sM0)}, {v(vRo+ct)}")
    for i in range(4): A(f"v_mov_b32 {v(ONES+i)}, 0x3f803f80")
    for i in range(12): A(f"v_mov_b32 {v(PXL+i)}, 0")
    for i in range(16): A(f"v_mov_b32 {v(WMD+i)}, 0")
    g_, fl_ = U, U + 1
    A(f"""
    v_lshlrev_b32 {v(vL16)}, 4, {v(L)}
    v_lshlrev_b32 {v(vL4)}, 2, {v(L)}
    v_lshrrev_b32 {v(g_)}, 4, {v(L)}
    v_and_b32 {v(fl_)}, 15, {v(L)}
    v_mov_b32 {v(vZero)}, 0
    v_bfe_u32 {v(t0)}, {v(L)}, 1, 1
    v_mul_u32_u24 {v(t0)}, 0xaaaa, {v(t0)}
    v_add_u32 {v(vIdx)}, 0x4444, {v(t0)}
    s_lshl_b32 {s(sT0)}, {s(S_W)}, 8
    s_lshl_b32 {s(sT1)}, {s(sC)}, 10
    s_add_u32 {s(sT0)}, {s(sT0)}, {s(sT1)}
    v_add_u32 {v(vMemW)}, {s(sT0)}, {v(vL4)}
    s_lshl_b32 {s(sT0)}, {s(S_W)}, 11
    s_add_u32 {s(sT0)}, {s(sT0)}, {L_RED}
    v_add_u32 {v(vRedW)}, {s(sT0)}, {v(vL16)}
    s_lshl_b32 {s(sT0)}, {s(S_W)}, 2
    s_add_u32 {s(sT0)}, {s(sT0)}, {L_RZ}
    v_lshl_add_u32 {v(vRzW)}, {v(fl_)}, 4, {s(sT0)}
    s_lshl_b32 {s(sT0)}, {s(S_W)}, 9
    s_add_u32 {s(sT0)}, {s(sT0)}, {L_RED}
    v_and_b32 {v(t0)}, 3, {v(L)}
    v_lshlrev_b32 {v(t0)}, 5, {v(t0)}
    v_bfe_u32 {v(t1)}, {v(L)}, 4, 1
    v_lshl_add_u32 {v(t0)}, {v(t1)}, 4, {v(t0)}
    v_add_u32 {v(vRzR)}, {L_RZ}, {v(t0)}
    v_bfe_u32 {v(t1)}, {v(L)}, 5, 1
    v_lshl_add_u32 {v(t0)}, {v(t1)}, 3, {v(t0)}
    v_bfe_u32 {v(t1)}, {v(L)}, 2, 2
    v_lshl_add_u32 {v(t0)}, {v(t1)}, 7, {v(t0)}
    v_add_u32 {v(vRedR)}, {s(sT0)}, {v(t0)}
    s_mov_b32 {s(sMlo)}, 0x00ff00ff
    s_mov_b32 {s(sMlo+1)}, 0x00ff00ff
    s_mov_b32 {s(sCL)}, {f32bits(SCALE * 1.4426950408889634)}
    s_mov_b32 {s(sCL+1)}, {s(sCL)}
    s_mul_i32 {s(sMemB)}, {s(S_X)}, 10240
    s_add_u32 {s(sMemB)}, {s(sMemB)}, {OFF_MEM}
    s_lshl_b32 {s(sSVgb)}, {s(S_X)}, 17
    s_lshl_b32 {s(sT1)}, {s(S_W)}, 13
    s_add_u32 {s(sSVgb)}, {s(sSVgb)}, {s(sT1)}
    s_add_u32 {s(sSVgb)}, {s(sSVgb)}, {OFF_SV2}
    s_lshl_b32 {s(sT0)}, {s(S_X)}, 22
    s_add_u32 {s(sT0)}, {s(sT0)}, {OFF_RING}
    s_mul_i32 {s(sVb)}, {s(S_W)}, 12288
    s_add_u32 {s(sVb)}, {s(sVb)}, {s(sT0)}
    s_add_u32 {s(sVb)}, {s(sVb)}, {2*QKV_MAT}
    s_lshr_b32 {s(sT1)}, {s(S_W)}, 1
    s_lshl_b32 {s(sT1)}, {s(sT1)}, 10
    s_add_u32 {s(sT0)}, {s(sT0)}, {s(sT1)}
    s_add_u32 {s(sAPb)}, {s(sT0)}, {R5_PT}
    s_add_u32 {s(sAMb)}, {s(sT0)}, {R5_PM}
    s_mul_i32 {s(sXPb)}, {s(sC)}, {NP*16384}
    s_lshl_b32 {s(sT0)}, {s(S_W)}, 11
    s_add_u32 {s(sXPb)}, {s(sXPb)}, {s(sT0)}
    s_add_u32 {s(sXPb)}, {s(sXPb)}, {OFF_XP}
    v_lshlrev_b32 {v(vPi)}, 2, {v(g_)}
    v_lshl_add_u32 {v(vPi)}, {v(fl_)}, 4, {v(vPi)}
    s_lshr_b32 {s(sXh)}, {s(S_X)}, 2
    s_lshl_b32 {s(sXh)}, {s(sXh)}, 10
    s_and_b32 {s(sT0)}, {s(S_X)}, 3
    s_lshl_b32 {s(sT0)}, {s(sT0)}, 4
    s_mov_b64 {s(sXm,2)}, 0xffff
    s_lshl_b64 {s(sXm,2)}, {s(sXm,2)}, {s(sT0)}
    s_not_b64 {s(sXm,2)}, {s(sXm,2)}
    ; progress words: lanes 0..5 V of head w, 6..9 SM, 10 near copy ; markers
    s_lshl_b32 {s(sT0)}, {s(S_X)}, 8
    s_mul_i32 {s(sT1)}, {s(S_W)}, 24
    v_mov_b32 {v(t0)}, 72
    v_mov_b32 {v(t1)}, {s(sT1)}
    v_cmp_gt_u32 vcc, 6, {v(L)}
    v_cndmask_b32 {v(t0)}, {v(t0)}, {v(t1)}, vcc
    v_min_u32 {v(t1)}, 40, {v(vL4)}
    v_add3_u32 {v(vPf)}, {v(t0)}, {v(t1)}, {s(sT0)}
    v_add_u32 {v(vPf)}, {CPROG}, {v(vPf)}
    s_lshl_b32 {s(sT1)}, {s(S_W)}, 6
    s_add_u32 {s(sT0)}, {s(sT0)}, {s(sT1)}
    s_add_u32 {s(sT0)}, {s(sT0)}, {SPROG}
    v_add_u32 {v(vMk)}, {s(sT0)}, {v(vL4)}
    ; lanes 16..25 of the marker poll: the progress words
    v_subrev_u32 {v(t0)}, 64, {v(vL4)}
    ds_bpermute_b32 {v(t1)}, {v(t0)}, {v(vPf)}
    v_cmp_gt_u32 vcc, 22, {v(L)}
    v_cndmask_b32 {v(vNb)}, 0, 2, vcc
    v_cmp_gt_u32 vcc, 16, {v(L)}
    v_cndmask_b32 {v(vNb)}, {v(vNb)}, 1, vcc
    s_waitcnt lgkmcnt(0)
    v_cndmask_b32 {v(vMk)}, {v(t1)}, {v(vMk)}, vcc
    v_bfe_u32 {v(t0)}, {v(L)}, 2, 1
    v_and_b32 {v(t1)}, 3, {v(L)}
    v_lshl_add_u32 {v(t0)}, {v(t0)}, 3, {v(t1)}
    v_lshl_add_u32 {v(t0)}, {v(g_)}, 4, {v(t0)}
    v_lshlrev_b32 {v(t0)}, 4, {v(t0)}
    v_bfe_u32 {v(t1)}, {v(L)}, 3, 1
    v_mul_u32_u24 {v(t2)}, {1024 + 64}, {v(t1)}
    s_and_b32 {s(sT1)}, {s(S_W)}, 1
    s_lshl_b32 {s(sT0)}, {s(sT1)}, 11
    v_add3_u32 {v(vUrb)}, {v(t0)}, {v(t2)}, {s(sT0)}
    v_xor_b32 {v(vUrb+1)}, 64, {v(vUrb)}
    s_lshl_b32 {s(sT0)}, {s(S_W)}, 12
    v_add_u32 {v(vUwb)}, {s(sT0)}, {v(vL16)}
    v_xor_b32 {v(vUwb+1)}, 64, {v(vUwb)}
    s_lshl_b32 {s(sT0)}, {s(sT1)}, 3
    s_add_u32 {s(sT0)}, {s(sT0)}, {L_WM}
    v_lshl_add_u32 {v(t0)}, {v(t1)}, 2, {v(t0)}
    v_add_u32 {v(vWab)}, {s(sT0)}, {v(t0)}
    v_add_u32 {v(vWab2)}, 64, {v(vWab)}
    s_lshl_b32 {s(sT0)}, {s(S_W)}, 10
    s_add_u32 {s(sT0)}, {s(sT0)}, {L_WM}
    v_add_u32 {v(vWwb)}, {s(sT0)}, {v(vL16)}
    v_mul_u32_u24 {v(t0)}, 1280, {v(fl_)}
    v_lshl_add_u32 {v(vOa)}, {v(g_)}, 4, {v(t0)}
    s_lshl_b32 {s(sAO)}, {s(S_X)}, 1
    s_lshr_b32 {s(sT0)}, {s(S_W)}, 1
    s_add_u32 {s(sAO)}, {s(sAO)}, {s(sT0)}
    s_mul_i32 {s(sAO)}, {s(sAO)}, {16*1280}
    s_lshl_b32 {s(sT0)}, {s(sC)}, 7
    s_add_u32 {s(sAO)}, {s(sAO)}, {s(sT0)}
    s_lshl_b32 {s(sT0)}, {s(sT1)}, 6
    s_add_u32 {s(sAO)}, {s(sAO)}, {s(sT0)}
    s_add_u32 {s(sAO)}, {s(sAO)}, {OFF_AOP}
    s_lshl_b32 {s(sT0)}, {s(S_X)}, 11
    s_lshl_b32 {s(sT1)}, {s(sC)}, 7
    s_add_u32 {s(sT0)}, {s(sT0)}, {s(sT1)}
    s_lshl_b32 {s(sT1)}, {s(S_W)}, 2
    s_add_u32 {s(sT0)}, {s(sT0)}, {s(sT1)}
    v_mov_b32 {v(vFa)}, {s(sT0)}
    s_mov_b32 {s(sFa)}, {OFF_AFL}
    s_mov_b32 {s(sSeg)}, 0
    v_and_b32 {v(t1)}, 3, {v(L)}
    v_mov_b32 {v(t2)}, 0
    v_mov_b32 {v(t3)}, 0x3f80
    v_cmp_eq_u32 vcc, 0, {v(t1)}
    v_cndmask_b32 {v(t2)}, {v(t2)}, {v(t3)}, vcc
    v_mov_b32 {v(t3)}, 0x3f800000
    v_cmp_eq_u32 vcc, 1, {v(t1)}
    v_cndmask_b32 {v(t2)}, {v(t2)}, {v(t3)}, vcc
    v_lshrrev_b32 {v(t0)}, 2, {v(fl_)}
    v_mov_b32 {v(t3)}, 0
    v_mov_b32 {v(HALF)}, 0x3f803f80
    v_mov_b32 {v(HALF+1)}, 0
    v_mov_b32 {v(XC+2)}, 0
    v_mov_b32 {v(XC+3)}, 0
    """)
    for d in range(4):
        A(f"v_cmp_eq_u32 vcc, {d}, {v(t0)}\nv_cndmask_b32 {v(SELA+d)}, {v(t3)}, {v(t2)}, vcc")
    for k in range(NP):
        for i in range(4): A(f"v_mov_b32 {v(XR[k]+i)}, 0")
    A("s_waitcnt vmcnt(0)")
    for kk in range(6):
        for ct in range(4): panel_read_frag(A, WOf(ct, kk), vRo + ct, kk * 4096)
        A("s_waitcnt lgkmcnt(8)")
    A("s_waitcnt lgkmcnt(0)\ns_barrier")
    ev(A, 1, t0)
    PR = CProf(A, prof, Alloc(sa.p, 102), optv.get("pm", "0,1,2,3,4,5,6,7,8").split(","), vL4, vL16, sSeg, (t0, t1, sT0, sT1))
    stamp = PR.stamp
    g0_wait(A, t0, sCnt)
    poll_ge(A, vProg, vPf, 1, 1 << 10, sCnt, "role_abort", slp=int(optv.get("wsl", 2)))
    A(f"""
    v_readlane_b32 {s(sT0)}, {v(vProg)}, 10
    s_sub_u32 {s(sT0)}, {s(sT0)}, 1
    s_lshl_b32 {s(sT0)}, {s(sT0)}, 13
    s_add_u32 {s(sXPb)}, {s(sXPb)}, {s(sT0)}
    """)
    ev(A, 2, t0)
    cold = []
    def spin():
        A(f"s_add_u32 {s(sCnt)}, {s(sCnt)}, 1\ns_cmp_gt_u32 {s(sCnt)}, {SPIN_LIMIT}\ns_cbranch_scc1 chain_abort")
    def ensure(need, mask):
        lb = A.label("we")
        A(f"""
        {lb}:
        v_cmp_gt_u32 vcc, {need}, {v(vProg)}
        s_and_b32 vcc_lo, vcc_lo, {mask:#x}
        s_cbranch_scc1 {lb}_r
        """)
        def f():
            A(f"{lb}_r:\ns_sleep 1\nbuffer_load_dword {v(vProg)}, {v(vPf)}, {WSR}, 0 offen sc1")
            spin()
            A(f"s_waitcnt vmcnt(0)\ns_branch {lb}")
        cold.append(f)
    prog_ld = f"buffer_load_dword {v(vProg)}, {v(vPf)}, {WSR}, 0 offen sc1"
    def v_addr(d):
        return (f"""
        s_add_u32 {s(sT0)}, {s(sSeg)}, {d}
        s_and_b32 {s(sT0)}, {s(sT0)}, 3
        s_mul_i32 {s(sT0)}, {s(sT0)}, {QS}
        s_add_u32 {s(sV[0])}, {s(sVb)}, {s(sT0)}
        s_add_u32 {s(sV[1])}, {s(sV[0])}, 4096
        s_add_u32 {s(sV[2])}, {s(sV[0])}, 6144
        s_add_u32 {s(sV[3])}, {s(sV[0])}, 10240
        """)
    def v_ld(tt, kk): return f"buffer_load_dwordx4 {r(VF[tt]+4*kk,4)}, {v(vL16)}, {WSR}, {s(sV[2*tt + kk//4])} offen offset:{(kk % 4)*1024} sc1"
    def u_mf(tt): return [f"v_mfma_f32_16x16x32_bf16 {v(ACU+4*ct,4)}, {r(VF[tt]+4*kk,4)}, {r(WOf(ct,kk),4)}, {v(ACU+4*ct,4) if kk else 0}" for kk in range(6) for ct in range(4)]
    def u_cv(tt, ct): return f"v_cvt_pk_bf16_f32 {v(U+4*ct+2*tt)}, {v(ACU+4*ct)}, {v(ACU+4*ct+1)}\nv_cvt_pk_bf16_f32 {v(U+4*ct+2*tt+1)}, {v(ACU+4*ct+2)}, {v(ACU+4*ct+3)}"
    def setup():
        T = (f"""
        s_and_b32 {s(sT0)}, {s(sSeg)}, 3
        s_lshl_b32 {s(sT1)}, {s(sT0)}, 15
        s_add_u32 {s(sSVg)}, {s(sSVgb)}, {s(sT1)}
        s_add_u32 {s(sSVgv)}, {s(sSVg)}, 4096
        s_lshl_b32 {s(sT1)}, {s(sT0)}, 14
        v_add_u32 {v(vUw)}, {s(sT1)}, {v(vUwb)}
        v_add_u32 {v(vUw+1)}, {s(sT1)}, {v(vUwb+1)}
        s_lshl_b32 {s(sT1)}, {s(sT0)}, 12
        v_add_u32 {v(vWw)}, {s(sT1)}, {v(vWwb)}
        s_mul_i32 {s(sT0)}, {s(sT0)}, {XP_SLOT*NP}
        s_add_u32 {s(sT0)}, {s(sT0)}, {s(sXPb)}
        s_lshl_b32 {s(sT1)}, {s(S_X)}, 8
        s_add_u32 {s(sXPw_[0])}, {s(sT0)}, {s(sT1)}
        s_xor_b32 {s(sXPz_[0])}, {s(sXPw_[0])}, 8192
        s_add_u32 {s(sXPl_[0])}, {s(sT0)}, {s(sXh)}
        s_xor_b32 {s(sXPo_[0])}, {s(sXPl_[0])}, 1024
        s_add_u32 {s(sNm)}, {s(sSeg)}, 1
        s_and_b32 {s(sT0)}, {s(sNm)}, 3
        s_mul_i32 {s(sMemN)}, {s(sT0)}, {MEM_SLOT}
        s_add_u32 {s(sMemN)}, {s(sMemN)}, {s(sMemB)}
        s_add_u32 {s(sNv)}, {s(sSeg)}, 2
        s_min_u32 {s(sNv)}, {s(sNv)}, 64
        s_cmp_eq_u32 {s(sSeg)}, 0
        s_cselect_b32 {s(sNv)}, 0, {s(sNv)}
        """)
        for k in range(1, NP):
            for R_ in (sXPw_, sXPz_, sXPl_, sXPo_): T += f"s_add_u32 {s(R_[k])}, {s(R_[0])}, {k*16384}\n"
        return T + v_addr(1)
    def ao_addr(d):
        return (f"""
        s_add_u32 {s(sT0)}, {s(sSeg)}, {d + 4}
        s_and_b32 {s(sT0)}, {s(sT0)}, 3
        s_mul_i32 {s(sT1)}, {s(sT0)}, {S5}
        s_add_u32 {s(sAP[0])}, {s(sAPb)}, {s(sT1)}
        s_add_u32 {s(sAP[1])}, {s(sAP[0])}, 4096
        s_add_u32 {s(sAM)}, {s(sAMb)}, {s(sT1)}
        s_lshl_b32 {s(sT1)}, {s(sT0)}, 14
        v_add_u32 {v(vUr)}, {s(sT1)}, {v(vUrb)}
        v_add_u32 {v(vUr+1)}, {s(sT1)}, {v(vUrb+1)}
        s_lshl_b32 {s(sT1)}, {s(sT0)}, 12
        v_add_u32 {v(vWa)}, {s(sT1)}, {v(vWab)}
        v_add_u32 {v(vWa2)}, {s(sT1)}, {v(vWab2)}
        """)
    def lines(t): return [x.strip() for x in t.split("\n") if x.strip()]
    def mix(M, F, at={}, per=3, n=0):
        M = list(M); F = list(F); i = 0
        while M or F or i < n or (at and i <= max(at)):
            k = per
            for x in at.get(i, []):
                if callable(x): x()
                else: A(x); k -= len(lines(x))
            if M: A(M.pop(0))
            else: k += 1
            while k > 0 and F: x = F.pop(0); A(x); k -= len(lines(x))
            if not M and k > 0 and (i < n or (at and i < max(at))): A(f"s_nop {k - 1}")
            i += 1
    px_ld = [f"buffer_load_dwordx4 {r(PXF+4*lh,4)}, {v(vL16)}, {WSR}, {s(sAP[lh >> 1])} offen offset:{(lh & 1)*2048} sc1" for lh in range(4)]
    px_ld += [f"buffer_load_dwordx4 {r(PMF,4)}, {v(vL16)}, {WSR}, {s(sAM)} offen sc1"]
    ao_rd = [f"ds_read_b128 {r(UF+(lh*2+o)*4,4)}, {v(vUr+o)} offset:{lh*4096}" for lh in range(4) for o in range(2)]
    ao_rd += [f"ds_read2st64_b32 {v(WMF+o*4+lh,2)}, {v(vWa)} offset0:{lh*4} offset1:{lh*4+4}".replace(v(vWa), v(vWa) if o == 0 else v(vWa2)) for o in range(2) for lh in (0, 2)]
    ao_mf = [f"v_mfma_f32_16x16x32_bf16 {v(AC2+4*o,4)}, {r(UF+(lh*2+o)*4,4)}, {r(PXF+4*lh,4)}, {v(AC2+4*o,4) if lh else 0}" for lh in range(4) for o in range(2)]
    ao_mf += [f"v_mfma_f32_16x16x32_bf16 {v(AC2+4*o,4)}, {v(WMF+4*o,4)}, {r(PMF,4)}, {v(AC2+4*o,4)}" for o in range(2)]
    ao_out = [f"v_cvt_pk_bf16_f32 {v(OUT+i)}, {v(AC2+2*i)}, {v(AC2+2*i+1)}" for i in range(4)]
    ao_st = f"buffer_store_dwordx4 {v(OUT,4)}, {v(vOa)}, {WSR}, {s(sAO)} offen {optv.get('aom', 'sc1').replace('+', ' ')}"
    afl = f"s_mov_b64 exec, 1\nbuffer_store_dword {v(vZero)}, {v(vFa)}, {WSR}, {s(sFa)} offen {optv.get('afm', 'sc1').replace('+', ' ')}\ns_mov_b64 exec, -1"
    A(f"w_pro:\ns_add_u32 {s(sNv)}, {s(sSeg)}, 1\ns_mov_b32 {s(sCnt)}, 0\ns_waitcnt vmcnt(0)")
    ensure(s(sNv), 0x3f)
    A(v_addr(0))
    for tt in range(2):
        for kk in range(6): A(v_ld(tt, kk))
    for i, x in enumerate(u_mf(0)):
        if i % 4 == 0: A(f"s_waitcnt vmcnt({11 - i // 4})")
        A(x)
    for ct in range(4): A(u_cv(0, ct))
    A("s_waitcnt vmcnt(0)")
    ev(A, 3, t0)
    if "wo" in optv: A(".p2align 7\n" + "s_nop 0\n" * int(optv["wo"]))
    A("w_loop:")
    stamp(0)
    aq = int(optv.get("aq", 0))
    F = lines(ao_addr(-2)) + ao_rd + lines(f"""
    s_cmp_ge_u32 {s(sSeg)}, {3 if aq < 100 else 4}
    s_cselect_b32 {s(sT0)}, {8*32*1280}, 0
    s_add_u32 {s(sAO)}, {s(sAO)}, {s(sT0)}
    v_add_u32 {v(vNeed)}, {s(sSeg)}, {v(vNb)}
    v_min_u32 {v(vNeed)}, 64, {v(vNeed)}
    """) + lines(setup())
    at = {5 + 4 * i: [x] for i, x in enumerate(px_ld)}
    assert aq < 8 or aq >= 112
    if aq < 8: at.setdefault(aq, []).append(ao_st)
    for k in (8, 16): at.setdefault(k, []).append(lambda k=k: stamp(f"w{k}"))
    mix(u_mf(1), F, at)
    stamp("w24")
    if not XB: A(prog_ld)
    mk_ld = lambda k: f"buffer_load_dword {v(MK[k % NM])}, {v(vMk)}, {WSR}, 0 offen sc1"
    for ct in range(4):
        A(u_cv(1, ct))
        A(f"ds_write_b128 {v(vUw + (ct & 1))}, {v(U+4*ct,4)} offset:{ct*1024}")
        if ct == 1: A(f"s_mov_b64 exec, {MKM:#x}\n{mk_ld(0)}\ns_mov_b64 exec, -1")
    stamp(1)
    A(f"s_mov_b32 {s(sCnt)}, 0\ns_mov_b64 exec, {MKM:#x}")
    for k in range(1, NM - 1): A(mk_ld(k)); nap(A, int(optv.get("mg", 16)))
    A("w_mk:")
    for k in range(NM):
        A(mk_ld(k + NM - 1))
        if prof or k == 0: spin()
        A(f"s_waitcnt vmcnt({NM-1})\nv_cmp_gt_u32 vcc, {v(vNeed)}, {v(MK[k])}\ns_cbranch_vccz w_mk_ok")
        if prof and XB: A(f"s_mov_b32 {s(PR.cn[2])}, vcc_lo")
    A("s_branch w_mk")
    if "wk" in optv: A(".p2align 7\n" + "s_nop 0\n" * int(optv["wk"]))
    A("w_mk_ok:\ns_mov_b64 exec, -1")
    stamp(2)
    PR.cnt(0, sCnt)
    LX = [(G_SX + 4*p, 4, f"buffer_load_dwordx4 {v(G_SX+4*p,4)}, {v(vL16)}, {WSR}, {s(sSVg)} offen offset:{p*1024} sc1") for p in range(3)]
    LM = (G_SM, 3, "\n".join(f"buffer_load_dword {v(G_SM+p)}, {v(vL4)}, {WSR}, {s(sSVg)} offen offset:{3072+256*p} sc1" for p in range(3)))
    LV = [(G_V + 4*b, 4, f"buffer_load_dwordx4 {v(G_V+4*b,4)}, {v(vL16)}, {WSR}, {s(sSVgv)} offen offset:{b*1024} sc1") for b in range(3)]
    def masked_reload(lb, pieces, tmp):
        for i, (R, n, ld) in enumerate(pieces):
            A(f"v_max3_u32 {v(tmp)}, {v(R)}, {v(R+1)}, {v(R+2)}")
            if n == 4: A(f"v_max_u32 {v(tmp)}, {v(tmp)}, {v(R+3)}")
            A(f"v_cmp_eq_u32 vcc, -1, {v(tmp)}\ns_cbranch_vccz {lb}_s{i}\ns_mov_b64 exec, vcc\n{ld}\ns_mov_b64 exec, -1\n{lb}_s{i}:")
    def blocking(lb, pieces, also=()):
        def f():
            A(f"{lb}_r:")
            masked_reload(lb, pieces, t2)
            for x in also: A(x[2])
            spin()
            if prof: A(f"s_add_u32 {s(PR.cn[1])}, {s(PR.cn[1])}, {dict(w_gv=1, w_gx=16, w_gm=256)[lb]}")
            A(f"s_waitcnt vmcnt(0)\ns_branch {lb}")
        cold.append(f)
    if prof: A(f"s_mov_b32 {s(PR.cn[1])}, 0")
    gx, gm, gz, gv = "w_gx", "w_gm", "w_gz", "w_gv"
    blocking(gx, LX, [LM]); blocking(gm, [LM]); blocking(gv, LV, LX + [LM])
    def wm(b): return [f"v_smfmac_f32_16x16x64_bf16 {v(WMD+4*ct,4)}, {v(G_V+4*b,4)}, {r(WOf(ct,2*b),8)}, {v(vIdx)}" for ct in range(4)]
    def wcv(ct): return f"v_cvt_pk_bf16_f32 {v(WMP+2*ct)}, {v(WMD+4*ct)}, {v(WMD+4*ct+1)}\nv_cvt_pk_bf16_f32 {v(WMP+2*ct+1)}, {v(WMD+4*ct+2)}, {v(WMD+4*ct+3)}"
    A(f"s_mov_b32 {s(sCnt)}, 0")
    nap(A, int(optv.get("gv", 8)))
    for x in LV: A(x[2])
    nap(A, int(optv.get("gx", 30)))
    for x in LX: A(x[2])
    nap(A, int(optv.get("gm", 0)))
    gmp = int(optv.get("gmp", -1))
    if gmp < 0: A(LM[2])
    if not XB: ensure(s(sNv), 0x3f)
    A(f"""
    s_waitcnt vmcnt({6 if gmp < 0 else 3})
    {gv}:
    v_max3_u32 {v(t0)}, {v(G_V)}, {v(G_V+4)}, {v(G_V+8)}
    v_cmp_eq_u32 vcc, -1, {v(t0)}
    s_cbranch_vccnz {gv}_r
    """)
    stamp(3)
    V0 = [v_ld(0, kk) for kk in range(6)]; nv = [0]
    vq = [int(x) for x in optv.get("vq", "2,6,10,12,14,16").split(",")]
    assert gmp < min(vq)
    def vslot(i):
        if i == gmp: A(LM[2])
        for _ in range(vq.count(i)): A(V0.pop(0)); nv[0] += 1
        if i == aq - 100: assert not V0; A(ao_st); nv[0] += 1
    for i, x in enumerate(wm(0) + wm(1) + wm(2)): A(x); vslot(i)
    A(f"s_cmp_eq_u32 {s(sSeg)}, 63\ns_cbranch_scc1 w_last")
    for ct in (0, 2, 1, 3): A(wcv(ct))
    vslot(12)
    sum_x = f"""
    v_pk_add_f32 {v(S0,2)}, {v(G_SX,2)}, {v(G_SX+4,2)}
    v_pk_add_f32 {v(S0+2,2)}, {v(G_SX+2,2)}, {v(G_SX+6,2)}
    v_pk_add_f32 {v(S0,2)}, {v(S0,2)}, {v(G_SX+8,2)}
    v_pk_add_f32 {v(S0+2,2)}, {v(S0+2,2)}, {v(G_SX+10,2)}
    """
    A(f"s_waitcnt vmcnt({3 + nv[0]})")
    stamp(4)
    A(f"{gx}:")
    A(sum_x)
    A(f"""
    v_cmp_u_f32 vcc, {v(S0)}, {v(S0)}
    v_pk_mul_f32 {v(S0,2)}, {v(S0,2)}, {s(sCL,2)}
    v_pk_mul_f32 {v(S0+2,2)}, {v(S0+2,2)}, {s(sCL,2)}
    v_exp_f32 {v(S0)}, {v(S0)}
    s_cbranch_vccnz {gx}_r
    """)
    ID, RO = "quad_perm:[0,1,2,3] row_mask:0xf", "row_ror:8 row_mask:0xf"
    ex = [f"v_exp_f32 {v(S0+i)}, {v(S0+i)}" for i in range(4)]
    pk = [f"v_cvt_pk_bf16_f32 {v(CX)}, {v(S0)}, {v(S0+1)}\nv_cvt_pk_bf16_f32 {v(CX+1)}, {v(S0+2)}, {v(S0+3)}"]
    for D_, m0_, m1_, bm in ((PXL, ID, RO, 3), (PXH, RO, ID, 12)):
        pk += [f"v_mov_b32_dpp {v(D_)}, {v(CX)} {m0_} bank_mask:{bm:#x}\nv_mov_b32_dpp {v(D_+1)}, {v(CX+1)} {m0_} bank_mask:{bm:#x}",
               f"v_mov_b32_dpp {v(D_+2)}, {v(CX)} {m1_} bank_mask:{bm:#x}\nv_mov_b32_dpp {v(D_+3)}, {v(CX+1)} {m1_} bank_mask:{bm:#x}"]
    def pxu(ct):
        D_ = FD + 4 * (ct >> 1)
        return f"v_mfma_f32_16x16x32_bf16 {v(D_,4)}, {v(U+4*ct,4)}, {v(PXH if ct & 1 else PXL,4)}, {v(D_,4) if ct & 1 else 0}"
    def pmw(ct): return f"v_mfma_f32_16x16x16_bf16 {v(FD+4*(ct>>1),4)}, {v(WMP+2*ct,2)}, {v(PMH if ct & 1 else PML,2)}, {v(FD+4*(ct>>1),4)}"
    zx = f"v_mfma_f32_16x16x32_bf16 {v(ZD,4)}, {v(ONES,4)}, {v(PXL,4)}, 0"
    zm = f"v_mfma_f32_16x16x16_bf16 {v(ZD,4)}, {v(HALF,2)}, {v(PML,2)}, {v(ZD,4)}"
    pm1 = f"v_mov_b32_dpp {v(S5_)}, {v(S4_)} {RO} bank_mask:0xf\nv_cvt_pk_bf16_f32 {v(CY)}, {v(S4_)}, {v(S5_)}"
    pm2 = f"v_mov_b32_dpp {v(PML)}, {v(CY)} {ID} bank_mask:0x3\nv_mov_b32_dpp {v(PML+1)}, {v(CY)} {ID} bank_mask:0x3"
    pm3 = f"v_mov_b32_dpp {v(PMH)}, {v(CY)} {RO} bank_mask:0xc\nv_mov_b32_dpp {v(PMH+1)}, {v(CY)} {RO} bank_mask:0xc"
    A(f"""
    {ex[1]}
    {ex[2]}
    {ex[3]}
    """)
    vslot(13)
    A(f"s_waitcnt vmcnt({nv[0]})")
    stamp(5)
    A(f"""
    {gm}:
    v_add_f32 {v(S4_)}, {v(G_SM)}, {v(G_SM+1)}
    {pk[0]}
    v_add_f32 {v(S4_)}, {v(S4_)}, {v(G_SM+2)}
    v_cmp_u_f32 vcc, {v(S4_)}, {v(S4_)}
    {pk[1]}
    v_mul_f32 {v(S4_)}, {s(sCL)}, {v(S4_)}
    {pk[2]}
    v_exp_f32 {v(S4_)}, {v(S4_)}
    s_cbranch_vccnz {gm}_r
    {zx}
    """)
    vslot(14)
    A(f"""
    {pk[3]}
    {pk[4]}
    {pxu(0)}
    {pm1}
    {pxu(2)}
    """)
    vslot(15)
    A(f"""
    {pm2}
    {pxu(1)}
    {pm3}
    {pxu(3)}
    {zm}
    """)
    vslot(16)
    A(f"""
    {pmw(0)}
    {pmw(2)}
    {pmw(1)}
    v_subrev_u32 {v(t0)}, {ZLO:#x}, {v(ZD)}
    v_rcp_f32 {v(QK)}, {v(ZD)}
    {pmw(3)}
    v_cmp_lt_u32 vcc, {ZHI - ZLO:#x}, {v(t0)}
    ds_write_b32 {v(vRzW)}, {v(QK)}
    s_and_b64 vcc, vcc, {s(sMlo,2)}
    s_cbranch_vccnz {gz}_r
    {gz}:
    """); stamp("e2")
    for cp in range(2): A(f"ds_write_b128 {v(vRedW)}, {v(FD+4*cp,4)} offset:{cp*1024}")
    def z_cold():
        A(f"{gz}_r:")
        A(sum_x)
        A(f"""
        v_add_f32 {v(S4_)}, {v(G_SM)}, {v(G_SM+1)}
        v_add_f32 {v(S4_)}, {v(S4_)}, {v(G_SM+2)}
        v_max3_f32 {v(t0)}, {v(S0)}, {v(S0+1)}, {v(S0+2)}
        v_max3_f32 {v(t0)}, {v(t0)}, {v(S0+3)}, {v(S4_)}
        v_max_f32_dpp {v(t0)}, {v(t0)}, {v(t0)} row_ror:8 row_mask:0xf bank_mask:0xf
        v_mov_b32 {v(t1)}, {v(t0)}
        v_permlane16_swap_b32 {v(t0)}, {v(t1)}
        v_max_f32 {v(t0)}, {v(t0)}, {v(t1)}
        v_mov_b32 {v(t1)}, {v(t0)}
        v_permlane32_swap_b32 {v(t0)}, {v(t1)}
        v_max_f32 {v(t0)}, {v(t0)}, {v(t1)}
        """)
        for x in (S0, S0 + 1, S0 + 2, S0 + 3, S4_):
            A(f"v_sub_f32 {v(x)}, {v(x)}, {v(t0)}\nv_mul_f32 {v(x)}, {s(sCL)}, {v(x)}\nv_exp_f32 {v(x)}, {v(x)}")
        for x in pk + [pm1, pm2, pm3, zx]: A(x)
        for ct in (0, 2, 1, 3): A(pxu(ct))
        A(zm)
        for ct in (0, 2, 1, 3): A(pmw(ct))
        A(f"v_rcp_f32 {v(QK)}, {v(ZD)}\nds_write_b32 {v(vRzW)}, {v(QK)}\ns_branch {gz}")
    cold.append(z_cold)
    RZ = WMP
    vslot(17); assert not V0
    stamp("e3"); A("s_waitcnt lgkmcnt(0)"); stamp("e4"); A("s_barrier"); stamp("e5")
    if prof: A("s_waitcnt lgkmcnt(0)")
    A(f"ds_read_b128 {v(RZ,4)}, {v(vRzR)}")
    for w in range(4):
        A(f"ds_read_b64 {v(RR+2*w,2)}, {v(vRedR)} offset:{w*2048}")
    vslot(18)
    A(f"""
    s_waitcnt lgkmcnt(3)
    v_pk_mul_f32 {v(QK,2)}, {v(RR,2)}, {v(RZ,2)} op_sel_hi:[1,0]
    s_waitcnt lgkmcnt(2)
    v_pk_fma_f32 {v(QK,2)}, {v(RR+2,2)}, {v(RZ,2)}, {v(QK,2)} op_sel:[0,1,0]
    s_waitcnt lgkmcnt(1)
    v_pk_fma_f32 {v(QK,2)}, {v(RR+4,2)}, {v(RZ+2,2)}, {v(QK,2)} op_sel_hi:[1,0,1]
    s_waitcnt lgkmcnt(0)
    v_pk_fma_f32 {v(QK,2)}, {v(RR+6,2)}, {v(RZ+2,2)}, {v(QK,2)} op_sel:[0,1,0]
    v_cvt_pk_bf16_f32 {v(QK)}, {v(QK)}, {v(QK+1)}
    """)
    for k in range(NP):
        for x in (sXPz_[k], sXPw_[k]): A(f"buffer_store_dword {v(QK)}, {v(vL4)}, {WSR}, {s(x)} offen sc1")
        if k == 0: stamp(6)
    if not XB: A(f"ds_bpermute_b32 {v(t2)}, {v(vPi)}, {v(QK)}")
    wm_pack = [f"v_pk_add_f32 {v(WMD+4*ct,2)}, {v(WMD+4*ct,2)}, {v(WMD+4*ct+2,2)}" for ct in range(4)]
    wm_pack += [f"v_cvt_pk_bf16_f32 {v(ZD+ct)}, {v(WMD+4*ct)}, {v(WMD+4*ct+1)}" for ct in range(4)] + [f"ds_write_b128 {v(vWw)}, {v(ZD,4)}"]
    XL = [f"""s_mov_b64 exec, {s(sXm,2)}
          buffer_load_dwordx4 {v(XR[k],4)}, {v(vL16)}, {WSR}, {s(sXPl_[k])} offen sc1
          s_mov_b64 exec, -1
          buffer_load_dwordx4 {v(XR[k]+4,4)}, {v(vL16)}, {WSR}, {s(sXPo_[k])} offen sc1""" for k in range(NP)]
    NH = 0
    xq = [int(x) for x in optv.get("xq", "36,48,60").split(",")][:NP]
    xh, xhs = int(optv.get("xh", 2)), int(optv.get("xhs", 4))
    ev_ = {p: [XL[k]] + ([lambda: stamp(7)] if k == 0 else []) for k, p in enumerate(xq)}
    if XB: ev_ = {}
    for i in range(6): ev_.setdefault(xh + i * xhs, []).append(v_ld(1, i))
    if not XB or SL: ev_.setdefault(xh + 6 * xhs, []).append(prog_ld)
    if aq >= 200: assert aq < 210; ev_.setdefault(aq - 200, []).insert(0, ao_st)
    assert 10 <= xh + 6 * xhs < xq[0]
    ev_.setdefault(10, []).insert(0, f"s_waitcnt vmcnt({2 * NP + (aq >= 100) + sum(xh + i * xhs < 10 for i in range(6))})")
    ev_.setdefault(12, []).append("\n".join(ao_out[:2])); ev_.setdefault(13, []).append("\n".join(ao_out[2:]))
    for ct in range(4): ev_.setdefault(35 + ct, []).insert(0, u_cv(0, ct))
    fill = wm_pack + [f"s_waitcnt lgkmcnt(1)", f"v_lshlrev_b32 {v(XC)}, 16, {v(t2)}", f"v_and_b32 {v(XC+1)}, 0xffff0000, {v(t2)}"]
    if XB: fill = wm_pack[:]
    fill += [f"v_mov_b32 {v(WMD+i)}, 0" for i in range(16)]
    mix(ao_mf + u_mf(0), fill, ev_)
    def xred(k): return f"""
    v_mfma_f32_16x16x32_bf16 {v(XD,4)}, {v(SELA,4)}, {v(XR[k],4)}, {v(XC,4)}
    v_mfma_f32_16x16x32_bf16 {v(XD,4)}, {v(SELA,4)}, {v(XR[k]+4,4)}, {v(XD,4)}
    v_cmp_u_f32 vcc, {v(XD)}, {v(XD+1)}
    v_cvt_pk_bf16_f32 {v(t1)}, {v(XD)}, {v(XD+1)}
    """
    def x_cold():
        A("w_xp_r:")
        for k in range(NP - 1):
            A(f"{XL[k]}\ns_add_u32 {s(sCnt)}, {s(sCnt)}, 1\ns_waitcnt vmcnt({NH + 2 * (NP - 1)})\n{xred(k + 1)}\ns_cbranch_vccz w_xp_ok")
        A("w_xp_l:")
        for k in range(NP):
            A(XL[(k - 1) % NP]); spin()
            A(f"s_waitcnt vmcnt({2 * (NP - 1)})\n{xred(k)}\ns_cbranch_vccz w_xp_ok")
        A("s_branch w_xp_l")
    if XB:
        A(f"s_waitcnt vmcnt(0)")
        if SL: ensure(s(sSeg), 0x3c0)
        A(f"s_add_u32 {s(sSeg)}, {s(sSeg)}, 1")
    else:
        cold.append(x_cold)
        A(f"""
        s_mov_b32 {s(sCnt)}, 0
        s_waitcnt vmcnt({NH + 2 * (NP - 1)})
        """)
        for x in lines(xred(0))[:2]: A(x)
        ensure(s(sSeg), 0x3c0)
        A(f"s_add_u32 {s(sSeg)}, {s(sSeg)}, 1")
        for x in lines(xred(0))[2:]: A(x)
        A(f"""
        s_cbranch_vccnz w_xp_r
        w_xp_ok:
        buffer_store_dword {v(t1)}, {v(vMemW)}, {WSR}, {s(sMemN)} offen
        """)
    stamp(8)
    if not XB: PR.cnt(2, sCnt)
    PR.dump()
    if not XB: A(f"s_cmp_eq_u32 {s(sSeg)}, 1\ns_cbranch_scc1 w_pro")
    TL = "tl" in opt; SEG = 8*32*1280
    if TL:
        assert "b1" in opt and XB and aq >= 100
        A(f"s_sub_u32 {s(sT0)}, {s(sSeg)}, 9\ns_cmp_lt_u32 {s(sT0)}, {64 - int(optv.get('rkm', 57))}\ns_cbranch_scc1 w_sent")
        cold.append(lambda: A(f"""
        w_sent:
        s_add_u32 {s(sT0)}, {s(sAO)}, {(int(optv.get('rkm', 57)) - 5) * SEG}
        buffer_store_dwordx4 {v(XD,4)}, {v(vOa)}, {WSR}, {s(sT0)} offen sc1
        s_branch w_loop
        """))
    if aq >= 100:
        A(f"""
        s_cmp_lg_u32 {s(sSeg)}, 63
        s_cbranch_scc1 w_loop
        s_add_u32 {s(sT0)}, {s(sAO)}, {8*32*1280}
        s_nop 15
        {ao_st.replace(s(sAO) + " offen", s(sT0) + " offen")}
        """)
    A("s_branch w_loop")
    A("w_last:")
    if aq >= 100: A(f"s_add_u32 {s(sAO)}, {s(sAO)}, {8*32*1280}")
    if TL:
        A(prog_ld)
        for x in wm_pack + ao_mf: A(x)
        A(ao_addr(-1))
        A(f"s_mov_b32 {s(sCnt)}, 0\ns_waitcnt vmcnt(0) lgkmcnt(0)\ns_barrier")
        ensure(63, 0x3c0)
        for x in px_ld + ao_rd: A(x)
        for i in range(4): A(f"v_cvt_pk_bf16_f32 {v(XD+i)}, {v(AC2+2*i)}, {v(AC2+2*i+1)}")
        def ao():
            A("s_waitcnt lgkmcnt(0)")
            for i, x in enumerate(ao_mf):
                if i % 2 == 0: A(f"s_waitcnt vmcnt({4 - i // 2})")
                A(x)
            for x in ao_out: A(x)
            A(f"s_add_u32 {s(sAO)}, {s(sAO)}, {SEG}\n{ao_st}")
        A(f"s_mov_b32 {s(sT2)}, {s(sAO)}")
        ao()
        A(f"buffer_store_dwordx4 {v(XD,4)}, {v(vOa)}, {WSR}, {s(sT2)} offen sc1")
        A(ao_addr(0))
        for x in ao_rd: A(x)
        poll_ge(A, vProg, vPf, 64, 0x3c0, sCnt, "role_abort", slp=1)
        for x in px_ld: A(x)
        ao()
    else:
        for x in wm_pack: A(x)
        A(f"s_waitcnt vmcnt(0) lgkmcnt(0)\ns_barrier\ns_branch w_tail1\nw_tail:")
        A(ao_addr(-2))
        for x in ao_rd: A(x)
        A(f"s_sub_u32 {s(sNv)}, {s(sSeg)}, 1")
        poll_ge(A, vProg, vPf, s(sNv), 0x3c0, sCnt, "role_abort", slp=1)
        for x in px_ld: A(x)
        A(f"w_tail1:\n{afl}\ns_add_u32 {s(sFa)}, {s(sFa)}, 16384\ns_waitcnt lgkmcnt(0)")
        for i, x in enumerate(ao_mf):
            if i % 2 == 0: A(f"s_waitcnt vmcnt({5 - i // 2})")
            A(x)
        for x in ao_out: A(x)
        A(f"""
        {ao_st}
        s_add_u32 {s(sAO)}, {s(sAO)}, {8*32*1280}
        s_add_u32 {s(sSeg)}, {s(sSeg)}, 1
        s_cmp_lt_u32 {s(sSeg)}, 66
        s_cbranch_scc1 w_tail
        s_waitcnt vmcnt(0)
        {afl}
        """)
    PR.out(WMD)
    ev(A, 4, t0)
    A("s_endpgm")
    for f in cold: f()
```

```python
import sys
from common import *
import k_chain, k_chain2, k_chain3, k_chain4
from k_p import gen_p
from k_ua import gen_ua
from k_sm import gen_sm
from k_r import gen_r
import k_b5, k_w5, k_sm5, k_r5
from k_boot import boot_sm, G0N
from k_chain import S_WS, S_DBG, S_X, S_W, S_T, V_LANE

def main_prologue(A, label):
    kernel_head(A, label)
    srd(A, S_WS, "ws"); srd(A, S_DBG, "dbg")
    A(f"""
    s_load_dword s4, s[0:1], 0
    s_load_dword s5, s[0:1], 64
    s_getreg_b32 {s(S_X)}, hwreg(HW_REG_XCC_ID)
    s_and_b32 {s(S_X)}, {s(S_X)}, 7
    v_and_b32 {v(V_LANE)}, 63, v0
    v_lshrrev_b32 v2, 6, v0
    v_readfirstlane_b32 {s(S_W)}, v2
    v_mov_b32 v3, 1
    s_lshl_b32 s3, {s(S_X)}, 2
    v_mov_b32 v4, s3
    v_mov_b32 v5, 0
    s_waitcnt lgkmcnt(0)
    v_cmp_eq_u32 vcc, 0, v0
    s_and_b64 exec, exec, vcc
    s_cbranch_execz {label}_tk
    buffer_atomic_add v3, v4, {s(S_DBG,4)}, 0 offen sc0
    s_waitcnt vmcnt(0)
    ds_write_b32 v5, v3
    s_waitcnt lgkmcnt(0)
    {label}_tk:
    s_mov_b64 exec, -1
    s_barrier
    ds_read_b32 v3, v5
    s_waitcnt lgkmcnt(0)
    v_readfirstlane_b32 {s(S_T)}, v3
    s_barrier
    s_cmp_ge_u32 {s(S_T)}, 32
    s_cbranch_scc1 role_none
    s_sub_u32 {s(S_T)}, 31, {s(S_T)}
    """)

def build(prof=False, opt=()):
    A = Asm()
    PROF_ON[0] = prof
    main_prologue(A, "main")
    if prof:
        A(f"s_cmp_ge_u32 {s(S_T)}, 32\ns_cbranch_scc1 role_none")
        ev(A, 0)
    optv = dict(o.split("=") for o in opt if "=" in o)
    XPN[0] = int(optv.get("np", 1))
    if "s3" in opt: G0N[0] = 1
    roles = optv.get("roles", "cpusrm")
    C5 = "c5" in opt
    if C5:
        A(f"""
        s_cmp_lt_u32 {s(S_T)}, 18
        s_cbranch_scc1 role_b
        s_cmp_lt_u32 {s(S_T)}, 27
        s_cbranch_scc1 role_w
        s_cmp_gt_u32 {s(S_T)}, 28
        s_cbranch_scc1 role_r
        s_sub_u32 s20, 28, {s(S_T)}
        s_lshl_b32 s20, s20, 2
        s_add_u32 s20, s20, {s(S_W)}
        """)
        boot_sm(A, 20, opt)
        A(f"s_cmp_eq_u32 {s(S_T)}, 27\ns_cbranch_scc1 role_w\ns_branch role_sm")
    for ch, lim, lb in (("c", 12, "chain"), ("p", 21, "p"), ("u", 26, "ua"), ("s", 28, "sm"), ("r", 32, "r")):
        if not C5: A(f"s_cmp_lt_u32 {s(S_T)}, {lim}\ns_cbranch_scc1 role_{lb if ch in roles else 'none'}")
    A(f"""
    role_none:
    s_endpgm
    role_abort:
    v_mov_b32 v2, 132
    v_mov_b32 v3, 1
    s_mov_b64 exec, 1
    buffer_atomic_add v3, v2, {s(S_DBG,4)}, 0 offen
    s_endpgm
    """)
    if C5:
        cp = prof and "cprof" in opt
        A("role_sm:"); k_sm5.gen_sm(A, opt)
        A("role_r:"); k_r5.gen_r(A, opt)
        A("role_b:"); k_b5.gen_b(A, cp, opt)
        A("role_w:"); k_w5.gen_w(A, cp, opt)
        return wrap(A)
    A("role_p:"); gen_p(A, opt)
    A("role_ua:"); gen_ua(A, opt)
    A("role_sm:"); gen_sm(A, opt)
    A("role_r:"); gen_r(A, opt)
    A("role_chain:")
    (k_chain4 if 'c4' in opt else k_chain3 if 'c3' in opt else k_chain2 if 'c2' in opt else k_chain).gen_chain(A, prof=prof, opt=opt)
    return wrap(A)

def wrap(A):
    head = ""
    head += "; @launch kernel=main_kernel grid=(256,1,1) block=(256,1,1) lds=163840\n"
    head += '.amdgcn_target "amdgcn-amd-amdhsa--gfx950"\n.text\n'
    tail = '.section .rodata,"a"\n' + kernel_desc("main", 512, 256)
    return head + A.text() + tail

if __name__ == "__main__":
    t = build(prof="prof" in sys.argv, opt=sys.argv[2:])
    open(sys.argv[1], "w").write(t)
    print(len(t), "bytes")
```
